```python
import torch

def _softmax(x, axis=-1):
    return torch.softmax(x, dim=axis)

def _gelu(x):
    return torch.nn.functional.gelu(x, approximate='tanh')

def _silu(x):
    return torch.nn.functional.silu(x)

def _sigmoid(x):
    return torch.sigmoid(x)

def _layernorm(x, axis=-1, eps=1e-05):
    m = x.mean(dim=axis, keepdim=True)
    v = x.var(dim=axis, keepdim=True, unbiased=False)
    return (x - m) / torch.sqrt(v + eps)

def _scatter_add(tgt, idx, src, axis=0):
    return tgt.clone().index_add_(axis, idx, src)

def _segment_sum(src, seg, n):
    out = torch.zeros((n,) + src.shape[1:], dtype=src.dtype)
    return out.index_add_(0, seg, src)

def _pad(x, pw):
    flat = tuple((v for pair in reversed(pw) for v in pair))
    return torch.nn.functional.pad(x, flat)
kernel_name = 'gather_scatter__tensor_product_equiv_tfn__graph'

def setup_inputs():

    _w = lambda a: (lambda t: t.to(torch.bfloat16) if t.is_floating_point() else t)(torch.as_tensor(a))
    N, deg, C, L, DE = (10000, 16, 128, 1, 4)
    E = N * deg
    M = (L + 1) ** 2
    src = (lambda lo, hi, *s: torch.randint(lo, hi, s))(0, N, E).to(torch.int64)
    dst = (lambda lo, hi, *s: torch.randint(lo, hi, s))(0, N, E).to(torch.int64)
    r = (lambda *s: torch.randn(*s, dtype=torch.bfloat16) * 0.05)(E, 3)
    r = r / (torch.linalg.norm(r, dim=-1, keepdim=True) + 1e-09)
    rx, ry, rz = (r[:, 0].clone(), r[:, 1].clone(), r[:, 2].clone())
    Ys = [torch.ones((E, 1), dtype=float)]
    if L >= 1:
        Ys.append(r.to(float))
    if L >= 2:
        Ys.append(torch.stack([2 * rx * ry, 2 * ry * rz, (3 * rz * rz - 1.0) / (lambda _x: torch.sqrt(torch.as_tensor(_x)))(3.0), 2 * rx * rz, rx * rx - ry * ry], dim=-1).to(float))
    for _l in range(3, L + 1):
        Ys.append(((lambda *s: torch.randn(*s, dtype=torch.bfloat16) * 0.05)(E, 2 * _l + 1) * 0.3).to(float))
    Y = torch.cat(Ys, dim=-1)
    cg = torch.zeros((M, M, M), dtype=float)
    off = [_l * _l for _l in range(L + 2)]
    for l1 in range(L + 1):
        for l2 in range(L + 1):
            for l3 in range(abs(l1 - l2), min(L, l1 + l2) + 1):
                d1, d2, d3 = (2 * l1 + 1, 2 * l2 + 1, 2 * l3 + 1)
                cg[off[l1]:off[l1 + 1], off[l2]:off[l2 + 1], off[l3]:off[l3 + 1]] = (lambda *s: torch.randn(*s, dtype=torch.bfloat16) * 0.05)(d1, d2, d3) / (lambda _x: torch.sqrt(torch.as_tensor(_x)))(float(d1 * d2))
    return {'x': _w((lambda *s: torch.randn(*s, dtype=torch.bfloat16) * 0.05)(N, C, M) * 0.2), 'src': _w(src), 'dst': _w(dst), 'Y': _w(Y), 'edge_feat': _w((lambda *s: torch.randn(*s, dtype=torch.bfloat16) * 0.05)(E, DE)), 'w_rad': _w((lambda *s: torch.randn(*s, dtype=torch.bfloat16) * 0.05)(DE, C) * (1.0 / max(1.0, DE) ** 0.5)), 'cg': _w(cg), 'w_mix': _w((lambda *s: torch.randn(*s, dtype=torch.bfloat16) * 0.05)(C, C) * (1.0 / max(1.0, C) ** 0.5))}

def reference(x, src, dst, Y, edge_feat, w_rad, cg, w_mix):
    N, C, M = (x.shape[0], x.shape[1], x.shape[2])
    R = _silu(edge_feat @ w_rad)
    xs = x[src]
    tp = torch.einsum('eci,ef,ifo->eco', xs, Y, cg)
    msg = R[:, :, None] * tp
    agg = _segment_sum(msg.reshape(-1, C * M), dst, N).reshape(N, C, M)
    return torch.einsum('ncm,cd->ndm', agg, w_mix)
```

```python
import struct
import sys

NAME = "gather_scatter__tensor_product_equiv_tfn__graph"
N, E = 10000, 160000
NCH, CH = 256, 625
XBYTES = N * 1024

WS_TAB = 0
WS_KEY = 0x40000
WS_PAY = 0x100000
WS_WMIX = 0x400000
WS_WRAD = WS_WMIX + 0x8000
WS_CG = WS_WRAD + 0x800
WS_STAMP = 0x800000

SLOTS = 8
MAXENT = NCH * 2 * SLOTS + 8 * 16 + 128

L_DEG, L_BIN, L_MAX, L_MAP, L_INV = 0, 256, 512, 768, 1024
L_KEY = 1280
L_PAY = L_KEY + MAXENT * 4
L_AGG = L_PAY + MAXENT * 16
ROWB = 288
L_END = L_AGG + 160 * ROWB


def f32(x):
    return struct.unpack("<I", struct.pack("<f", x))[0]


class Opt:
    stamps = False
    k1_mall = True
    k1_code = True
    k1_l2rows = 0
    k2_l2rows = 0
    loop_barrier = False
    touch_stride = 128


class Asm:
    def __init__(self):
        self.lines = []

    def __call__(self, s=""):
        for ln in s.split("\n"):
            ln = ln.strip()
            if not ln:
                continue
            self.lines.append(ln if ln.endswith(":") or ln.startswith(".") or ln.startswith(";") else "    " + ln)

    def text(self):
        return "\n".join(self.lines) + "\n"


def vr(a, n=1):
    return "v%d" % a if n == 1 else "v[%d:%d]" % (a, a + n - 1)


def sr(a, n=1):
    return "s%d" % a if n == 1 else "s[%d:%d]" % (a, a + n - 1)


def wave_scan(a, v):
    for c in ("row_shr:1", "row_shr:2", "row_shr:4", "row_shr:8"):
        a("s_nop 1")
        a(f"v_add_u32_dpp v{v}, v{v}, v{v} {c} row_mask:0xf bank_mask:0xf bound_ctrl:1")
    a("s_nop 1")
    a(f"v_add_u32_dpp v{v}, v{v}, v{v} row_bcast:15 row_mask:0xa bank_mask:0xf")
    a("s_nop 1")
    a(f"v_add_u32_dpp v{v}, v{v}, v{v} row_bcast:31 row_mask:0xc bank_mask:0xf")


def stamp(a, o, idx, sbase):
    if o.stamps:
        a(f"s_memrealtime {sr(sbase + 2 * idx, 2)}")


def stamp_flush(a, o, n, sbase, ws, kern, vt, wave_s):
    if not o.stamps:
        return
    a("s_mov_b64 exec, -1")
    a("s_waitcnt lgkmcnt(0)")
    a(f"s_lshl_b32 s3, s2, 4")
    a(f"s_add_u32 s3, s3, s{wave_s}")
    a(f"s_lshl_b32 s3, s3, 6")
    a(f"s_add_u32 s3, s3, {WS_STAMP + kern * 0x80000}")
    a(f"v_mov_b32 v{vt}, s3")
    for i in range(n):
        a(f"v_mov_b32 v{vt + 1}, s{sbase + 2 * i}")
        a(f"global_store_dword v{vt}, v{vt + 1}, {sr(ws, 2)} offset:{4 * i}")
        a("s_nop 1")


def gen_sort(a, o):
    a(".p2align 8")
    a(".globl tfn_sort_kernel")
    a(".type tfn_sort_kernel,@function")
    a("tfn_sort_kernel:")
    ST = 40
    a(f"""
    s_cmp_ge_u32 s2, {NCH}
    s_cbranch_scc1 Ls_end
    """)
    stamp(a, o, 0, ST)
    a(f"""
    s_load_dwordx16 s[4:19], s[0:1], 0
    s_load_dwordx2 s[20:21], s[0:1], 80
    v_lshrrev_b32 v1, 6, v0
    v_lshlrev_b32 v2, 2, v0
    v_readfirstlane_b32 s30, v1
    v_mov_b32 v1, 0
    ds_write_b32 v2, v1
    s_mul_i32 s3, s2, {CH}
    v_add_u32 v3, s3, v0
    v_lshlrev_b32 v4, 2, v3
    v_lshlrev_b32 v5, 3, v3
    v_and_b32 v29, 63, v0
    v_cmp_gt_u32 vcc, {CH}, v0
    s_cmp_eq_u32 s30, 10
    s_cbranch_scc1 Ls_helper
    s_mov_b64 s[22:23], vcc
    s_mov_b64 exec, vcc
    s_waitcnt lgkmcnt(0)
    global_load_dword v6, v4, s[8:9]
    global_load_dword v7, v4, s[6:7]
    global_load_dwordx2 v[8:9], v5, s[10:11]
    global_load_dwordx2 v[10:11], v5, s[12:13]
    s_barrier
    s_add_u32 s24, s20, {WS_KEY}
    s_addc_u32 s25, s21, 0
    s_add_u32 s26, s20, {WS_PAY}
    s_addc_u32 s27, s21, 0
    v_mov_b32 v13, 1
    s_waitcnt vmcnt(3)
    """)
    stamp(a, o, 1, ST)
    a(f"""
    v_and_b32 v12, 255, v6
    v_lshlrev_b32 v12, 2, v12
    ds_add_rtn_u32 v14, v12, v13
    s_mov_b64 exec, -1
    v_lshlrev_b32 v15, 4, v29
    s_waitcnt lgkmcnt(0)
    s_barrier
    ds_read_b128 v[16:19], v15
    s_waitcnt vmcnt(2)
    v_mul_u32_u24 v30, 13, v7
    v_lshrrev_b32 v30, 14, v30
    v_min_u32 v30, 7, v30
    v_lshrrev_b32 v31, 8, v6
    v_and_b32 v31, 63, v31
    v_lshl_or_b32 v31, v30, 6, v31
    v_lshl_or_b32 v31, v7, 10, v31
    s_waitcnt lgkmcnt(0)
    v_add_u32 v20, v16, v17
    v_add_u32 v21, v20, v18
    v_add_u32 v22, v21, v19
    v_mov_b32 v23, v22
    """)
    wave_scan(a, 23)
    a(f"""
    v_sub_u32 v24, v23, v22
    v_add_u32 v25, v24, v16
    v_add_u32 v26, v24, v20
    v_add_u32 v27, v24, v21
    ds_write_b128 v15, v[24:27] offset:1024
    s_mov_b64 exec, s[22:23]
    ds_read_b32 v28, v12 offset:1024
    v_add_u32 v14, s3, v14
    s_waitcnt vmcnt(0)
    s_cmp_lg_u32 s30, 0
    s_cbranch_scc1 Ls_notab
    v_lshl_or_b32 v32, v16, 16, v24
    v_lshl_or_b32 v33, v17, 16, v25
    v_lshl_or_b32 v34, v18, 16, v26
    v_lshl_or_b32 v35, v19, 16, v27
    s_lshl_b32 s31, s2, 10
    v_add_u32 v15, s31, v15
    global_store_dwordx4 v15, v[32:35], s[20:21]
    Ls_notab:
    s_waitcnt lgkmcnt(0)
    v_add_u32 v14, v14, v28
    v_lshlrev_b32 v4, 2, v14
    v_lshlrev_b32 v5, 4, v14
    global_store_dword v4, v31, s[24:25]
    global_store_dwordx4 v5, v[8:11], s[26:27]
    """)
    stamp(a, o, 2, ST)
    if o.stamps:
        a("s_waitcnt vmcnt(0)")
    stamp(a, o, 3, ST)
    stamp_flush(a, o, 4, ST, 20, 0, 40, 30)
    a("""
    Ls_end:
    s_endpgm
    """)
    a(f"""
    Ls_helper:
    s_waitcnt lgkmcnt(0)
    s_barrier
    s_add_u32 s24, s20, {WS_WMIX}
    s_addc_u32 s25, s21, 0
    s_lshl_b32 s31, s2, 5
    v_and_b32 v1, 31, v29
    v_add_u32 v1, s31, v1
    v_and_b32 v2, 3, v1
    v_bfe_u32 v3, v1, 6, 2
    v_lshlrev_b32 v2, 1, v2
    v_lshl_add_u32 v2, v3, 3, v2
    v_bfe_u32 v3, v1, 9, 2
    v_lshl_add_u32 v2, v3, 5, v2
    v_bfe_u32 v3, v1, 2, 4
    v_bfe_u32 v4, v1, 8, 1
    v_lshl_add_u32 v3, v3, 1, v4
    v_lshrrev_b32 v4, 11, v1
    v_lshl_add_u32 v3, v4, 5, v3
    v_lshl_add_u32 v2, v2, 7, v3
    v_lshlrev_b32 v2, 1, v2
    v_lshlrev_b32 v1, 2, v1
    global_load_ushort v5, v2, s[18:19]
    global_load_ushort v6, v2, s[18:19] offset:256
    s_cmp_gt_u32 s2, 1
    s_cbranch_scc1 Ls_h1
    v_lshlrev_b32 v7, 2, v29
    global_load_dword v8, v7, s[14:15]
    global_load_dword v9, v7, s[14:15] offset:256
    global_load_dword v10, v7, s[14:15] offset:512
    global_load_dword v11, v7, s[14:15] offset:768
    v_bfe_u32 v12, v29, 3, 2
    v_and_b32 v13, 7, v29
    v_lshl_add_u32 v12, v13, 3, v12
    v_lshlrev_b32 v12, 1, v12
    global_load_ushort v14, v12, s[16:17]
    global_load_ushort v15, v12, s[16:17] offset:8
    Ls_h1:
    """)
    npf = 0
    if o.k1_code:
        a("""
        s_getpc_b64 s[26:27]
        Ls_pc:
        s_add_u32 s26, s26, tfn_main_code-Ls_pc
        s_addc_u32 s27, s27, 0
        v_lshlrev_b32 v16, 7, v29
        v_min_u32 v16, tfn_main_end-tfn_main_code-4, v16
        global_load_dword v40, v16, s[26:27]
        """)
        npf += 1
    ts = o.touch_stride
    if o.k1_l2rows:
        per = o.k1_l2rows * 1024 // 32
        n = (per + 64 * ts - 1) // (64 * ts)
        a(f"""
        s_lshr_b32 s31, s2, 3
        s_mul_i32 s31, s31, {64 * ts}
        v_mul_u32_u24 v16, {ts}, v29
        v_add_u32 v16, s31, v16
        """)
        for i in range(n):
            a(f"global_load_dword v41, v16, s[4:5]")
            if i + 1 < n:
                a(f"v_add_u32 v16, {32 * 64 * ts}, v16")
        npf += n
    if o.k1_mall:
        lo = o.k1_l2rows * 1024
        per = (XBYTES - lo + 255) // 256
        n = (per + 64 * ts - 1) // (64 * ts)
        a(f"""
        s_mul_i32 s31, s2, {64 * ts}
        s_add_u32 s31, s31, {lo}
        v_mul_u32_u24 v16, {ts}, v29
        v_add_u32 v16, s31, v16
        """)
        for i in range(n):
            a(f"v_min_u32 v17, {XBYTES - 4}, v16")
            a(f"global_load_dword v41, v17, s[4:5]")
            if i + 1 < n:
                a(f"v_add_u32 v16, {256 * 64 * ts}, v16")
        npf += n
    assert npf < 60
    a(f"""
    s_barrier
    s_waitcnt vmcnt({npf})
    v_lshl_or_b32 v5, v6, 16, v5
    s_mov_b32 exec_hi, 0
    global_store_dword v1, v5, s[24:25]
    s_mov_b64 exec, -1
    s_cmp_gt_u32 s2, 1
    s_cbranch_scc1 Ls_hend
    s_cmp_eq_u32 s2, 1
    s_cbranch_scc1 Ls_hcg
    s_mov_b32 s31, {f32(-1.4426950408889634):#x}
    """)
    for k in range(4):
        a(f"v_lshlrev_b32 v{20 + k}, 16, v{8 + k}")
        a(f"v_and_b32 v{24 + k}, 0xffff0000, v{8 + k}")
    for k in range(8):
        a(f"v_mul_f32 v{20 + k}, s31, v{20 + k}")
    for h in range(2):
        for p in range(2):
            g0 = 20 + 4 * h + 2 * p
            hi = 32 + 4 * h + p
            lo = hi + 2
            a(f"""
            v_cvt_pk_bf16_f32 v{hi}, v{g0}, v{g0 + 1}
            v_lshlrev_b32 v16, 16, v{hi}
            v_and_b32 v17, 0xffff0000, v{hi}
            v_sub_f32 v16, v{g0}, v16
            v_sub_f32 v17, v{g0 + 1}, v17
            v_cvt_pk_bf16_f32 v{lo}, v16, v17
            """)
    a(f"""
    v_lshlrev_b32 v7, 5, v29
    v_add_u32 v7, {WS_WRAD - WS_WMIX}, v7
    global_store_dwordx4 v7, v[32:35], s[24:25]
    global_store_dwordx4 v7, v[36:39], s[24:25] offset:16
    s_endpgm
    Ls_hcg:
    v_lshl_or_b32 v14, v15, 16, v14
    v_add_u32 v7, {WS_CG - WS_WMIX}, v7
    s_mov_b32 exec_hi, 0
    global_store_dword v7, v14, s[24:25]
    Ls_hend:
    s_endpgm
    """)


def gen_main(a, o):
    kn = NAME + "_kernel"
    a(".p2align 8")
    a(f".globl {kn}")
    a(f".type {kn},@function")
    a(f"{kn}:")
    a("tfn_main_code:")
    sX, sO, sWS, sKEY, sPAY, sCST = 4, 8, 12, 14, 16, 18
    sQ, sW, sRND, sMAX, sSTART, sN, sOFF, sT = 20, 21, 22, 23, 24, 25, 26, 27
    sRING = 28
    sM = 44
    sTMP = 60
    sLN2 = 72
    sIT = 74
    ST = 76
    vL16, vLANE, vREC4, vREC16, vREM, vONE = 1, 2, 3, 4, 5, 6
    vKA, vEA, vYA = 7, 8, 9
    vKEY, vKEYN = 10, 11
    vEF, vEFN, vYN, vA = 12, 14, 16, 18
    vAT = 20
    vE = 24
    vT = 26
    vWR = 32
    vCG = 40
    vTP = 48
    vACC = 56
    vWM = 96
    vXB = 128
    vU = 160
    vPF = 192
    NV = 200
    vPAY = vXB
    vK = vU
    vBA = vU + 8
    vRK = vU + 16
    vMP = vU + 24

    a(f"""
    s_cmp_ge_u32 s2, 256
    s_cbranch_scc1 Lm_end
    """)
    stamp(a, o, 0, ST)
    a(f"""
    s_load_dwordx2 {sr(sWS, 2)}, s[0:1], 80
    s_load_dwordx2 {sr(sX, 2)}, s[0:1], 0
    s_load_dwordx2 {sr(sO, 2)}, s[0:1], 64
    v_lshrrev_b32 v{vT}, 6, v0
    v_and_b32 v{vLANE}, 63, v0
    v_readfirstlane_b32 s{sW}, v{vT}
    v_lshlrev_b32 v{vL16}, 4, v{vLANE}
    v_mov_b32 v{vT}, 0
    v_lshlrev_b32 v{vT + 1}, 2, v0
    v_min_u32 v{vT + 1}, {L_MAP - 4}, v{vT + 1}
    ds_write_b32 v{vT + 1}, v{vT}
    s_and_b32 s{sQ}, s2, 7
    s_lshl_b32 s{sQ}, s{sQ}, 5
    s_lshr_b32 s{sT}, s2, 3
    s_or_b32 s{sQ}, s{sQ}, s{sT}
    s_lshl_b32 s{sT}, s{sQ}, 2
    v_lshrrev_b32 v{vT + 2}, 1, v0
    v_lshl_add_u32 v{vT + 3}, v{vT + 2}, 10, s{sT}
    s_mov_b32 s{sX + 2}, {XBYTES}
    s_mov_b32 s{sX + 3}, 0x20000
    s_mov_b32 s{sO + 2}, {XBYTES}
    s_mov_b32 s{sO + 3}, 0x20000
    s_waitcnt lgkmcnt(0)
    global_load_dword v{vREM}, v{vT + 3}, {sr(sWS, 2)}
    s_add_u32 s{sCST}, s{sWS}, {WS_WMIX}
    s_addc_u32 s{sCST + 1}, s{sWS + 1}, 0
    s_add_u32 s{sKEY}, s{sWS}, {WS_KEY}
    s_addc_u32 s{sKEY + 1}, s{sWS + 1}, 0
    s_add_u32 s{sPAY}, s{sWS}, {WS_PAY}
    s_addc_u32 s{sPAY + 1}, s{sWS + 1}, 0
    s_and_b32 s{sX + 1}, s{sX + 1}, 0xffff
    s_and_b32 s{sO + 1}, s{sO + 1}, 0xffff
    v_lshlrev_b32 v{vT + 4}, 5, v{vLANE}
    v_add_u32 v{vT + 4}, {WS_WRAD - WS_WMIX}, v{vT + 4}
    global_load_dwordx4 {vr(vWR, 4)}, v{vT + 4}, {sr(sCST, 2)}
    global_load_dwordx4 {vr(vWR + 4, 4)}, v{vT + 4}, {sr(sCST, 2)} offset:16
    v_and_b32 v{vT + 4}, 3, v0
    v_lshlrev_b32 v{vT + 4}, 5, v{vT + 4}
    v_add_u32 v{vT + 4}, {WS_CG - WS_WMIX}, v{vT + 4}
    global_load_dwordx4 {vr(vCG, 4)}, v{vT + 4}, {sr(sCST, 2)}
    global_load_dwordx4 {vr(vCG + 4, 4)}, v{vT + 4}, {sr(sCST, 2)} offset:16
    s_barrier
    v_mul_u32_u24 v{vT + 2}, {CH}, v{vT + 2}
    v_and_b32 v{vT + 3}, 1, v0
    v_add_u32 v{vT + 2}, v{vT + 2}, v{vT + 3}
    v_mov_b32 v{vONE}, 1
    v_mov_b32 v{vT + 5}, {L_MAX}
    s_mov_b32 s{sRND}, 0
    s_mov_b32 s{sLN2}, {f32(-0.6931471805599453):#x}
    s_mov_b32 s{sLN2 + 1}, {f32(-0.6931471805599453):#x}
    """)
    for i in range(40):
        a(f"v_mov_b32 v{vACC + i}, 0")
    a("s_waitcnt vmcnt(4)")
    stamp(a, o, 1, ST)
    a(f"""
    v_and_b32 v{vT + 4}, 0xffff, v{vREM}
    v_lshrrev_b32 v{vREM}, 16, v{vREM}
    v_add_u32 v{vT + 2}, v{vT + 2}, v{vT + 4}
    v_lshlrev_b32 v{vREC4}, 2, v{vT + 2}
    v_lshlrev_b32 v{vREC16}, 4, v{vT + 2}
    v_cmp_lt_u32 vcc, {2 * SLOTS}, v{vREM}
    s_and_saveexec_b64 {sr(sTMP, 2)}, vcc
    ds_max_u32 v{vT + 5}, v{vREM}
    s_mov_b64 exec, -1
    v_sub_u32 v{vREM}, v{vREM}, v{vT + 3}
    Lm_round:
    """)
    for j in range(SLOTS):
        a(f"v_cmp_lt_i32 {sr(sM + 2 * j, 2)}, {2 * j}, v{vREM}")

    def per_slot(label, body):
        for j in range(SLOTS):
            a(f"s_mov_b64 exec, {sr(sM + 2 * j, 2)}")
            a(f"s_cbranch_execz {label}")
            body(j)
        a(f"{label}:")
        a("s_mov_b64 exec, -1")

    def ld(j):
        a(f"global_load_dword v{vK + j}, v{vREC4}, {sr(sKEY, 2)} offset:{8 * j}")
        a(f"global_load_dwordx4 {vr(vPAY + 4 * j, 4)}, v{vREC16}, {sr(sPAY, 2)} offset:{32 * j}")
    per_slot("Lm_ld", ld)
    a(f"""
    s_cmp_lg_u32 s{sRND}, 0
    s_cbranch_scc1 Lm_later
    """)
    a(f"""
    s_and_b32 s{sT}, s{sW}, 3
    s_lshl_b32 s{sT}, s{sT}, 13
    v_add_u32 v{vT}, s{sT}, v{vL16}
    v_add_u32 v{vT + 1}, 4096, v{vT}
    """)
    for i in range(8):
        a(f"global_load_dwordx4 {vr(vWM + 4 * i, 4)}, v{vT + i // 4}, {sr(sCST, 2)} offset:{1024 * (i % 4)}")
    nyoung = 8
    if o.k2_l2rows:
        ts = o.touch_stride
        lo = o.k1_l2rows * 1024
        per = o.k2_l2rows * 1024 // 32
        n = (per + 512 * ts - 1) // (512 * ts)
        a(f"""
        s_lshr_b32 s{sT}, s2, 3
        s_mul_i32 s{sT}, s{sT}, {512 * ts}
        s_add_u32 s{sT}, s{sT}, {lo}
        v_mul_u32_u24 v{vT}, {ts}, v0
        """)
        for i in range(n):
            a(f"buffer_load_dword v{vPF}, v{vT}, {sr(sX, 4)}, s{sT} offen")
            if i + 1 < n:
                a(f"s_add_u32 s{sT}, s{sT}, {32 * 512 * ts}")
        nyoung += n
    a(f"s_waitcnt vmcnt({nyoung})")
    stamp(a, o, 2, ST)

    def hist1(j):
        a(f"v_and_b32 v{vBA + j}, 63, v{vK + j}")
        a(f"v_lshlrev_b32 v{vBA + j}, 2, v{vBA + j}")
        a(f"ds_add_u32 v{vBA + j}, v{vONE} offset:{L_DEG}")
    per_slot("Lm_h1", hist1)
    a(f"""
    v_lshlrev_b32 v{vT + 1}, 2, v{vLANE}
    s_mul_i32 s{sT}, s{sW}, 5
    s_waitcnt lgkmcnt(0)
    s_barrier
    ds_read_b32 v{vT}, v{vT + 1} offset:{L_DEG}
    ds_read_b32 v{vT + 5}, v{vT + 5}
    v_sub_u32 v{vT + 2}, 63, v{vLANE}
    s_add_u32 s{sTMP}, s{sT}, 1
    s_add_u32 s{sTMP + 1}, s{sT}, 2
    s_add_u32 s{sTMP + 2}, s{sT}, 3
    s_add_u32 s{sTMP + 3}, s{sT}, 4
    s_waitcnt lgkmcnt(0)
    v_lshl_or_b32 v{vT}, v{vT}, 6, v{vT + 2}
    v_readfirstlane_b32 s{sMAX}, v{vT + 5}
    v_readlane_b32 s{sRING}, v{vT}, s{sT}
    v_readlane_b32 s{sRING + 1}, v{vT}, s{sTMP}
    v_readlane_b32 s{sRING + 2}, v{vT}, s{sTMP + 1}
    v_readlane_b32 s{sRING + 3}, v{vT}, s{sTMP + 2}
    v_readlane_b32 s{sRING + 4}, v{vT}, s{sTMP + 3}
    """)
    for k in range(5):
        a(f"v_cmp_lt_u32 {sr(sTMP + 2 * k, 2)}, s{sRING + k}, v{vT}")
    for k in range(5):
        a(f"s_bcnt1_i32_b64 s{sRING + 8 + k}, {sr(sTMP + 2 * k, 2)}")
    for k in range(5):
        a(f"v_writelane_b32 v{vT + 2}, s{sRING + 8 + k}, {k}")
    a(f"""
    s_mov_b64 exec, 31
    v_lshrrev_b32 v{vT}, 3, v{vT + 2}
    v_and_b32 v{vT + 3}, 7, v{vT + 2}
    v_cmp_lt_u32 vcc, 15, v{vT + 2}
    v_xor_b32 v{vT + 4}, 7, v{vT + 3}
    v_add_u32 v{vT + 5}, s{sT}, v{vLANE}
    v_cndmask_b32 v{vT + 3}, v{vT + 3}, v{vT + 4}, vcc
    v_lshlrev_b32 v{vT + 2}, 5, v{vT + 3}
    v_lshl_or_b32 v{vT + 2}, v{vT}, 19, v{vT + 2}
    v_mad_u32_u24 v{vT + 3}, v{vT + 3}, 5, v{vT}
    v_lshlrev_b32 v{vT + 4}, 2, v{vT + 5}
    v_lshlrev_b32 v{vT + 3}, 2, v{vT + 3}
    ds_write_b32 v{vT + 4}, v{vT + 2} offset:{L_MAP}
    ds_write_b32 v{vT + 3}, v{vT + 5} offset:{L_INV}
    s_mov_b64 exec, -1
    s_waitcnt lgkmcnt(0)
    s_barrier
    s_branch Lm_bins
    Lm_later:
    s_waitcnt vmcnt(0)
    """)

    def nodeaddr(j):
        a(f"v_and_b32 v{vBA + j}, 63, v{vK + j}")
        a(f"v_lshlrev_b32 v{vBA + j}, 2, v{vBA + j}")
    per_slot("Lm_h1b", nodeaddr)
    a("Lm_bins:")

    def rdmap(j):
        a(f"ds_read_b32 v{vMP + j}, v{vBA + j} offset:{L_MAP}")
        a(f"v_bfe_u32 v{vBA + j}, v{vK + j}, 6, 3")
        a(f"v_and_b32 v{vK + j}, 0xfffffc00, v{vK + j}")
    per_slot("Lm_mp", rdmap)
    a("s_waitcnt lgkmcnt(0)")

    def hist2(j):
        a(f"v_and_b32 v{vRK + j}, 0xffff, v{vMP + j}")
        a(f"v_lshl_add_u32 v{vBA + j}, v{vBA + j}, 2, v{vRK + j}")
        a(f"ds_add_rtn_u32 v{vRK + j}, v{vBA + j}, v{vONE} offset:{L_BIN}")
        a(f"v_lshrrev_b32 v{vMP + j}, 16, v{vMP + j}")
        a(f"v_or_b32 v{vK + j}, v{vK + j}, v{vMP + j}")
    per_slot("Lm_h2", hist2)
    a(f"""
    v_lshlrev_b32 v{vT + 1}, 2, v{vLANE}
    s_lshl_b32 s{sT}, s{sW}, 3
    s_add_u32 s{sTMP}, s{sT}, 7
    v_lshrrev_b32 v{vT + 3}, 3, v{vLANE}
    s_waitcnt lgkmcnt(0)
    s_barrier
    ds_read_b32 v{vT}, v{vT + 1} offset:{L_BIN}
    s_waitcnt lgkmcnt(0)
    v_mov_b32 v{vT + 2}, v{vT}
    """)
    wave_scan(a, vT + 2)
    a(f"""
    v_lshl_add_u32 v{vT + 2}, v{vT + 3}, 4, v{vT + 2}
    v_sub_u32 v{vT}, v{vT + 2}, v{vT}
    """)
    for j in range(SLOTS):
        if j:
            a(f"s_cmp_eq_u64 {sr(sM + 2 * j, 2)}, 0")
            a("s_cbranch_scc1 Lm_bp")
        a(f"ds_bpermute_b32 v{vMP + j}, v{vBA + j}, v{vT}")
    a(f"""
    Lm_bp:
    v_readlane_b32 s{sSTART}, v{vT}, s{sT}
    v_readlane_b32 s{sN}, v{vT + 2}, s{sTMP}
    """)
    if o.loop_barrier:
        for w in range(8):
            a(f"v_readlane_b32 s{sRING + w}, v{vT}, {8 * w}")
            a(f"v_readlane_b32 s{sRING + 8 + w}, v{vT + 2}, {8 * w + 7}")
        a(f"s_mov_b32 s{sIT}, 0")
        for w in range(8):
            a(f"s_sub_u32 s{sRING + w}, s{sRING + 8 + w}, s{sRING + w}")
            a(f"s_max_u32 s{sIT}, s{sIT}, s{sRING + w}")
    a(f"""
    v_mov_b32 v{vT + 4}, {XBYTES}
    v_mov_b32 v{vTP}, 0
    v_mov_b32 v{vTP + 1}, 0
    v_mov_b32 v{vTP + 2}, 0
    v_mov_b32 v{vTP + 3}, 0
    v_add_u32 v{vT + 2}, s{sN}, v{vLANE}
    v_lshlrev_b32 v{vT + 3}, 4, v{vT + 2}
    v_lshlrev_b32 v{vT + 2}, 2, v{vT + 2}
    s_mov_b64 exec, 0xffff
    ds_write_b32 v{vT + 2}, v{vT + 4} offset:{L_KEY}
    ds_write_b128 v{vT + 3}, {vr(vTP, 4)} offset:{L_PAY}
    s_mov_b64 exec, -1
    s_sub_u32 s{sN}, s{sN}, s{sSTART}
    v_add_u32 v{vKA}, s{sSTART}, v{vLANE}
    v_lshlrev_b32 v{vEA}, 4, v{vKA}
    v_lshlrev_b32 v{vKA}, 2, v{vKA}
    v_lshrrev_b32 v{vYA}, 2, v{vLANE}
    v_add_u32 v{vYA}, s{sSTART}, v{vYA}
    v_lshlrev_b32 v{vYA}, 4, v{vYA}
    s_waitcnt lgkmcnt(2)
    """)

    def wr(j):
        a(f"v_add_u32 v{vRK + j}, v{vRK + j}, v{vMP + j}")
        a(f"v_lshlrev_b32 v{vMP + j}, 2, v{vRK + j}")
        a(f"v_lshlrev_b32 v{vRK + j}, 4, v{vRK + j}")
        a(f"ds_write_b32 v{vMP + j}, v{vK + j} offset:{L_KEY}")
        a(f"ds_write_b128 v{vRK + j}, {vr(vPAY + 4 * j, 4)} offset:{L_PAY}")
    per_slot("Lm_wr", wr)
    a(f"""
    s_waitcnt lgkmcnt(0)
    s_barrier
    """)
    stamp(a, o, 3, ST)
    if o.stamps:
        a("s_waitcnt lgkmcnt(0)")
    a(f"""
    ds_read_b32 v{vKEYN}, v{vKA} offset:{L_KEY}
    ds_read_b64 {vr(vEFN, 2)}, v{vEA} offset:{L_PAY + 8}
    ds_read_b64 {vr(vYN, 2)}, v{vYA} offset:{L_PAY}
    ds_read_b32 v{vKEY}, v{vKA} offset:{L_KEY + 32}
    ds_read_b64 {vr(vEF, 2)}, v{vEA} offset:{L_PAY + 8 + 128}
    v_lshlrev_b32 v{vT + 1}, 2, v{vLANE}
    v_mov_b32 v{vT}, 0
    ds_write_b32 v{vT + 1}, v{vT} offset:{L_BIN}
    s_add_u32 s{sN}, s{sN}, 3
    s_lshr_b32 s{sN}, s{sN}, 2
    """)
    if o.loop_barrier:
        a(f"""
        s_add_u32 s{sIT}, s{sIT}, 15
        s_lshr_b32 s{sIT}, s{sIT}, 4
        """)
    a(f"""
    s_cmp_eq_u32 s{sN}, 0
    s_cbranch_scc1 Lm_done
    s_sub_u32 s{sN}, s{sN}, 1
    s_waitcnt lgkmcnt(5)
    """)
    for i in range(9):
        a(f"v_readlane_b32 s{sRING + i}, v{vKEYN}, {i}")
    for i in range(8):
        a(f"s_and_b32 s{sOFF}, s{sRING + i}, 0xfffffc00")
        a(f"buffer_load_dwordx4 {vr(vXB + 4 * i, 4)}, v{vL16}, {sr(sX, 4)}, s{sOFF} offen")
    a(f"s_and_b32 s{sOFF}, s{sRING + 8}, 0xfffffc00")

    def mz(setb, k, ef, abid):
        d = setb + 4 * (k & 1)
        w = vWR + 4 * (k & 1) + 2 * (k >> 1)
        c = vr(d, 4) if k >= 2 else "0"
        a(f"v_mfma_f32_4x4x4_16b_bf16 {vr(d, 4)}, {vr(ef, 2)}, {vr(w, 2)}, {c} cbsz:4 abid:{abid}")

    def dot(n):
        i, p = n & 3, n >> 2
        c = f"v{vAT + i}" if p else "0"
        a(f"v_dot2_f32_bf16 v{vAT + i}, v{vYN + p}, v{vCG + 2 * i + p}, {c}")

    a("s_waitcnt lgkmcnt(3)")
    mz(vU, 0, vEFN, 0)
    mz(vU, 1, vEFN, 0)
    mz(vU + 8, 0, vEFN, 1)
    mz(vU + 8, 1, vEFN, 1)
    mz(vU, 2, vEFN, 0)
    mz(vU, 3, vEFN, 0)
    mz(vU + 8, 2, vEFN, 1)
    mz(vU + 8, 3, vEFN, 1)
    for n in range(8):
        dot(n)
    for r in range(8):
        a(f"v_exp_f32 v{vTP + r}, v{vU + r}")
    a(f"v_cvt_pk_bf16_f32 v{vA}, v{vAT}, v{vAT + 1}")
    a(f"v_cvt_pk_bf16_f32 v{vA + 1}, v{vAT + 2}, v{vAT + 3}")
    for r in range(0, 8, 2):
        a(f"v_pk_add_f32 {vr(vTP + r, 2)}, {vr(vTP + r, 2)}, 1.0 op_sel_hi:[1,0]")
    for r in range(8):
        a(f"v_rcp_f32 v{vTP + r}, v{vTP + r}")
    a("s_nop 0")
    for r in range(0, 8, 2):
        a(f"v_pk_mul_f32 {vr(vU + r, 2)}, {vr(vU + r, 2)}, {vr(vTP + r, 2)}")
    a("s_waitcnt lgkmcnt(0)")
    a(".p2align 6")
    a("Lm_loop:")
    if o.loop_barrier:
        a("s_barrier")
        a(f"s_sub_u32 s{sIT}, s{sIT}, 1")
    a(f"""
    ds_read_b32 v{vKEYN}, v{vKA} offset:{L_KEY + 32 + 64}
    ds_read_b64 {vr(vEFN, 2)}, v{vEA} offset:{L_PAY + 8 + 128 + 256}
    ds_read_b64 {vr(vYN, 2)}, v{vYA} offset:{L_PAY + 256}
    """)
    for i in range(16):
        g, k, b = i >> 2, i & 3, i & 7
        xb = vXB + 4 * b
        sn = vU + 8 * ((g + 1) & 3) + 4 * (k & 1) + 2 * (k >> 1)
        cur = vU + 8 * g + (k & 2)
        sel = k & 1
        a(f"""
        s_waitcnt vmcnt(7)
        v_mfma_f32_4x4x4_16b_bf16 {vr(vTP, 4)}, {vr(vA, 2)}, {vr(xb, 2)}, 0 cbsz:4 abid:{i}
        v_exp_f32 v{vE}, v{sn}
        v_mfma_f32_4x4x4_16b_bf16 {vr(vTP + 4, 4)}, {vr(vA, 2)}, {vr(xb + 2, 2)}, 0 cbsz:4 abid:{i}
        buffer_load_dwordx4 {vr(xb, 4)}, v{vL16}, {sr(sX, 4)}, s{sOFF} offen
        v_exp_f32 v{vE + 1}, v{sn + 1}
        v_readlane_b32 s{sRING + ((i + 9) & 15)}, v{vKEY}, {i + 1}
        v_pk_add_f32 {vr(vE, 2)}, {vr(vE, 2)}, 1.0 op_sel_hi:[1,0]
        """)
        mz(vU + 8 * ((g + 2) & 3), k, vEF, g)
        a(f"""
        v_rcp_f32 v{vE}, v{vE}
        v_rcp_f32 v{vE + 1}, v{vE + 1}
        s_and_b32 s{sOFF}, s{sRING + ((i + 9) & 15)}, 0xfffffc00
        s_set_gpr_idx_on s{sRING + i}, 0xc
        v_pk_fma_f32 {vr(vACC, 2)}, {vr(cur, 2)}, {vr(vTP, 2)}, {vr(vACC, 2)} op_sel:[{sel},0,0] op_sel_hi:[{sel},1,1]
        v_pk_fma_f32 {vr(vACC + 2, 2)}, {vr(cur, 2)}, {vr(vTP + 2, 2)}, {vr(vACC + 2, 2)} op_sel:[{sel},0,0] op_sel_hi:[{sel},1,1]
        v_pk_fma_f32 {vr(vACC + 4, 2)}, {vr(cur + 4, 2)}, {vr(vTP + 4, 2)}, {vr(vACC + 4, 2)} op_sel:[{sel},0,0] op_sel_hi:[{sel},1,1]
        v_pk_fma_f32 {vr(vACC + 6, 2)}, {vr(cur + 4, 2)}, {vr(vTP + 6, 2)}, {vr(vACC + 6, 2)} op_sel:[{sel},0,0] op_sel_hi:[{sel},1,1]
        s_set_gpr_idx_off
        v_pk_mul_f32 {vr(sn, 2)}, {vr(sn, 2)}, {vr(vE, 2)}
        """)
        if i == 4:
            a("s_waitcnt lgkmcnt(0)")
        if 4 <= i < 12:
            dot(i - 4)
        if i == 12:
            a(f"v_add_u32 v{vKA}, 64, v{vKA}")
        if i == 13:
            a(f"v_add_u32 v{vEA}, 256, v{vEA}")
        if i == 14:
            a(f"v_add_u32 v{vYA}, 256, v{vYA}")
        if i == 15:
            a(f"""
            v_cvt_pk_bf16_f32 v{vA}, v{vAT}, v{vAT + 1}
            v_cvt_pk_bf16_f32 v{vA + 1}, v{vAT + 2}, v{vAT + 3}
            v_mov_b32 v{vKEY}, v{vKEYN}
            v_mov_b32 v{vEF}, v{vEFN}
            v_mov_b32 v{vEF + 1}, v{vEFN + 1}
            """)
        if k == 3:
            a(f"s_sub_u32 s{sN}, s{sN}, 1")
            a("s_cbranch_scc1 Lm_done" if i < 15 else "s_cbranch_scc0 Lm_loop")
    a("Lm_done:")
    if o.loop_barrier:
        a(f"""
        s_cmp_eq_u32 s{sIT}, 0
        s_cbranch_scc1 Lm_done2
        s_barrier
        s_sub_u32 s{sIT}, s{sIT}, 1
        s_branch Lm_done
        Lm_done2:
        """)
    stamp(a, o, 4, ST)
    a(f"""
    s_add_u32 s{sRND}, s{sRND}, {2 * SLOTS}
    s_cmp_ge_u32 s{sRND}, s{sMAX}
    s_cbranch_scc1 Lm_epi
    s_waitcnt vmcnt(0) lgkmcnt(0)
    s_barrier
    v_subrev_u32 v{vREM}, {2 * SLOTS}, v{vREM}
    v_add_u32 v{vREC4}, {8 * SLOTS}, v{vREC4}
    v_add_u32 v{vREC16}, {32 * SLOTS}, v{vREC16}
    s_branch Lm_round
    Lm_epi:
    s_mul_i32 s{sT}, s{sW}, {20 * ROWB}
    s_add_u32 s{sT}, s{sT}, {L_AGG}
    v_lshl_add_u32 v{vT}, v{vLANE}, 2, s{sT}
    s_lshr_b32 s{sTMP}, s{sW}, 2
    s_mul_i32 s{sTMP + 1}, s{sTMP}, 80
    v_lshrrev_b32 v{vT + 1}, 4, v{vLANE}
    v_lshl_add_u32 v{vT + 2}, v{vT + 1}, 2, s{sTMP + 1}
    s_waitcnt lgkmcnt(0)
    """)
    vINV = vAT
    for mt in range(5):
        a(f"ds_read_b32 v{vINV + mt}, v{vT + 2} offset:{L_INV + 16 * mt}")
    for s in range(5):
        acc = vACC + 8 * s
        for r in range(0, 8, 2):
            a(f"v_pk_mul_f32 {vr(acc + r, 2)}, {vr(acc + r, 2)}, {sr(sLN2, 2)}")
        for r in range(4):
            a(f"v_cvt_pk_bf16_f32 v{acc + r}, v{acc + r}, v{acc + 4 + r}")
        a(f"ds_write2_b32 v{vT}, v{acc}, v{acc + 1} offset0:0 offset1:{ROWB // 4}")
        a(f"ds_write2_b32 v{vT}, v{acc + 2}, v{acc + 3} offset0:{2 * ROWB // 4} offset1:{3 * ROWB // 4}")
        if s < 4:
            a(f"v_add_u32 v{vT}, {4 * ROWB}, v{vT}")
    a(f"""
    v_and_b32 v{vT + 3}, 15, v{vLANE}
    v_mul_u32_u24 v{vT}, {ROWB}, v{vT + 3}
    v_lshl_add_u32 v{vT}, v{vT + 1}, 4, v{vT}
    s_mul_i32 s{sTMP + 1}, s{sTMP}, {80 * ROWB}
    s_add_u32 s{sTMP + 1}, s{sTMP + 1}, {L_AGG}
    v_add_u32 v{vT}, s{sTMP + 1}, v{vT}
    s_and_b32 s{sT}, s{sW}, 3
    s_lshl_b32 s{sT}, s{sT}, 8
    s_lshl_b32 s{sTMP + 1}, s{sQ}, 10
    s_add_u32 s{sT}, s{sT}, s{sTMP + 1}
    v_lshl_add_u32 v{vT + 3}, v{vT + 3}, 4, s{sT}
    s_waitcnt vmcnt(0) lgkmcnt(0)
    s_barrier
    """)
    stamp(a, o, 5, ST)
    if o.stamps:
        a("s_waitcnt lgkmcnt(0)")
    def frag(mt, s):
        return (vXB + 16 * mt if mt < 4 else vWR) + 4 * s
    def rd(mt):
        for s in range(4):
            a(f"ds_read_b128 {vr(frag(mt, s), 4)}, v{vT} offset:{16 * ROWB * mt + 64 * s}")
    for mt in range(3):
        rd(mt)
    for mt in range(5):
        a(f"v_lshl_add_u32 v{vINV + mt}, v{vINV + mt}, 18, v{vT + 3}")
    vD = vACC
    def fin(mt):
        d = vD + 8 * mt
        for r in range(4):
            a(f"v_cvt_pk_bf16_f32 v{d + r}, v{d + 2 * r}, v{d + 2 * r + 1}")
        a(f"buffer_store_dwordx4 {vr(d, 4)}, v{vINV + mt}, {sr(sO, 4)}, 0 offen")
    for mt in range(5):
        d = vD + 8 * mt
        pend = min(mt + 3, 5) - mt - 1
        for s in range(4):
            a(f"s_waitcnt lgkmcnt({4 * pend + 3 - s})")
            for t in range(2):
                c = vr(d + 4 * t, 4) if s else "0"
                a(f"v_mfma_f32_16x16x32_bf16 {vr(d + 4 * t, 4)}, {vr(frag(mt, s), 4)}, {vr(vWM + 8 * s + 4 * t, 4)}, {c}")
        if mt + 3 < 5:
            rd(mt + 3)
        if mt:
            fin(mt - 1)
    a("s_nop 7")
    fin(4)
    stamp(a, o, 6, ST)
    if o.stamps:
        a("s_waitcnt vmcnt(0)")
    stamp(a, o, 7, ST)
    stamp_flush(a, o, 8, ST, sWS, 1, vT, sW)
    a("""
    Lm_end:
    s_endpgm
    tfn_main_end:
    """)
    return NV


def generate(o):
    a = Asm()
    ref = open(f"cdna_kernels/{NAME}.s.ref").read().split("\n")
    for ln in ref:
        if ln.startswith("; Override"):
            break
        a.lines.append(ln)
    a.lines.append(f"; @launch kernel=tfn_sort_kernel grid=({NCH},1,1) block=(704,1,1) lds=2816")
    a.lines.append(f"; @launch kernel={NAME}_kernel grid=(256,1,1) block=(512,1,1) lds={L_END}")
    a('.amdgcn_target "amdgcn-amd-amdhsa--gfx950"')
    a(".text")
    gen_sort(a, o)
    nv = gen_main(a, o)
    a('.section .rodata,"a"')
    for kn, v in (("tfn_sort_kernel", 48), (NAME + "_kernel", nv)):
        a(f"""
        .p2align 6
        .amdhsa_kernel {kn}
        .amdhsa_next_free_vgpr {v}
        .amdhsa_next_free_sgpr 102
        .amdhsa_accum_offset {v}
        .amdhsa_group_segment_fixed_size 0
        .amdhsa_kernarg_size 88
        .amdhsa_user_sgpr_count 2
        .amdhsa_user_sgpr_kernarg_segment_ptr 1
        .amdhsa_system_sgpr_workgroup_id_x 1
        .amdhsa_float_denorm_mode_32 3
        .end_amdhsa_kernel
        """)
    return a.text()


if __name__ == "__main__":
    o = Opt()
    out = sys.argv[1]
    for kv in sys.argv[2:]:
        k, v = kv.split("=")
        assert hasattr(o, k), k
        setattr(o, k, int(v))
    open(out, "w").write(generate(o))
```

```python
import struct
import sys

NAME = "gather_scatter__tensor_product_equiv_tfn__graph"
N, E = 10000, 160000
NPROD, CH = 250, 640
XBYTES = N * 1024

WS_TAB = 0
WS_REC = 0x80000
CHB = CH * 20
WS_EPOCH = 0x400000
WS_STAMP = 0x800000

SLOTS = 8

L_DEG, L_BIN, L_MAX, L_ZERO, L_NULL, L_MAP, L_INV = 0, 256, 512, 528, 544, 768, 1024
L_HIST, L_START = 1280, 2304
L_CG, L_WR = 3328, 3584
L_WM = 5632
L_PAY = L_WM + 32768
L_ENT = L_PAY + SLOTS * 512 * 16
ENT_OWN = 1024
L_AGG = L_ENT + ENT_OWN * 8
ROWB = 288
L_END = L_AGG + 160 * ROWB
L_STAGE = L_AGG
assert (256 * 2 * SLOTS + 8 * 16 + 64) * 8 <= L_END - L_ENT
assert L_END <= 163840


def f32(x):
    return struct.unpack("<I", struct.pack("<f", x))[0]


class Opt:
    stamps = 0
    fused = 1
    D = 6
    st_out = "sc1"
    st_k1 = "sc1"
    pf0 = 0
    pf1 = 0
    pf2 = 0
    pf3 = 0
    spin = 1 << 16


class Asm:
    def __init__(self):
        self.lines = []

    def __call__(self, s=""):
        for ln in s.split("\n"):
            ln = ln.strip()
            if not ln:
                continue
            self.lines.append(ln if ln.endswith(":") or ln.startswith(".") or ln.startswith(";") else "    " + ln)

    def text(self):
        return "\n".join(self.lines) + "\n"


def vr(a, n=1):
    return "v%d" % a if n == 1 else "v[%d:%d]" % (a, a + n - 1)


def sr(a, n=1):
    return "s%d" % a if n == 1 else "s[%d:%d]" % (a, a + n - 1)


def wave_scan(a, v):
    for c in ("row_shr:1", "row_shr:2", "row_shr:4", "row_shr:8"):
        a("s_nop 1")
        a(f"v_add_u32_dpp v{v}, v{v}, v{v} {c} row_mask:0xf bank_mask:0xf bound_ctrl:1")
    a("s_nop 1")
    a(f"v_add_u32_dpp v{v}, v{v}, v{v} row_bcast:15 row_mask:0xa bank_mask:0xf")
    a("s_nop 1")
    a(f"v_add_u32_dpp v{v}, v{v}, v{v} row_bcast:31 row_mask:0xc bank_mask:0xf")


sX, sO = 20, 24
sWS, sREC = 28, 30
sQ, sW, sRND, sMAX, sSTART, sN, sOFF, sT = 32, 33, 34, 35, 36, 37, 38, 40
sTAG, sBIG, sPF = 41, 42, 43
sRING = 44
sM = 60
sTMP = 76
sLN2 = 86
sST = 88

vL16, vLANE, vREC4, vREC16, vREM, vONE = 1, 2, 3, 4, 5, 6
vKA, vEA, vYA, vEINC = 7, 8, 9, 10
vKEY, vPE, vPY, vPFA = 11, 12, 13, 14
vPF = 15
vEF, vYN, vA = 16, 20, 22
vAT = 24
vE = 28
vT = 32
vWR = 40
vCG = 48
vTP = 56
vR = 72
vXB = 88
vU = 120
vACC = 152
NV = 192


def stamp(a, o, idx):
    if o.stamps:
        a(f"""
        s_memrealtime {sr(sTMP + 8, 2)}
        s_waitcnt lgkmcnt(0)
        s_mov_b32 s{sST + idx}, s{sTMP + 8}
        """)


def stamp_flush(a, o, n, kern):
    if not o.stamps:
        return
    a(f"""
    s_mov_b64 exec, -1
    s_lshl_b32 s3, s2, 4
    s_add_u32 s3, s3, s{sW}
    s_lshl_b32 s3, s3, 6
    s_add_u32 s3, s3, {WS_STAMP + kern * 0x80000}
    v_mov_b32 v{vT}, s3
    """)
    for i in range(n):
        a(f"v_mov_b32 v{vT + 1}, s{sST + i}")
        a(f"global_store_dword v{vT}, v{vT + 1}, {sr(sWS, 2)} offset:{4 * i}")
        a("s_nop 1")


PF = {"done": 0}


def prefetch(a, k):
    if not k:
        return
    a(f"""
    s_mul_i32 s{sTMP + 4}, s{sPF}, {k * 8192}
    s_add_u32 s{sTMP + 4}, s{sTMP + 4}, {PF["done"] * 262144}
    s_cmp_lt_u32 s{sW}, {k}
    s_cselect_b32 s{sTMP + 4}, s{sTMP + 4}, {XBYTES}
    buffer_load_dword v{vPF}, v{vPFA}, {sr(sX, 4)}, s{sTMP + 4} offen
    """)
    PF["done"] += k


def entry(a, o, kern):
    a(f"""
    s_cmp_ge_u32 s2, 256
    s_cbranch_scc1 L{kern}_end
    """)
    stamp(a, o, 0)
    a(f"""
    s_load_dwordx16 s[4:19], s[0:1], 0
    s_load_dwordx2 {sr(sWS, 2)}, s[0:1], 80
    s_load_dwordx2 {sr(sO, 2)}, s[0:1], 64
    v_lshrrev_b32 v{vT}, 6, v0
    v_and_b32 v{vLANE}, 63, v0
    v_readfirstlane_b32 s{sW}, v{vT}
    v_mov_b32 v{vT}, 0
    v_mov_b32 v{vT + 1}, 0
    v_lshlrev_b32 v{vT + 2}, 3, v0
    ds_write_b64 v{vT + 2}, {vr(vT, 2)}
    v_lshlrev_b32 v{vL16}, 4, v{vLANE}
    v_mov_b32 v{vONE}, 1
    """)


def side_loads(a):
    a(f"""
    s_cmp_lg_u32 s{sW}, 5
    s_cbranch_scc1 Lside_a
    v_lshlrev_b32 v{vT}, 2, v{vLANE}
    global_load_dword v{vTP}, v{vT}, s[14:15]
    global_load_dword v{vTP + 1}, v{vT}, s[14:15] offset:256
    global_load_dword v{vTP + 2}, v{vT}, s[14:15] offset:512
    global_load_dword v{vTP + 3}, v{vT}, s[14:15] offset:768
    Lside_a:
    s_cmp_lg_u32 s{sW}, 6
    s_cbranch_scc1 Lside_b
    v_bfe_u32 v{vT}, v{vLANE}, 3, 2
    v_and_b32 v{vT + 1}, 7, v{vLANE}
    v_lshl_add_u32 v{vT}, v{vT + 1}, 3, v{vT}
    v_lshlrev_b32 v{vT}, 1, v{vT}
    global_load_ushort v{vTP}, v{vT}, s[16:17]
    global_load_ushort v{vTP + 1}, v{vT}, s[16:17] offset:8
    Lside_b:
    """)


def side_finish(a):
    g = vTP + 4
    out = vR
    a(f"""
    s_cmp_lg_u32 s{sW}, 5
    s_cbranch_scc1 Lside_c
    s_mov_b32 s{sT}, {f32(-1.4426950408889634):#x}
    """)
    for k in range(4):
        a(f"v_lshlrev_b32 v{g + k}, 16, v{vTP + k}")
        a(f"v_and_b32 v{g + 4 + k}, 0xffff0000, v{vTP + k}")
    for k in range(8):
        a(f"v_mul_f32 v{g + k}, s{sT}, v{g + k}")
    for h in range(2):
        for p in range(2):
            g0 = g + 4 * h + 2 * p
            hi = out + 4 * h + p
            a(f"""
            v_cvt_pk_bf16_f32 v{hi}, v{g0}, v{g0 + 1}
            v_lshlrev_b32 v{vT}, 16, v{hi}
            v_and_b32 v{vT + 1}, 0xffff0000, v{hi}
            v_sub_f32 v{vT}, v{g0}, v{vT}
            v_sub_f32 v{vT + 1}, v{g0 + 1}, v{vT + 1}
            v_cvt_pk_bf16_f32 v{hi + 2}, v{vT}, v{vT + 1}
            """)
    a(f"""
    ds_write_b128 v{vL16}, {vr(out, 4)} offset:{L_WR}
    ds_write_b128 v{vL16}, {vr(out + 4, 4)} offset:{L_WR + 1024}
    Lside_c:
    s_cmp_lg_u32 s{sW}, 6
    s_cbranch_scc1 Lside_d
    v_lshl_or_b32 v{vTP}, v{vTP + 1}, 16, v{vTP}
    v_lshlrev_b32 v{vT}, 2, v{vLANE}
    ds_write_b32 v{vT}, v{vTP} offset:{L_CG}
    v_mov_b32 v{vT}, {XBYTES}
    v_mov_b32 v{vT + 1}, {L_ZERO}
    v_mov_b32 v{vT + 2}, 0
    ds_write_b64 v{vT + 2}, {vr(vT, 2)} offset:{L_NULL}
    Lside_d:
    """)


vW = vU
vWF = vU + 16


def wmix_loads(a):
    a(f"""
    v_lshrrev_b32 v{vT}, 5, v0
    v_and_b32 v{vT + 1}, 31, v0
    v_lshlrev_b32 v{vT}, 11, v{vT}
    v_lshl_add_u32 v{vT}, v{vT + 1}, 3, v{vT}
    """)
    for j in range(8):
        a(f"global_load_dwordx2 {vr(vW + 2 * j, 2)}, v{vT}, s[18:19] offset:{256 * j}")


def wmix_finish(a):
    a(f"""
    s_mov_b32 s{sTMP}, 0x05040100
    s_mov_b32 s{sTMP + 1}, 0x07060302
    v_bfe_u32 v{vT}, v0, 3, 2
    v_lshrrev_b32 v{vT + 1}, 7, v0
    v_lshlrev_b32 v{vT}, 13, v{vT}
    v_lshl_add_u32 v{vT}, v{vT + 1}, 11, v{vT}
    v_bfe_u32 v{vT + 1}, v0, 5, 2
    v_lshl_add_u32 v{vT}, v{vT + 1}, 8, v{vT}
    v_and_b32 v{vT + 1}, 7, v0
    v_lshl_add_u32 v{vT}, v{vT + 1}, 5, v{vT}
    """)
    for nn in range(2):
        for t in range(2):
            f = vWF + 4 * (2 * nn + t)
            for jj in range(4):
                a(f"v_perm_b32 v{f + jj}, v{vW + 2 * (2 * jj + 1) + nn}, v{vW + 2 * (2 * jj) + nn}, s{sTMP + t}")
            a(f"ds_write_b128 v{vT}, {vr(f, 4)} offset:{L_WM + 1024 * t + 16 * nn}")


def phase_a(a, o):
    vD, vS, vY, vF = vXB, vXB + 2, vXB + 4, vXB + 8
    vQ, vRK, vKK, vC, vSC = vXB + 12, vXB + 14, vXB + 16, vXB + 20, vXB + 24
    fused = o.fused
    st = o.st_k1
    a(f"""
    s_mul_i32 s3, s2, {CH * 4}
    v_lshl_add_u32 v{vT + 3}, v0, 3, s3
    v_lshlrev_b32 v{vT + 4}, 1, v{vT + 3}
    s_cmp_lt_u32 s2, {NPROD}
    s_cselect_b32 s{sT}, 5, 0
    s_cmp_lt_u32 s{sW}, s{sT}
    s_cselect_b32 s{sBIG}, 1, 0
    s_waitcnt lgkmcnt(0)
    s_cbranch_scc0 La_noload
    global_load_dwordx2 {vr(vD, 2)}, v{vT + 3}, s[8:9]
    global_load_dwordx2 {vr(vS, 2)}, v{vT + 3}, s[6:7]
    global_load_dwordx4 {vr(vY, 4)}, v{vT + 4}, s[10:11]
    global_load_dwordx4 {vr(vF, 4)}, v{vT + 4}, s[12:13]
    La_noload:
    """)
    if fused:
        a(f"""
        s_add_u32 s{sREC}, s{sWS}, {WS_EPOCH}
        s_addc_u32 s{sREC + 1}, s{sWS + 1}, 0
        s_load_dword s{sTAG}, {sr(sREC, 2)}, 0
        """)
        side_loads(a)
    a("s_barrier")
    nyoung = 0
    if fused:
        setup_consumer(a, o)
        wmix_loads(a)
        prefetch(a, o.pf0)
        nyoung = 8 + (1 if o.pf0 else 0)
    a(f"""
    s_waitcnt lgkmcnt(0)
    s_add_u32 s{sREC}, s{sWS}, {WS_REC}
    s_addc_u32 s{sREC + 1}, s{sWS + 1}, 0
    """)
    if fused:
        a(f"s_add_u32 s{sTAG}, s{sTAG}, 0x9e3779b9")
    else:
        a(f"s_mov_b32 s{sTAG}, 0")
    a(f"""
    s_cmp_eq_u32 s{sBIG}, 0
    s_cbranch_scc1 La_other
    s_waitcnt vmcnt({3 + nyoung})
    """)
    stamp(a, o, 1)
    for k in range(2):
        a(f"""
        v_and_b32 v{vQ + k}, 255, v{vD + k}
        v_lshlrev_b32 v{vQ + k}, 2, v{vQ + k}
        ds_add_rtn_u32 v{vRK + k}, v{vQ + k}, v{vONE} offset:{L_HIST}
        """)
    a(f"""
    s_waitcnt lgkmcnt(0)
    s_barrier
    ds_read_b128 {vr(vC, 4)}, v{vL16} offset:{L_HIST}
    s_waitcnt vmcnt({2 + nyoung})
    """)
    for k in range(2):
        a(f"""
        v_mul_u32_u24 v{vT}, 13, v{vS + k}
        v_lshrrev_b32 v{vT}, 14, v{vT}
        v_min_u32 v{vT}, 7, v{vT}
        v_bfe_u32 v{vKK + k}, v{vD + k}, 8, 6
        v_lshl_or_b32 v{vKK + k}, v{vT}, 6, v{vKK + k}
        v_lshl_or_b32 v{vKK + k}, v{vS + k}, 10, v{vKK + k}
        """)
    a(f"""
    s_waitcnt lgkmcnt(0)
    v_add_u32 v{vT}, v{vC}, v{vC + 1}
    v_add_u32 v{vT + 1}, v{vT}, v{vC + 2}
    v_add_u32 v{vT + 2}, v{vT + 1}, v{vC + 3}
    v_mov_b32 v{vT + 3}, v{vT + 2}
    """)
    wave_scan(a, vT + 3)
    a(f"""
    v_sub_u32 v{vSC}, v{vT + 3}, v{vT + 2}
    v_add_u32 v{vSC + 1}, v{vSC}, v{vC}
    v_add_u32 v{vSC + 2}, v{vSC}, v{vT}
    v_add_u32 v{vSC + 3}, v{vSC}, v{vT + 1}
    ds_write_b128 v{vL16}, {vr(vSC, 4)} offset:{L_START}
    ds_read_b32 v{vT}, v{vQ} offset:{L_START}
    ds_read_b32 v{vT + 1}, v{vQ + 1} offset:{L_START}
    s_mov_b32 s{sT}, {L_STAGE}
    s_mov_b32 s{sTMP}, {L_STAGE + CH * 16}
    s_waitcnt vmcnt({nyoung})
    """)
    for k in range(2):
        a(f"""
        s_waitcnt lgkmcnt({1 if k == 0 else 2})
        v_add_u32 v{vRK + k}, v{vRK + k}, v{vT + k}
        v_lshl_add_u32 v{vT + 2}, v{vRK + k}, 2, s{sTMP}
        v_lshl_add_u32 v{vT + 3}, v{vRK + k}, 4, s{sT}
        ds_write_b32 v{vT + 2}, v{vKK + k}
        ds_write2_b64 v{vT + 3}, {vr(vY + 2 * k, 2)}, {vr(vF + 2 * k, 2)} offset0:0 offset1:1
        """)
    a("""
    s_branch La_join
    La_other:
    s_barrier
    """)
    if fused:
        a(f"s_waitcnt vmcnt({nyoung})")
        side_finish(a)
    a(f"""
    La_join:
    s_mov_b32 s{sT}, {L_STAGE}
    v_lshl_add_u32 v{vT + 4}, v0, 4, s{sT}
    s_mul_i32 s{sT}, s2, {CHB}
    v_lshl_add_u32 v{vT + 5}, v0, 4, s{sT}
    v_add_u32 v{vT + 6}, 8192, v{vT + 5}
    v_cmp_gt_u32 vcc, {CHB // 16 - 512}, v0
    v_lshlrev_b32 v{vT + 7}, 3, v0
    s_waitcnt lgkmcnt(0)
    s_barrier
    """)
    stamp(a, o, 2)
    a(f"""
    ds_read_b64 {vr(vC, 2)}, v{vT + 7} offset:{L_HIST}
    ds_read_b64 {vr(vC + 2, 2)}, v{vT + 7} offset:{L_START}
    s_cmp_ge_u32 s2, {NPROD}
    s_cbranch_scc1 La_nostore
    ds_read_b128 {vr(vY, 4)}, v{vT + 4}
    s_and_saveexec_b64 {sr(sTMP, 2)}, vcc
    s_cbranch_execz La_one
    ds_read_b128 {vr(vF, 4)}, v{vT + 4} offset:8192
    s_waitcnt lgkmcnt(0)
    global_store_dwordx4 v{vT + 6}, {vr(vF, 4)}, {sr(sREC, 2)} {st}
    La_one:
    s_mov_b64 exec, -1
    s_waitcnt lgkmcnt(0)
    global_store_dwordx4 v{vT + 5}, {vr(vY, 4)}, {sr(sREC, 2)} {st}
    La_nostore:
    """)
    if fused:
        a("s_waitcnt vmcnt(2)")
        a(f"""
        s_cmp_lt_u32 s{sW}, 5
        s_cbranch_scc1 La_w2
        s_waitcnt vmcnt(1)
        La_w2:
        s_cmp_lt_u32 s2, {NPROD}
        s_cbranch_scc1 La_w3
        s_waitcnt vmcnt(0)
        La_w3:
        """)
        prefetch(a, o.pf1)
        wmix_finish(a)
    a(f"""
    s_lshl_b32 s{sT}, s2, 11
    v_lshl_add_u32 v{vT + 4}, v0, 4, s{sT}
    s_waitcnt lgkmcnt(0)
    v_lshl_or_b32 v{vSC}, v{vC}, 16, v{vC + 2}
    v_mov_b32 v{vSC + 1}, s{sTAG}
    v_lshl_or_b32 v{vSC + 2}, v{vC + 1}, 16, v{vC + 3}
    v_mov_b32 v{vSC + 3}, s{sTAG}
    """)
    if fused:
        a(f"""
        s_waitcnt vmcnt({1 if o.pf1 else 0})
        s_barrier
        """)
    stamp(a, o, 3)
    a(f"""
    s_cmp_ge_u32 s{sW}, 2
    s_cbranch_scc1 La_notab
    global_store_dwordx4 v{vT + 4}, {vr(vSC, 4)}, {sr(sWS, 2)} {st}
    La_notab:
    """)


def setup_consumer(a, o):
    a(f"""
    s_and_b32 s{sQ}, s2, 7
    s_lshl_b32 s{sQ}, s{sQ}, 5
    s_lshr_b32 s{sT}, s2, 3
    s_or_b32 s{sQ}, s{sQ}, s{sT}
    s_mov_b32 s{sPF}, s{sT}
    v_lshlrev_b32 v{vPFA}, 7, v0
    s_mov_b32 s{sX}, s4
    s_and_b32 s{sX + 1}, s5, 0xffff
    s_mov_b32 s{sX + 2}, {XBYTES}
    s_mov_b32 s{sX + 3}, 0x20000
    s_and_b32 s{sO + 1}, s{sO + 1}, 0xffff
    s_mov_b32 s{sO + 2}, {XBYTES}
    s_mov_b32 s{sO + 3}, 0x20000
    s_mov_b32 s{sRND}, 0
    s_mov_b32 s{sLN2}, {f32(-0.6931471805599453):#x}
    s_mov_b32 s{sLN2 + 1}, {f32(-0.6931471805599453):#x}
    """)


def gen_sort(a, o):
    a(".p2align 8")
    a(".globl tfn_sort_kernel")
    a(".type tfn_sort_kernel,@function")
    a("tfn_sort_kernel:")
    entry(a, o, "s")
    phase_a(a, o)
    if o.stamps:
        a("s_waitcnt vmcnt(0)")
    stamp(a, o, 4)
    stamp_flush(a, o, 5, 0)
    a("""
    Ls_end:
    s_endpgm
    """)


def gen_main(a, o):
    kn = NAME + "_kernel"
    fused, D = o.fused, o.D
    ld = "sc1" if fused else ""
    a(".p2align 8")
    a(f".globl {kn}")
    a(f".type {kn},@function")
    a(f"{kn}:")
    vPAY = vXB
    vK = vU
    vBA = vU + 8
    vRK = vU + 16
    vMP = vU + 24
    vEN = vT + 6
    entry(a, o, "m")
    if fused:
        phase_a(a, o)
    else:
        a("s_waitcnt lgkmcnt(0)")
        setup_consumer(a, o)
    a(f"""
    s_lshl_b32 s{sT}, s{sQ}, 3
    v_lshrrev_b32 v{vT + 2}, 1, v0
    v_lshl_add_u32 v{vT + 3}, v{vT + 2}, 11, s{sT}
    global_load_dwordx2 {vr(vEN, 2)}, v{vT + 3}, {sr(sWS, 2)} {ld}
    """)
    if not fused:
        a(f"""
        s_add_u32 s{sREC}, s{sWS}, {WS_REC}
        s_addc_u32 s{sREC + 1}, s{sWS + 1}, 0
        s_barrier
        """)
        side_loads(a)
        wmix_loads(a)
    for i in range(40):
        a(f"v_mov_b32 v{vACC + i}, 0")
    a(f"""
    v_mul_u32_u24 v{vREC16}, {CHB}, v{vT + 2}
    v_and_b32 v{vT + 4}, 1, v0
    v_mov_b32 v{vT + 5}, {L_MAX}
    """)
    if fused:
        a(f"""
        s_mov_b32 s{sT}, {o.spin}
        Lm_poll:
        s_waitcnt vmcnt(0)
        v_cmp_ne_u32 vcc, s{sTAG}, v{vEN + 1}
        s_cbranch_vccz Lm_ready
        s_sub_u32 s{sT}, s{sT}, 1
        s_cbranch_scc1 Lm_end
        s_mov_b64 exec, vcc
        global_load_dwordx2 {vr(vEN, 2)}, v{vT + 3}, {sr(sWS, 2)} sc1
        s_branch Lm_poll
        Lm_ready:
        s_mov_b64 exec, -1
        """)
    else:
        a(f"""
        s_waitcnt vmcnt(12)
        s_cmp_eq_u32 s{sW}, 5
        s_cbranch_scc1 Lm_tw
        s_waitcnt vmcnt(10)
        s_cmp_eq_u32 s{sW}, 6
        s_cbranch_scc1 Lm_tw
        s_waitcnt vmcnt(8)
        Lm_tw:
        """)
    stamp(a, o, 4)
    a(f"""
    v_and_b32 v{vT}, 0xffff, v{vEN}
    v_lshrrev_b32 v{vREM}, 16, v{vEN}
    v_add_u32 v{vT}, v{vT}, v{vT + 4}
    v_lshl_add_u32 v{vREC4}, v{vT}, 2, v{vREC16}
    v_add_u32 v{vREC4}, {CH * 16}, v{vREC4}
    v_lshl_add_u32 v{vREC16}, v{vT}, 4, v{vREC16}
    v_cmp_lt_u32 vcc, {2 * SLOTS}, v{vREM}
    s_and_saveexec_b64 {sr(sTMP, 2)}, vcc
    ds_max_u32 v{vT + 5}, v{vREM}
    s_mov_b64 exec, -1
    v_sub_u32 v{vREM}, v{vREM}, v{vT + 4}
    """)
    if not fused:
        a("s_waitcnt vmcnt(0)")
        side_finish(a)
        wmix_finish(a)
        a("s_waitcnt lgkmcnt(0)")
    a("Lm_round:")
    for j in range(SLOTS):
        a(f"v_cmp_lt_i32 {sr(sM + 2 * j, 2)}, {2 * j}, v{vREM}")

    def per_slot(label, body):
        for j in range(SLOTS):
            a(f"s_mov_b64 exec, {sr(sM + 2 * j, 2)}")
            a(f"s_cbranch_execz {label}")
            body(j)
        a(f"{label}:")
        a("s_mov_b64 exec, -1")

    per_slot("Lm_ld", lambda j: a(f"global_load_dword v{vK + j}, v{vREC4}, {sr(sREC, 2)} offset:{8 * j} {ld}"))
    a("s_waitcnt vmcnt(0)")
    stamp(a, o, 5)

    def hist1(j):
        a(f"v_and_b32 v{vBA + j}, 63, v{vK + j}")
        a(f"v_lshlrev_b32 v{vBA + j}, 2, v{vBA + j}")
        a(f"ds_add_u32 v{vBA + j}, v{vONE} offset:{L_DEG}")
        a(f"global_load_dwordx4 {vr(vPAY + 4 * j, 4)}, v{vREC16}, {sr(sREC, 2)} offset:{32 * j} {ld}")
    per_slot("Lm_h1", hist1)
    a(f"""
    s_cmp_lg_u32 s{sRND}, 0
    s_cbranch_scc1 Lm_bins
    v_lshlrev_b32 v{vT + 1}, 2, v{vLANE}
    s_mul_i32 s{sT}, s{sW}, 5
    s_waitcnt lgkmcnt(0)
    s_barrier
    """)
    stamp(a, o, 6)
    a(f"""
    ds_read_b32 v{vT}, v{vT + 1} offset:{L_DEG}
    ds_read_b32 v{vT + 5}, v{vT + 5}
    """)
    prefetch(a, o.pf2)
    a(f"""
    v_sub_u32 v{vT + 2}, 63, v{vLANE}
    s_add_u32 s{sTMP}, s{sT}, 1
    s_add_u32 s{sTMP + 1}, s{sT}, 2
    s_add_u32 s{sTMP + 2}, s{sT}, 3
    s_add_u32 s{sTMP + 3}, s{sT}, 4
    s_waitcnt lgkmcnt(0)
    v_lshl_or_b32 v{vT}, v{vT}, 6, v{vT + 2}
    v_readfirstlane_b32 s{sMAX}, v{vT + 5}
    v_readlane_b32 s{sRING}, v{vT}, s{sT}
    v_readlane_b32 s{sRING + 1}, v{vT}, s{sTMP}
    v_readlane_b32 s{sRING + 2}, v{vT}, s{sTMP + 1}
    v_readlane_b32 s{sRING + 3}, v{vT}, s{sTMP + 2}
    v_readlane_b32 s{sRING + 4}, v{vT}, s{sTMP + 3}
    """)
    for k in range(5):
        a(f"v_cmp_lt_u32 {sr(sTMP + 2 * k, 2)}, s{sRING + k}, v{vT}")
    for k in range(5):
        a(f"s_bcnt1_i32_b64 s{sRING + 8 + k}, {sr(sTMP + 2 * k, 2)}")
    for k in range(5):
        a(f"v_writelane_b32 v{vT + 2}, s{sRING + 8 + k}, {k}")
    a(f"""
    s_mov_b64 exec, 31
    v_lshrrev_b32 v{vT}, 3, v{vT + 2}
    v_and_b32 v{vT + 3}, 7, v{vT + 2}
    v_cmp_lt_u32 vcc, 15, v{vT + 2}
    v_xor_b32 v{vT + 4}, 7, v{vT + 3}
    v_add_u32 v{vT + 5}, s{sT}, v{vLANE}
    v_cndmask_b32 v{vT + 3}, v{vT + 3}, v{vT + 4}, vcc
    v_lshlrev_b32 v{vT + 2}, 5, v{vT + 3}
    v_lshl_or_b32 v{vT + 2}, v{vT}, 19, v{vT + 2}
    v_mad_u32_u24 v{vT + 3}, v{vT + 3}, 5, v{vT}
    v_lshlrev_b32 v{vT + 4}, 2, v{vT + 5}
    v_lshlrev_b32 v{vT + 3}, 2, v{vT + 3}
    ds_write_b32 v{vT + 4}, v{vT + 2} offset:{L_MAP}
    ds_write_b32 v{vT + 3}, v{vT + 5} offset:{L_INV}
    s_mov_b64 exec, -1
    """)
    a(f"""
    v_and_b32 v{vT}, 3, v0
    v_lshlrev_b32 v{vT}, 5, v{vT}
    ds_read_b128 {vr(vWR, 4)}, v{vL16} offset:{L_WR}
    ds_read_b128 {vr(vWR + 4, 4)}, v{vL16} offset:{L_WR + 1024}
    ds_read_b128 {vr(vCG, 4)}, v{vT} offset:{L_CG}
    ds_read_b128 {vr(vCG + 4, 4)}, v{vT} offset:{L_CG + 16}
    s_waitcnt lgkmcnt(4)
    s_barrier
    """)
    prefetch(a, o.pf3)
    a("Lm_bins:")
    stamp(a, o, 7)

    def rdmap(j):
        a(f"ds_read_b32 v{vMP + j}, v{vBA + j} offset:{L_MAP}")
        a(f"v_bfe_u32 v{vBA + j}, v{vK + j}, 6, 3")
        a(f"v_and_b32 v{vK + j}, 0xfffffc00, v{vK + j}")
    per_slot("Lm_mp", rdmap)
    a("s_waitcnt lgkmcnt(0)")

    def hist2(j):
        a(f"v_and_b32 v{vRK + j}, 0xffff, v{vMP + j}")
        a(f"v_lshl_add_u32 v{vBA + j}, v{vBA + j}, 2, v{vRK + j}")
        a(f"ds_add_rtn_u32 v{vRK + j}, v{vBA + j}, v{vONE} offset:{L_BIN}")
        a(f"v_lshrrev_b32 v{vMP + j}, 16, v{vMP + j}")
        a(f"v_or_b32 v{vK + j}, v{vK + j}, v{vMP + j}")
    per_slot("Lm_h2", hist2)
    a(f"""
    v_lshlrev_b32 v{vT + 1}, 2, v{vLANE}
    s_lshl_b32 s{sT}, s{sW}, 3
    s_add_u32 s{sTMP}, s{sT}, 7
    v_lshrrev_b32 v{vT + 3}, 3, v{vLANE}
    v_lshlrev_b32 v{vT + 6}, 4, v0
    v_add_u32 v{vT + 6}, {L_PAY}, v{vT + 6}
    s_waitcnt lgkmcnt(0)
    s_barrier
    """)
    stamp(a, o, 8)
    a(f"""
    ds_read_b32 v{vT}, v{vT + 1} offset:{L_BIN}
    s_waitcnt lgkmcnt(0)
    v_mov_b32 v{vT + 2}, v{vT}
    """)
    wave_scan(a, vT + 2)
    a(f"""
    v_lshl_add_u32 v{vT + 2}, v{vT + 3}, 4, v{vT + 2}
    v_sub_u32 v{vT}, v{vT + 2}, v{vT}
    """)
    for j in range(SLOTS):
        if j:
            a(f"s_cmp_eq_u64 {sr(sM + 2 * j, 2)}, 0")
            a("s_cbranch_scc1 Lm_bp")
        a(f"ds_bpermute_b32 v{vMP + j}, v{vBA + j}, v{vT}")
    a(f"""
    Lm_bp:
    v_readlane_b32 s{sSTART}, v{vT}, s{sT}
    v_readlane_b32 s{sN}, v{vT + 2}, s{sTMP}
    v_readlane_b32 s{sBIG}, v{vT + 2}, 63
    v_mov_b32 v{vT + 4}, {XBYTES}
    v_mov_b32 v{vT + 5}, {L_ZERO}
    s_mov_b32 s{sTMP + 2}, {L_ENT}
    v_add_u32 v{vT + 2}, s{sN}, v{vLANE}
    v_lshl_add_u32 v{vT + 2}, v{vT + 2}, 3, s{sTMP + 2}
    s_cmp_eq_u32 s{sW}, 7
    s_cselect_b64 exec, -1, 0xffff
    ds_write_b64 v{vT + 2}, {vr(vT + 4, 2)}
    s_mov_b64 exec, -1
    s_sub_u32 s{sN}, s{sN}, s{sSTART}
    s_lshl_b32 s{sSTART}, s{sSTART}, 3
    s_add_u32 s{sSTART}, s{sSTART}, {L_ENT}
    v_lshl_add_u32 v{vKA}, v{vLANE}, 3, s{sSTART}
    v_lshrrev_b32 v{vYA}, 2, v{vLANE}
    v_lshl_add_u32 v{vYA}, v{vYA}, 3, s{sSTART}
    v_bfe_u32 v{vT}, v{vLANE}, 3, 2
    v_and_b32 v{vT + 1}, 3, v{vLANE}
    v_lshl_add_u32 v{vT}, v{vT}, 2, v{vT + 1}
    v_lshl_add_u32 v{vEA}, v{vT}, 3, s{sSTART}
    s_waitcnt lgkmcnt(1)
    """)

    def wr(j):
        a(f"v_add_u32 v{vRK + j}, v{vRK + j}, v{vMP + j}")
        a(f"v_lshl_add_u32 v{vRK + j}, v{vRK + j}, 3, s{sTMP + 2}")
        a(f"v_add_u32 v{vMP + j}, {8192 * j}, v{vT + 6}")
        a(f"ds_write2_b32 v{vRK + j}, v{vK + j}, v{vMP + j} offset0:0 offset1:1")
    per_slot("Lm_wr", wr)
    npf = (1 if o.pf2 else 0) + (1 if o.pf3 else 0)
    if npf:
        a(f"""
        s_waitcnt vmcnt({npf})
        s_cmp_eq_u32 s{sRND}, 0
        s_cbranch_scc1 Lm_pw
        s_waitcnt vmcnt(0)
        Lm_pw:
        """)
    else:
        a("s_waitcnt vmcnt(0)")
    per_slot("Lm_wp", lambda j: a(f"ds_write_b128 v{vMP + j}, {vr(vPAY + 4 * j, 4)}"))
    a(f"""
    s_mov_b32 s{sTMP}, 0x0f0f0f0f
    s_mov_b32 s{sTMP + 1}, 0xf0f0f0f0
    v_mov_b32 v{vT}, {L_NULL}
    v_mov_b32 v{vT + 1}, {L_NULL - 32}
    v_mov_b32 v{vT + 2}, 128
    v_cndmask_b32 v{vT}, v{vT}, v{vEA}, {sr(sTMP, 2)}
    v_cndmask_b32 v{vEA}, v{vT + 1}, v{vEA}, {sr(sTMP, 2)}
    v_cndmask_b32 v{vEINC}, 0, v{vT + 2}, {sr(sTMP, 2)}
    s_waitcnt lgkmcnt(0)
    s_barrier
    """)
    stamp(a, o, 9)
    vK0, vPE0, vEF0 = vT + 1, vT + 2, vTP
    a(f"""
    ds_read_b32 v{vK0}, v{vKA}
    ds_read_b32 v{vPE0}, v{vT} offset:4
    ds_read_b32 v{vPE}, v{vEA} offset:{4 + 32}
    ds_read_b32 v{vPY}, v{vYA} offset:4
    ds_read_b32 v{vKEY}, v{vKA} offset:{8 * D}
    v_lshlrev_b32 v{vT + 3}, 2, v{vLANE}
    v_mov_b32 v{vT + 4}, 0
    ds_write_b32 v{vT + 3}, v{vT + 4} offset:{L_BIN}
    s_add_u32 s{sN}, s{sN}, 3
    s_lshr_b32 s{sN}, s{sN}, 2
    s_cmp_eq_u32 s{sN}, 0
    s_cbranch_scc1 Lm_done
    s_sub_u32 s{sN}, s{sN}, 1
    s_waitcnt lgkmcnt(2)
    ds_read2_b64 {vr(vEF0, 4)}, v{vPE0} offset0:1 offset1:1
    ds_read_b64 {vr(vYN, 2)}, v{vPY}
    ds_read2_b64 {vr(vEF, 4)}, v{vPE} offset0:1 offset1:1
    """)
    for i in range(D + 2):
        a(f"v_readlane_b32 s{sRING + i}, v{vK0}, {i}")
    for i in range(D):
        a(f"s_and_b32 s{sOFF}, s{sRING + i}, 0xfffffc00")
        a(f"buffer_load_dwordx4 {vr(vXB + 4 * i, 4)}, v{vL16}, {sr(sX, 4)}, s{sOFF} offen")
    a(f"s_and_b32 s{sOFF}, s{sRING + D}, 0xfffffc00")
    a(f"s_and_b32 s{sOFF + 1}, s{sRING + D + 1}, 0xfffffc00")

    def mz(h, ef):
        a(f"v_mfma_f32_32x32x16_bf16 {vr(vU + 16 * h, 16)}, {vr(ef, 4)}, {vr(vWR + 4 * h, 4)}, 0")

    def dot(n):
        i, p = n & 3, n >> 2
        c = f"v{vAT + i}" if p else "0"
        a(f"v_dot2_f32_bf16 v{vAT + i}, v{vYN + p}, v{vCG + 2 * i + p}, {c}")

    a("s_waitcnt lgkmcnt(0)")
    mz(0, vEF0)
    mz(1, vEF0)
    for n in range(8):
        dot(n)
    a(f"v_add_u32 v{vEA}, v{vEINC}, v{vEA}")
    a(f"v_add_u32 v{vYA}, 128, v{vYA}")
    a(f"v_add_u32 v{vKA}, 128, v{vKA}")
    a(f"v_cvt_pk_bf16_f32 v{vA}, v{vAT}, v{vAT + 1}")
    a(f"v_cvt_pk_bf16_f32 v{vA + 1}, v{vAT + 2}, v{vAT + 3}")
    tmp = vTP + 8
    for r in range(8):
        a(f"v_exp_f32 v{tmp + r}, v{vU + 16 * (r >> 2) + (r & 3)}")
    a("s_nop 0")
    for r in range(0, 8, 2):
        a(f"v_pk_add_f32 {vr(tmp + r, 2)}, {vr(tmp + r, 2)}, 1.0 op_sel_hi:[1,0]")
    for r in range(8):
        a(f"v_rcp_f32 v{tmp + r}, v{tmp + r}")
    a("s_nop 0")
    for r in range(0, 8, 2):
        a(f"v_pk_mul_f32 {vr(vR + r, 2)}, {vr(vU + 16 * (r >> 2) + (r & 3), 2)}, {vr(tmp + r, 2)}")
    mz(0, vEF)
    a("s_nop 7")
    stamp(a, o, 10)
    a(".p2align 6")
    a("Lm_loop:")
    for P in range(8):
        g, hf = P >> 1, P & 1
        i0 = 2 * P
        sn = vU + 16 * hf + 4 * g
        dn = vR + 8 * ((g + 1) & 1) + 4 * hf
        cur = vR + 8 * (g & 1) + 2 * hf
        a(f"s_waitcnt vmcnt({D - 2})")
        for k in range(2):
            a(f"buffer_load_dwordx4 {vr(vXB + 4 * ((i0 + k + D) & 7), 4)}, v{vL16}, {sr(sX, 4)}, s{sOFF + k} offen")
        for k in range(2):
            xb = vXB + 4 * ((i0 + k) & 7)
            for h in range(2):
                a(f"v_mfma_f32_4x4x4_16b_bf16 {vr(vTP + 8 * k + 4 * h, 4)}, {vr(vA, 2)}, {vr(xb + 2 * h, 2)}, 0 cbsz:4 abid:{i0 + k}")
                a(f"v_exp_f32 v{vE + 2 * k + h}, v{sn + 2 * k + h}")
        if P == 0:
            a("s_waitcnt lgkmcnt(0)")
        for k in range(2):
            a(f"v_readlane_b32 s{sRING + ((i0 + k + D + 2) & 15)}, v{vKEY}, {i0 + k + 2}")
        for k in range(2):
            a(f"v_pk_add_f32 {vr(vE + 2 * k, 2)}, {vr(vE + 2 * k, 2)}, 1.0 op_sel_hi:[1,0]")
        if P == 0:
            mz(1, vEF)
        if P == 7:
            mz(0, vEF)
        for r in range(4):
            a(f"v_rcp_f32 v{vE + r}, v{vE + r}")
        if P == 0:
            a(f"ds_read_b32 v{vPY}, v{vYA} offset:4")
            a(f"ds_read_b32 v{vPE}, v{vEA} offset:{4 + 32}")
        if P == 1:
            a("s_waitcnt lgkmcnt(0)")
            a(f"ds_read_b64 {vr(vYN, 2)}, v{vPY}")
            a(f"ds_read2_b64 {vr(vEF, 4)}, v{vPE} offset0:1 offset1:1")
        if P == 7:
            a(f"ds_read_b32 v{vKEY}, v{vKA} offset:{8 * D}")
        for k in range(2):
            a(f"s_and_b32 s{sOFF + k}, s{sRING + ((i0 + k + D + 2) & 15)}, 0xfffffc00")
        for k in range(2):
            a(f"s_set_gpr_idx_on s{sRING + i0}, 0xc" if k == 0 else f"s_set_gpr_idx_idx s{sRING + i0 + 1}")
            for q in range(4):
                a(f"v_pk_fma_f32 {vr(vACC + 2 * q, 2)}, {vr(cur + 4 * (q >> 1), 2)}, {vr(vTP + 8 * k + 2 * q, 2)}, "
                  f"{vr(vACC + 2 * q, 2)} op_sel:[{k},0,0] op_sel_hi:[{k},1,1]")
        a("s_set_gpr_idx_off")
        for k in range(2):
            a(f"v_pk_mul_f32 {vr(dn + 2 * k, 2)}, {vr(sn + 2 * k, 2)}, {vr(vE + 2 * k, 2)}")
        if P == 1:
            a(f"v_add_u32 v{vEA}, v{vEINC}, v{vEA}")
            a(f"v_add_u32 v{vYA}, 128, v{vYA}")
        if P == 2:
            a("s_waitcnt lgkmcnt(0)")
        if 2 <= P < 6:
            dot(2 * (P - 2))
            dot(2 * (P - 2) + 1)
        if P == 7:
            a(f"""
            v_cvt_pk_bf16_f32 v{vA}, v{vAT}, v{vAT + 1}
            v_cvt_pk_bf16_f32 v{vA + 1}, v{vAT + 2}, v{vAT + 3}
            v_add_u32 v{vKA}, 128, v{vKA}
            """)
        if hf:
            a(f"s_sub_u32 s{sN}, s{sN}, 1")
            a("s_cbranch_scc1 Lm_done" if P < 7 else "s_cbranch_scc0 Lm_loop")
    a("Lm_done:")
    stamp(a, o, 11)
    vWM = vU
    a(f"""
    s_add_u32 s{sRND}, s{sRND}, {2 * SLOTS}
    s_cmp_ge_u32 s{sRND}, s{sMAX}
    s_cbranch_scc1 Lm_epi
    s_waitcnt vmcnt(0) lgkmcnt(0)
    s_barrier
    v_subrev_u32 v{vREM}, {2 * SLOTS}, v{vREM}
    v_add_u32 v{vREC4}, {8 * SLOTS}, v{vREC4}
    v_add_u32 v{vREC16}, {32 * SLOTS}, v{vREC16}
    s_branch Lm_round
    Lm_epi:
    s_cmp_le_u32 s{sBIG}, {ENT_OWN - 64}
    s_cbranch_scc1 Lm_small
    s_waitcnt lgkmcnt(0)
    s_barrier
    Lm_small:
    s_mul_i32 s{sT}, s{sW}, {20 * ROWB}
    s_add_u32 s{sT}, s{sT}, {L_AGG}
    v_lshl_add_u32 v{vT}, v{vLANE}, 2, s{sT}
    s_lshr_b32 s{sTMP}, s{sW}, 2
    s_mul_i32 s{sTMP + 1}, s{sTMP}, 80
    v_lshrrev_b32 v{vT + 1}, 4, v{vLANE}
    v_lshl_add_u32 v{vT + 2}, v{vT + 1}, 2, s{sTMP + 1}
    s_and_b32 s{sTMP + 2}, s{sW}, 3
    s_lshl_b32 s{sTMP + 3}, s{sTMP + 2}, 13
    v_add_u32 v{vT + 4}, s{sTMP + 3}, v{vL16}
    """)
    vINV = vAT
    for s in range(5):
        acc = vACC + 8 * s
        for r in range(0, 8, 2):
            a(f"v_pk_mul_f32 {vr(acc + r, 2)}, {vr(acc + r, 2)}, {sr(sLN2, 2)}")
        for r in range(4):
            a(f"v_cvt_pk_bf16_f32 v{acc + r}, v{acc + r}, v{acc + 4 + r}")
        a(f"ds_write2_b32 v{vT}, v{acc}, v{acc + 1} offset0:0 offset1:{ROWB // 4}")
        a(f"ds_write2_b32 v{vT}, v{acc + 2}, v{acc + 3} offset0:{2 * ROWB // 4} offset1:{3 * ROWB // 4}")
        if s < 4:
            a(f"v_add_u32 v{vT}, {4 * ROWB}, v{vT}")
    a("s_waitcnt lgkmcnt(0)")
    for mt in range(5):
        a(f"ds_read_b32 v{vINV + mt}, v{vT + 2} offset:{L_INV + 16 * mt}")
    for i in range(8):
        a(f"ds_read_b128 {vr(vWM + 4 * i, 4)}, v{vT + 4} offset:{L_WM + 1024 * i}")
    a(f"""
    v_and_b32 v{vT + 3}, 15, v{vLANE}
    v_mul_u32_u24 v{vT}, {ROWB}, v{vT + 3}
    v_lshl_add_u32 v{vT}, v{vT + 1}, 4, v{vT}
    s_mul_i32 s{sTMP + 1}, s{sTMP}, {80 * ROWB}
    s_add_u32 s{sTMP + 1}, s{sTMP + 1}, {L_AGG}
    v_add_u32 v{vT}, s{sTMP + 1}, v{vT}
    s_lshl_b32 s{sT}, s{sTMP + 2}, 8
    s_lshl_b32 s{sTMP + 1}, s{sQ}, 10
    s_add_u32 s{sT}, s{sT}, s{sTMP + 1}
    v_lshl_add_u32 v{vT + 3}, v{vT + 3}, 4, s{sT}
    s_waitcnt vmcnt(0)
    s_barrier
    """)
    a("s_waitcnt lgkmcnt(0)")
    stamp(a, o, 12)

    def frag(mt, s):
        return vWR + 16 * mt + 4 * s

    def rd(mt):
        for s in range(4):
            a(f"ds_read_b128 {vr(frag(mt, s), 4)}, v{vT} offset:{16 * ROWB * mt + 64 * s}")
    for mt in range(3):
        rd(mt)
    for mt in range(5):
        a(f"v_lshl_add_u32 v{vINV + mt}, v{vINV + mt}, 18, v{vT + 3}")
    vD = vACC

    def fin(mt):
        d = vD + 8 * mt
        for r in range(4):
            a(f"v_cvt_pk_bf16_f32 v{d + r}, v{d + 2 * r}, v{d + 2 * r + 1}")
        a(f"buffer_store_dwordx4 {vr(d, 4)}, v{vINV + mt}, {sr(sO, 4)}, 0 offen {o.st_out}")
    for mt in range(5):
        d = vD + 8 * mt
        pend = min(mt + 3, 5) - mt - 1
        for s in range(4):
            a(f"s_waitcnt lgkmcnt({4 * pend + 3 - s})")
            for t in range(2):
                c = vr(d + 4 * t, 4) if s else "0"
                a(f"v_mfma_f32_16x16x32_bf16 {vr(d + 4 * t, 4)}, {vr(frag(mt, s), 4)}, {vr(vWM + 8 * s + 4 * t, 4)}, {c}")
        if mt + 3 < 5:
            rd(mt + 3)
        if mt:
            fin(mt - 1)
    a("s_nop 7")
    fin(4)
    if fused:
        a(f"""
        s_or_b32 s{sT}, s2, s{sW}
        s_cmp_lg_u32 s{sT}, 0
        s_cbranch_scc1 Lm_noep
        v_mov_b32 v{vT}, {WS_EPOCH}
        v_mov_b32 v{vT + 1}, s{sTAG}
        s_mov_b64 exec, 1
        global_store_dword v{vT}, v{vT + 1}, {sr(sWS, 2)} sc1
        Lm_noep:
        """)
    if o.stamps:
        a("s_waitcnt vmcnt(0)")
    stamp(a, o, 13)
    stamp_flush(a, o, 14, 1)
    a("""
    Lm_end:
    s_endpgm
    """)


def generate(o):
    a = Asm()
    ref = open(f"cdna_kernels/{NAME}.s.ref").read().split("\n")
    for ln in ref:
        if ln.startswith("; Override"):
            break
        a.lines.append(ln)
    kerns = []
    if not o.fused:
        a.lines.append(f"; @launch kernel=tfn_sort_kernel grid=(256,1,1) block=(512,1,1) lds={L_STAGE + CHB}")
        kerns.append(("tfn_sort_kernel", NV))
    if o.fused and not o.stamps:
        a.lines.append(f"; @launch grid=(256,1,1) block=(512,1,1) lds={L_END}")
    else:
        a.lines.append(f"; @launch kernel={NAME}_kernel grid=(256,1,1) block=(512,1,1) lds={L_END}")
    kerns.append((NAME + "_kernel", NV))
    if o.stamps:
        a.lines.append("; @launch kernel=diag_end_kernel grid=(1,1,1) block=(64,1,1) lds=0")
    a('.amdgcn_target "amdgcn-amd-amdhsa--gfx950"')
    a(".text")
    if not o.fused:
        gen_sort(a, o)
    gen_main(a, o)
    if o.stamps:
        kerns.append(("diag_end_kernel", 8))
        a(f"""
        .p2align 8
        .globl diag_end_kernel
        .type diag_end_kernel,@function
        diag_end_kernel:
        s_memrealtime s[8:9]
        s_load_dwordx2 s[4:5], s[0:1], 80
        v_mov_b32 v1, {WS_STAMP + 2 * 0x80000}
        s_waitcnt lgkmcnt(0)
        v_mov_b32 v2, s8
        global_store_dword v1, v2, s[4:5]
        s_endpgm
        """)
    a('.section .rodata,"a"')
    for kn, v in kerns:
        a(f"""
        .p2align 6
        .amdhsa_kernel {kn}
        .amdhsa_next_free_vgpr {v}
        .amdhsa_next_free_sgpr 102
        .amdhsa_accum_offset {v}
        .amdhsa_group_segment_fixed_size 0
        .amdhsa_kernarg_size 88
        .amdhsa_user_sgpr_count 2
        .amdhsa_user_sgpr_kernarg_segment_ptr 1
        .amdhsa_system_sgpr_workgroup_id_x 1
        .amdhsa_float_denorm_mode_32 3
        .end_amdhsa_kernel
        """)
    return a.text()


if __name__ == "__main__":
    o = Opt()
    out = sys.argv[1]
    for kv in sys.argv[2:]:
        k, v = kv.split("=")
        assert hasattr(o, k), k
        setattr(o, k, int(v) if v.lstrip("-").isdigit() else v.replace("+", " "))
    open(out, "w").write(generate(o))
```

```python
import struct
import sys

NAME = "gather_scatter__tensor_product_equiv_tfn__graph"
N, E = 10000, 160000
NPROD, CH = 250, 640
XBYTES = N * 1024

WS_TAB = 0
WS_REC = 0x80000
CHB = CH * 20
WS_EPOCH = 0x400000
WS_STAMP = 0x800000

SLOTS = 8

L_DEG, L_BIN, L_MAX, L_ZERO, L_NULL, L_MAP, L_INV = 0, 256, 512, 528, 544, 768, 1024
L_HIST, L_START = 1280, 2304
L_CG, L_WR = 3328, 3584
L_WM = 5632
L_PAY = L_WM + 32768
L_ENT = L_PAY + SLOTS * 512 * 16
ENT_OWN = 1024
L_AGG = L_ENT + ENT_OWN * 8
ROWB = 288
L_END = L_AGG + 160 * ROWB
L_STAGE = L_AGG
assert (256 * 2 * SLOTS + 8 * 16 + 64) * 8 <= L_END - L_ENT
assert L_END <= 163840


def f32(x):
    return struct.unpack("<I", struct.pack("<f", x))[0]


class Opt:
    stamps = 0
    fused = 1
    D = 6
    st_out = "sc1"
    st_k1 = "sc1"
    pf0 = 0
    pf1 = 0
    pf2 = 0
    pf3 = 0
    spin = 1 << 16
    dbgwg = 0


class Asm:
    def __init__(self):
        self.lines = []

    def __call__(self, s=""):
        for ln in s.split("\n"):
            ln = ln.strip()
            if not ln:
                continue
            self.lines.append(ln if ln.endswith(":") or ln.startswith(".") or ln.startswith(";") else "    " + ln)

    def text(self):
        return "\n".join(self.lines) + "\n"


def vr(a, n=1):
    return "v%d" % a if n == 1 else "v[%d:%d]" % (a, a + n - 1)


def sr(a, n=1):
    return "s%d" % a if n == 1 else "s[%d:%d]" % (a, a + n - 1)


def wave_scan(a, v):
    for c in ("row_shr:1", "row_shr:2", "row_shr:4", "row_shr:8"):
        a("s_nop 1")
        a(f"v_add_u32_dpp v{v}, v{v}, v{v} {c} row_mask:0xf bank_mask:0xf bound_ctrl:1")
    a("s_nop 1")
    a(f"v_add_u32_dpp v{v}, v{v}, v{v} row_bcast:15 row_mask:0xa bank_mask:0xf")
    a("s_nop 1")
    a(f"v_add_u32_dpp v{v}, v{v}, v{v} row_bcast:31 row_mask:0xc bank_mask:0xf")


sX, sO = 20, 24
sWS, sREC = 28, 30
sQ, sW, sRND, sMAX, sSTART, sN, sOFF, sT = 32, 33, 34, 35, 36, 37, 38, 40
sTAG, sBIG, sPF = 41, 42, 43
sRING = 44
sM = 60
sTMP = 76
sLN2 = 86
sST = 88

vL16, vLANE, vREC4, vREC16, vREM, vONE = 1, 2, 3, 4, 5, 6
vKA, vEA, vYA, vEINC = 7, 8, 9, 10
vKEY, vPE, vPY, vPFA = 11, 12, 13, 14
vPF = 15
vEF, vYN, vA = 16, 20, 22
vAT = 24
vE = 28
vT = 32
vWR = 40
vCG = 48
vTP = 56
vR = 72
vXB = 88
vU = 120
vACC = 152
NV = 192


def stamp(a, o, idx):
    if o.stamps:
        a(f"""
        s_memrealtime {sr(sTMP + 8, 2)}
        s_waitcnt lgkmcnt(0)
        s_mov_b32 s{sST + idx}, s{sTMP + 8}
        """)


def stamp_flush(a, o, n, kern):
    if not o.stamps:
        return
    if o.stamps == 2:
        a(f"""
        s_mov_b64 exec, -1
        s_cmp_lg_u32 s2, {o.dbgwg}
        s_cbranch_scc1 Lm_end
        s_cmp_lg_u32 s{sW}, 0
        s_cbranch_scc1 Lm_end
        s_load_dwordx2 s[4:5], s[0:1], 72
        v_mov_b32 v{vT}, 0
        s_waitcnt lgkmcnt(0)
        """)
        for i in range(n):
            a(f"s_sub_u32 s3, s{sST + i}, s{sST}")
            a(f"v_mov_b32 v{vT + 1}, s3")
            a(f"global_store_dword v{vT}, v{vT + 1}, s[4:5] offset:{4 * i}")
            a("s_nop 1")
        return
    a(f"""
    s_mov_b64 exec, -1
    s_lshl_b32 s3, s2, 4
    s_add_u32 s3, s3, s{sW}
    s_lshl_b32 s3, s3, 6
    s_add_u32 s3, s3, {WS_STAMP + kern * 0x80000}
    v_mov_b32 v{vT}, s3
    """)
    for i in range(n):
        a(f"v_mov_b32 v{vT + 1}, s{sST + i}")
        a(f"global_store_dword v{vT}, v{vT + 1}, {sr(sWS, 2)} offset:{4 * i}")
        a("s_nop 1")


PF = {"done": 0}


def prefetch(a, k):
    if not k:
        return
    a(f"""
    s_mul_i32 s{sTMP + 4}, s{sPF}, {k * 8192}
    s_add_u32 s{sTMP + 4}, s{sTMP + 4}, {PF["done"] * 262144}
    s_cmp_lt_u32 s{sW}, {k}
    s_cselect_b32 s{sTMP + 4}, s{sTMP + 4}, {XBYTES}
    buffer_load_dword v{vPF}, v{vPFA}, {sr(sX, 4)}, s{sTMP + 4} offen
    """)
    PF["done"] += k


def entry(a, o, kern):
    a(f"""
    s_cmp_ge_u32 s2, 256
    s_cbranch_scc1 L{kern}_end
    """)
    stamp(a, o, 0)
    a(f"""
    s_load_dwordx16 s[4:19], s[0:1], 0
    s_load_dwordx2 {sr(sWS, 2)}, s[0:1], 80
    s_load_dwordx2 {sr(sO, 2)}, s[0:1], 64
    v_lshrrev_b32 v{vT}, 6, v0
    v_and_b32 v{vLANE}, 63, v0
    v_readfirstlane_b32 s{sW}, v{vT}
    v_mov_b32 v{vT}, 0
    v_mov_b32 v{vT + 1}, 0
    v_lshlrev_b32 v{vT + 2}, 3, v0
    ds_write_b64 v{vT + 2}, {vr(vT, 2)}
    v_lshlrev_b32 v{vL16}, 4, v{vLANE}
    v_mov_b32 v{vONE}, 1
    """)


def side_loads(a):
    a(f"""
    s_cmp_lg_u32 s{sW}, 5
    s_cbranch_scc1 Lside_a
    v_lshlrev_b32 v{vT}, 2, v{vLANE}
    global_load_dword v{vTP}, v{vT}, s[14:15]
    global_load_dword v{vTP + 1}, v{vT}, s[14:15] offset:256
    global_load_dword v{vTP + 2}, v{vT}, s[14:15] offset:512
    global_load_dword v{vTP + 3}, v{vT}, s[14:15] offset:768
    Lside_a:
    s_cmp_lg_u32 s{sW}, 6
    s_cbranch_scc1 Lside_b
    v_bfe_u32 v{vT}, v{vLANE}, 3, 2
    v_and_b32 v{vT + 1}, 7, v{vLANE}
    v_lshl_add_u32 v{vT}, v{vT + 1}, 3, v{vT}
    v_lshlrev_b32 v{vT}, 1, v{vT}
    global_load_ushort v{vTP}, v{vT}, s[16:17]
    global_load_ushort v{vTP + 1}, v{vT}, s[16:17] offset:8
    Lside_b:
    """)


def side_finish(a):
    g = vTP + 4
    out = vR
    a(f"""
    s_cmp_lg_u32 s{sW}, 5
    s_cbranch_scc1 Lside_c
    s_mov_b32 s{sT}, {f32(-1.4426950408889634):#x}
    """)
    for k in range(4):
        a(f"v_lshlrev_b32 v{g + k}, 16, v{vTP + k}")
        a(f"v_and_b32 v{g + 4 + k}, 0xffff0000, v{vTP + k}")
    for k in range(8):
        a(f"v_mul_f32 v{g + k}, s{sT}, v{g + k}")
    for h in range(2):
        for p in range(2):
            g0 = g + 4 * h + 2 * p
            hi = out + 4 * h + p
            a(f"""
            v_cvt_pk_bf16_f32 v{hi}, v{g0}, v{g0 + 1}
            v_lshlrev_b32 v{vT}, 16, v{hi}
            v_and_b32 v{vT + 1}, 0xffff0000, v{hi}
            v_sub_f32 v{vT}, v{g0}, v{vT}
            v_sub_f32 v{vT + 1}, v{g0 + 1}, v{vT + 1}
            v_cvt_pk_bf16_f32 v{hi + 2}, v{vT}, v{vT + 1}
            """)
    a(f"""
    ds_write_b128 v{vL16}, {vr(out, 4)} offset:{L_WR}
    ds_write_b128 v{vL16}, {vr(out + 4, 4)} offset:{L_WR + 1024}
    Lside_c:
    s_cmp_lg_u32 s{sW}, 6
    s_cbranch_scc1 Lside_d
    v_lshl_or_b32 v{vTP}, v{vTP + 1}, 16, v{vTP}
    v_lshlrev_b32 v{vT}, 2, v{vLANE}
    ds_write_b32 v{vT}, v{vTP} offset:{L_CG}
    v_mov_b32 v{vT}, {XBYTES}
    v_mov_b32 v{vT + 1}, {L_ZERO}
    v_mov_b32 v{vT + 2}, 0
    ds_write_b64 v{vT + 2}, {vr(vT, 2)} offset:{L_NULL}
    Lside_d:
    """)


vW = vU
vWF = vU + 16


def wmix_loads(a):
    a(f"""
    v_lshrrev_b32 v{vT}, 5, v0
    v_and_b32 v{vT + 1}, 31, v0
    v_lshlrev_b32 v{vT}, 11, v{vT}
    v_lshl_add_u32 v{vT}, v{vT + 1}, 3, v{vT}
    """)
    for j in range(8):
        a(f"global_load_dwordx2 {vr(vW + 2 * j, 2)}, v{vT}, s[18:19] offset:{256 * j}")


def wmix_finish(a):
    a(f"""
    s_mov_b32 s{sTMP}, 0x05040100
    s_mov_b32 s{sTMP + 1}, 0x07060302
    v_bfe_u32 v{vT}, v0, 3, 2
    v_lshrrev_b32 v{vT + 1}, 7, v0
    v_lshlrev_b32 v{vT}, 13, v{vT}
    v_lshl_add_u32 v{vT}, v{vT + 1}, 11, v{vT}
    v_bfe_u32 v{vT + 1}, v0, 5, 2
    v_lshl_add_u32 v{vT}, v{vT + 1}, 8, v{vT}
    v_and_b32 v{vT + 1}, 7, v0
    v_lshl_add_u32 v{vT}, v{vT + 1}, 5, v{vT}
    """)
    for nn in range(2):
        for t in range(2):
            f = vWF + 4 * (2 * nn + t)
            for jj in range(4):
                a(f"v_perm_b32 v{f + jj}, v{vW + 2 * (2 * jj + 1) + nn}, v{vW + 2 * (2 * jj) + nn}, s{sTMP + t}")
            a(f"ds_write_b128 v{vT}, {vr(f, 4)} offset:{L_WM + 1024 * t + 16 * nn}")


def phase_a(a, o):
    vD, vS, vY, vF = vXB, vXB + 2, vXB + 4, vXB + 8
    vQ, vRK, vKK, vC, vSC = vXB + 12, vXB + 14, vXB + 16, vXB + 20, vXB + 24
    fused = o.fused
    st = o.st_k1
    a(f"""
    s_mul_i32 s3, s2, {CH * 4}
    v_lshl_add_u32 v{vT + 3}, v0, 3, s3
    v_lshlrev_b32 v{vT + 4}, 1, v{vT + 3}
    s_cmp_lt_u32 s2, {NPROD}
    s_cselect_b32 s{sT}, 5, 0
    s_cmp_lt_u32 s{sW}, s{sT}
    s_cselect_b32 s{sBIG}, 1, 0
    s_waitcnt lgkmcnt(0)
    s_cbranch_scc0 La_noload
    global_load_dwordx2 {vr(vD, 2)}, v{vT + 3}, s[8:9]
    global_load_dwordx2 {vr(vS, 2)}, v{vT + 3}, s[6:7]
    global_load_dwordx4 {vr(vY, 4)}, v{vT + 4}, s[10:11]
    global_load_dwordx4 {vr(vF, 4)}, v{vT + 4}, s[12:13]
    La_noload:
    """)
    if fused:
        a(f"""
        s_add_u32 s{sREC}, s{sWS}, {WS_EPOCH}
        s_addc_u32 s{sREC + 1}, s{sWS + 1}, 0
        s_load_dword s{sTAG}, {sr(sREC, 2)}, 0
        """)
        side_loads(a)
    a("s_barrier")
    nyoung = 0
    if fused:
        setup_consumer(a, o)
        wmix_loads(a)
        prefetch(a, o.pf0)
        nyoung = 8 + (1 if o.pf0 else 0)
    a(f"""
    s_waitcnt lgkmcnt(0)
    s_add_u32 s{sREC}, s{sWS}, {WS_REC}
    s_addc_u32 s{sREC + 1}, s{sWS + 1}, 0
    """)
    if fused:
        a(f"s_add_u32 s{sTAG}, s{sTAG}, 0x9e3779b9")
    else:
        a(f"s_mov_b32 s{sTAG}, 0")
    a(f"""
    s_cmp_eq_u32 s{sBIG}, 0
    s_cbranch_scc1 La_other
    s_waitcnt vmcnt({3 + nyoung})
    """)
    stamp(a, o, 1)
    for k in range(2):
        a(f"""
        v_and_b32 v{vQ + k}, 255, v{vD + k}
        v_lshlrev_b32 v{vQ + k}, 2, v{vQ + k}
        ds_add_rtn_u32 v{vRK + k}, v{vQ + k}, v{vONE} offset:{L_HIST}
        """)
    a(f"""
    s_waitcnt lgkmcnt(0)
    s_barrier
    ds_read_b128 {vr(vC, 4)}, v{vL16} offset:{L_HIST}
    s_waitcnt vmcnt({2 + nyoung})
    """)
    for k in range(2):
        a(f"""
        v_mul_u32_u24 v{vT}, 13, v{vS + k}
        v_lshrrev_b32 v{vT}, 14, v{vT}
        v_min_u32 v{vT}, 7, v{vT}
        v_bfe_u32 v{vKK + k}, v{vD + k}, 8, 6
        v_lshl_or_b32 v{vKK + k}, v{vT}, 6, v{vKK + k}
        v_lshl_or_b32 v{vKK + k}, v{vS + k}, 10, v{vKK + k}
        """)
    a(f"""
    s_waitcnt lgkmcnt(0)
    v_add_u32 v{vT}, v{vC}, v{vC + 1}
    v_add_u32 v{vT + 1}, v{vT}, v{vC + 2}
    v_add_u32 v{vT + 2}, v{vT + 1}, v{vC + 3}
    v_mov_b32 v{vT + 3}, v{vT + 2}
    """)
    wave_scan(a, vT + 3)
    a(f"""
    v_sub_u32 v{vSC}, v{vT + 3}, v{vT + 2}
    v_add_u32 v{vSC + 1}, v{vSC}, v{vC}
    v_add_u32 v{vSC + 2}, v{vSC}, v{vT}
    v_add_u32 v{vSC + 3}, v{vSC}, v{vT + 1}
    ds_write_b128 v{vL16}, {vr(vSC, 4)} offset:{L_START}
    ds_read_b32 v{vT}, v{vQ} offset:{L_START}
    ds_read_b32 v{vT + 1}, v{vQ + 1} offset:{L_START}
    s_mov_b32 s{sT}, {L_STAGE}
    s_mov_b32 s{sTMP}, {L_STAGE + CH * 16}
    s_waitcnt vmcnt({nyoung})
    """)
    for k in range(2):
        a(f"""
        s_waitcnt lgkmcnt({1 if k == 0 else 2})
        v_add_u32 v{vRK + k}, v{vRK + k}, v{vT + k}
        v_lshl_add_u32 v{vT + 2}, v{vRK + k}, 2, s{sTMP}
        v_lshl_add_u32 v{vT + 3}, v{vRK + k}, 4, s{sT}
        ds_write_b32 v{vT + 2}, v{vKK + k}
        ds_write2_b64 v{vT + 3}, {vr(vY + 2 * k, 2)}, {vr(vF + 2 * k, 2)} offset0:0 offset1:1
        """)
    a("""
    s_branch La_join
    La_other:
    s_barrier
    """)
    if fused:
        a(f"s_waitcnt vmcnt({nyoung})")
        side_finish(a)
    a(f"""
    La_join:
    s_mov_b32 s{sT}, {L_STAGE}
    v_lshl_add_u32 v{vT + 4}, v0, 4, s{sT}
    s_mul_i32 s{sT}, s2, {CHB}
    v_lshl_add_u32 v{vT + 5}, v0, 4, s{sT}
    v_add_u32 v{vT + 6}, 8192, v{vT + 5}
    v_cmp_gt_u32 vcc, {CHB // 16 - 512}, v0
    v_lshlrev_b32 v{vT + 7}, 3, v0
    s_waitcnt lgkmcnt(0)
    s_barrier
    """)
    stamp(a, o, 2)
    a(f"""
    ds_read_b64 {vr(vC, 2)}, v{vT + 7} offset:{L_HIST}
    ds_read_b64 {vr(vC + 2, 2)}, v{vT + 7} offset:{L_START}
    s_cmp_ge_u32 s2, {NPROD}
    s_cbranch_scc1 La_nostore
    ds_read_b128 {vr(vY, 4)}, v{vT + 4}
    s_and_saveexec_b64 {sr(sTMP, 2)}, vcc
    s_cbranch_execz La_one
    ds_read_b128 {vr(vF, 4)}, v{vT + 4} offset:8192
    s_waitcnt lgkmcnt(0)
    global_store_dwordx4 v{vT + 6}, {vr(vF, 4)}, {sr(sREC, 2)} {st}
    La_one:
    s_mov_b64 exec, -1
    s_waitcnt lgkmcnt(0)
    global_store_dwordx4 v{vT + 5}, {vr(vY, 4)}, {sr(sREC, 2)} {st}
    La_nostore:
    """)
    if fused:
        a("s_waitcnt vmcnt(2)")
        a(f"""
        s_cmp_lt_u32 s{sW}, 5
        s_cbranch_scc1 La_w2
        s_waitcnt vmcnt(1)
        La_w2:
        s_cmp_lt_u32 s2, {NPROD}
        s_cbranch_scc1 La_w3
        s_waitcnt vmcnt(0)
        La_w3:
        """)
        prefetch(a, o.pf1)
        wmix_finish(a)
    a(f"""
    s_lshl_b32 s{sT}, s2, 11
    v_lshl_add_u32 v{vT + 4}, v0, 4, s{sT}
    s_waitcnt lgkmcnt(0)
    v_lshl_or_b32 v{vSC}, v{vC}, 16, v{vC + 2}
    v_mov_b32 v{vSC + 1}, s{sTAG}
    v_lshl_or_b32 v{vSC + 2}, v{vC + 1}, 16, v{vC + 3}
    v_mov_b32 v{vSC + 3}, s{sTAG}
    """)
    if fused:
        a(f"""
        s_waitcnt vmcnt({1 if o.pf1 else 0})
        s_barrier
        """)
    stamp(a, o, 3)
    a(f"""
    s_cmp_ge_u32 s{sW}, 2
    s_cbranch_scc1 La_notab
    global_store_dwordx4 v{vT + 4}, {vr(vSC, 4)}, {sr(sWS, 2)} {st}
    La_notab:
    """)


def setup_consumer(a, o):
    a(f"""
    s_and_b32 s{sQ}, s2, 7
    s_lshl_b32 s{sQ}, s{sQ}, 5
    s_lshr_b32 s{sT}, s2, 3
    s_or_b32 s{sQ}, s{sQ}, s{sT}
    s_mov_b32 s{sPF}, s{sT}
    v_lshlrev_b32 v{vPFA}, 7, v0
    s_mov_b32 s{sX}, s4
    s_and_b32 s{sX + 1}, s5, 0xffff
    s_mov_b32 s{sX + 2}, {XBYTES}
    s_mov_b32 s{sX + 3}, 0x20000
    s_and_b32 s{sO + 1}, s{sO + 1}, 0xffff
    s_mov_b32 s{sO + 2}, {XBYTES}
    s_mov_b32 s{sO + 3}, 0x20000
    s_mov_b32 s{sRND}, 0
    s_mov_b32 s{sLN2}, {f32(-0.6931471805599453):#x}
    s_mov_b32 s{sLN2 + 1}, {f32(-0.6931471805599453):#x}
    """)


def gen_sort(a, o):
    a(".p2align 8")
    a(".globl tfn_sort_kernel")
    a(".type tfn_sort_kernel,@function")
    a("tfn_sort_kernel:")
    entry(a, o, "s")
    phase_a(a, o)
    if o.stamps:
        a("s_waitcnt vmcnt(0)")
    stamp(a, o, 4)
    stamp_flush(a, o, 5, 0)
    a("""
    Ls_end:
    s_endpgm
    """)


def gen_main(a, o):
    kn = NAME + "_kernel"
    fused, D = o.fused, o.D
    ld = "sc1" if fused else ""
    a(".p2align 8")
    a(f".globl {kn}")
    a(f".type {kn},@function")
    a(f"{kn}:")
    vPAY = vXB
    vK = vU
    vBA = vU + 8
    vRK = vU + 16
    vMP = vU + 24
    vEN = vT + 6
    entry(a, o, "m")
    if fused:
        phase_a(a, o)
    else:
        a("s_waitcnt lgkmcnt(0)")
        setup_consumer(a, o)
    a(f"""
    s_lshl_b32 s{sT}, s{sQ}, 3
    v_lshrrev_b32 v{vT + 2}, 1, v0
    v_lshl_add_u32 v{vT + 3}, v{vT + 2}, 11, s{sT}
    global_load_dwordx2 {vr(vEN, 2)}, v{vT + 3}, {sr(sWS, 2)} {ld}
    """)
    if not fused:
        a(f"""
        s_add_u32 s{sREC}, s{sWS}, {WS_REC}
        s_addc_u32 s{sREC + 1}, s{sWS + 1}, 0
        s_barrier
        """)
        side_loads(a)
        wmix_loads(a)
    for i in range(40):
        a(f"v_mov_b32 v{vACC + i}, 0")
    a(f"""
    v_mul_u32_u24 v{vREC16}, {CHB}, v{vT + 2}
    v_and_b32 v{vT + 4}, 1, v0
    v_mov_b32 v{vT + 5}, {L_MAX}
    """)
    if fused:
        a(f"""
        s_mov_b32 s{sT}, {o.spin}
        Lm_poll:
        s_waitcnt vmcnt(0)
        v_cmp_ne_u32 vcc, s{sTAG}, v{vEN + 1}
        s_cbranch_vccz Lm_ready
        s_sub_u32 s{sT}, s{sT}, 1
        s_cbranch_scc1 Lm_end
        s_mov_b64 exec, vcc
        global_load_dwordx2 {vr(vEN, 2)}, v{vT + 3}, {sr(sWS, 2)} sc1
        s_branch Lm_poll
        Lm_ready:
        s_mov_b64 exec, -1
        """)
    else:
        a(f"""
        s_waitcnt vmcnt(12)
        s_cmp_eq_u32 s{sW}, 5
        s_cbranch_scc1 Lm_tw
        s_waitcnt vmcnt(10)
        s_cmp_eq_u32 s{sW}, 6
        s_cbranch_scc1 Lm_tw
        s_waitcnt vmcnt(8)
        Lm_tw:
        """)
    stamp(a, o, 4)
    a(f"""
    v_and_b32 v{vT}, 0xffff, v{vEN}
    v_lshrrev_b32 v{vREM}, 16, v{vEN}
    v_add_u32 v{vT}, v{vT}, v{vT + 4}
    v_lshl_add_u32 v{vREC4}, v{vT}, 2, v{vREC16}
    v_add_u32 v{vREC4}, {CH * 16}, v{vREC4}
    v_lshl_add_u32 v{vREC16}, v{vT}, 4, v{vREC16}
    v_cmp_lt_u32 vcc, {2 * SLOTS}, v{vREM}
    s_and_saveexec_b64 {sr(sTMP, 2)}, vcc
    ds_max_u32 v{vT + 5}, v{vREM}
    s_mov_b64 exec, -1
    v_sub_u32 v{vREM}, v{vREM}, v{vT + 4}
    """)
    if not fused:
        a("s_waitcnt vmcnt(0)")
        side_finish(a)
        wmix_finish(a)
        a("s_waitcnt lgkmcnt(0)")
    a("Lm_round:")
    for j in range(SLOTS):
        a(f"v_cmp_lt_i32 {sr(sM + 2 * j, 2)}, {2 * j}, v{vREM}")

    def per_slot(label, body):
        for j in range(SLOTS):
            a(f"s_mov_b64 exec, {sr(sM + 2 * j, 2)}")
            a(f"s_cbranch_execz {label}")
            body(j)
        a(f"{label}:")
        a("s_mov_b64 exec, -1")

    per_slot("Lm_ld", lambda j: a(f"global_load_dword v{vK + j}, v{vREC4}, {sr(sREC, 2)} offset:{8 * j} {ld}"))
    a("s_waitcnt vmcnt(0)")
    stamp(a, o, 5)

    def hist1(j):
        a(f"v_and_b32 v{vBA + j}, 63, v{vK + j}")
        a(f"v_lshlrev_b32 v{vBA + j}, 2, v{vBA + j}")
        a(f"ds_add_u32 v{vBA + j}, v{vONE} offset:{L_DEG}")
        a(f"global_load_dwordx4 {vr(vPAY + 4 * j, 4)}, v{vREC16}, {sr(sREC, 2)} offset:{32 * j} {ld}")
    per_slot("Lm_h1", hist1)
    a(f"""
    s_cmp_lg_u32 s{sRND}, 0
    s_cbranch_scc1 Lm_bins
    v_lshlrev_b32 v{vT + 1}, 2, v{vLANE}
    s_mul_i32 s{sT}, s{sW}, 5
    s_waitcnt lgkmcnt(0)
    s_barrier
    """)
    stamp(a, o, 6)
    a(f"""
    ds_read_b32 v{vT}, v{vT + 1} offset:{L_DEG}
    ds_read_b32 v{vT + 5}, v{vT + 5}
    """)
    prefetch(a, o.pf2)
    a(f"""
    v_sub_u32 v{vT + 2}, 63, v{vLANE}
    s_add_u32 s{sTMP}, s{sT}, 1
    s_add_u32 s{sTMP + 1}, s{sT}, 2
    s_add_u32 s{sTMP + 2}, s{sT}, 3
    s_add_u32 s{sTMP + 3}, s{sT}, 4
    s_waitcnt lgkmcnt(0)
    v_lshl_or_b32 v{vT}, v{vT}, 6, v{vT + 2}
    v_readfirstlane_b32 s{sMAX}, v{vT + 5}
    v_readlane_b32 s{sRING}, v{vT}, s{sT}
    v_readlane_b32 s{sRING + 1}, v{vT}, s{sTMP}
    v_readlane_b32 s{sRING + 2}, v{vT}, s{sTMP + 1}
    v_readlane_b32 s{sRING + 3}, v{vT}, s{sTMP + 2}
    v_readlane_b32 s{sRING + 4}, v{vT}, s{sTMP + 3}
    """)
    for k in range(5):
        a(f"v_cmp_lt_u32 {sr(sTMP + 2 * k, 2)}, s{sRING + k}, v{vT}")
    for k in range(5):
        a(f"s_bcnt1_i32_b64 s{sRING + 8 + k}, {sr(sTMP + 2 * k, 2)}")
    for k in range(5):
        a(f"v_writelane_b32 v{vT + 2}, s{sRING + 8 + k}, {k}")
    a(f"""
    s_mov_b64 exec, 31
    v_lshrrev_b32 v{vT}, 3, v{vT + 2}
    v_and_b32 v{vT + 3}, 7, v{vT + 2}
    v_cmp_lt_u32 vcc, 15, v{vT + 2}
    v_xor_b32 v{vT + 4}, 7, v{vT + 3}
    v_add_u32 v{vT + 5}, s{sT}, v{vLANE}
    v_cndmask_b32 v{vT + 3}, v{vT + 3}, v{vT + 4}, vcc
    v_lshlrev_b32 v{vT + 2}, 5, v{vT + 3}
    v_lshl_or_b32 v{vT + 2}, v{vT}, 19, v{vT + 2}
    v_mad_u32_u24 v{vT + 3}, v{vT + 3}, 5, v{vT}
    v_lshlrev_b32 v{vT + 4}, 2, v{vT + 5}
    v_lshlrev_b32 v{vT + 3}, 2, v{vT + 3}
    ds_write_b32 v{vT + 4}, v{vT + 2} offset:{L_MAP}
    ds_write_b32 v{vT + 3}, v{vT + 5} offset:{L_INV}
    s_mov_b64 exec, -1
    """)
    a(f"""
    v_and_b32 v{vT}, 3, v0
    v_lshlrev_b32 v{vT}, 5, v{vT}
    ds_read_b128 {vr(vWR, 4)}, v{vL16} offset:{L_WR}
    ds_read_b128 {vr(vWR + 4, 4)}, v{vL16} offset:{L_WR + 1024}
    ds_read_b128 {vr(vCG, 4)}, v{vT} offset:{L_CG}
    ds_read_b128 {vr(vCG + 4, 4)}, v{vT} offset:{L_CG + 16}
    s_waitcnt lgkmcnt(4)
    s_barrier
    """)
    prefetch(a, o.pf3)
    a("Lm_bins:")
    stamp(a, o, 7)

    def rdmap(j):
        a(f"ds_read_b32 v{vMP + j}, v{vBA + j} offset:{L_MAP}")
        a(f"v_bfe_u32 v{vBA + j}, v{vK + j}, 6, 3")
        a(f"v_and_b32 v{vK + j}, 0xfffffc00, v{vK + j}")
    per_slot("Lm_mp", rdmap)
    a("s_waitcnt lgkmcnt(0)")

    def hist2(j):
        a(f"v_and_b32 v{vRK + j}, 0xffff, v{vMP + j}")
        a(f"v_lshl_add_u32 v{vBA + j}, v{vBA + j}, 2, v{vRK + j}")
        a(f"ds_add_rtn_u32 v{vRK + j}, v{vBA + j}, v{vONE} offset:{L_BIN}")
        a(f"v_lshrrev_b32 v{vMP + j}, 16, v{vMP + j}")
        a(f"v_or_b32 v{vK + j}, v{vK + j}, v{vMP + j}")
    per_slot("Lm_h2", hist2)
    a(f"""
    v_lshlrev_b32 v{vT + 1}, 2, v{vLANE}
    s_lshl_b32 s{sT}, s{sW}, 3
    s_add_u32 s{sTMP}, s{sT}, 7
    v_lshrrev_b32 v{vT + 3}, 3, v{vLANE}
    v_lshlrev_b32 v{vT + 6}, 4, v0
    v_add_u32 v{vT + 6}, {L_PAY}, v{vT + 6}
    s_waitcnt lgkmcnt(0)
    s_barrier
    """)
    stamp(a, o, 8)
    a(f"""
    ds_read_b32 v{vT}, v{vT + 1} offset:{L_BIN}
    s_waitcnt lgkmcnt(0)
    v_mov_b32 v{vT + 2}, v{vT}
    """)
    wave_scan(a, vT + 2)
    a(f"""
    v_lshl_add_u32 v{vT + 2}, v{vT + 3}, 4, v{vT + 2}
    v_sub_u32 v{vT}, v{vT + 2}, v{vT}
    """)
    for j in range(SLOTS):
        if j:
            a(f"s_cmp_eq_u64 {sr(sM + 2 * j, 2)}, 0")
            a("s_cbranch_scc1 Lm_bp")
        a(f"ds_bpermute_b32 v{vMP + j}, v{vBA + j}, v{vT}")
    a(f"""
    Lm_bp:
    v_readlane_b32 s{sSTART}, v{vT}, s{sT}
    v_readlane_b32 s{sN}, v{vT + 2}, s{sTMP}
    v_readlane_b32 s{sBIG}, v{vT + 2}, 63
    v_mov_b32 v{vT + 4}, {XBYTES}
    v_mov_b32 v{vT + 5}, {L_ZERO}
    s_mov_b32 s{sTMP + 2}, {L_ENT}
    v_add_u32 v{vT + 2}, s{sN}, v{vLANE}
    v_lshl_add_u32 v{vT + 2}, v{vT + 2}, 3, s{sTMP + 2}
    s_cmp_eq_u32 s{sW}, 7
    s_cselect_b64 exec, -1, 0xffff
    ds_write_b64 v{vT + 2}, {vr(vT + 4, 2)}
    s_mov_b64 exec, -1
    s_sub_u32 s{sN}, s{sN}, s{sSTART}
    s_lshl_b32 s{sSTART}, s{sSTART}, 3
    s_add_u32 s{sSTART}, s{sSTART}, {L_ENT}
    v_lshl_add_u32 v{vKA}, v{vLANE}, 3, s{sSTART}
    v_lshrrev_b32 v{vYA}, 2, v{vLANE}
    v_lshl_add_u32 v{vYA}, v{vYA}, 3, s{sSTART}
    v_bfe_u32 v{vT}, v{vLANE}, 3, 2
    v_and_b32 v{vT + 1}, 3, v{vLANE}
    v_lshl_add_u32 v{vT}, v{vT}, 2, v{vT + 1}
    v_lshl_add_u32 v{vEA}, v{vT}, 3, s{sSTART}
    s_waitcnt lgkmcnt(1)
    """)

    def wr(j):
        a(f"v_add_u32 v{vRK + j}, v{vRK + j}, v{vMP + j}")
        a(f"v_lshl_add_u32 v{vRK + j}, v{vRK + j}, 3, s{sTMP + 2}")
        a(f"v_add_u32 v{vMP + j}, {8192 * j}, v{vT + 6}")
        a(f"ds_write2_b32 v{vRK + j}, v{vK + j}, v{vMP + j} offset0:0 offset1:1")
    per_slot("Lm_wr", wr)
    npf = (1 if o.pf2 else 0) + (1 if o.pf3 else 0)
    if npf:
        a(f"""
        s_waitcnt vmcnt({npf})
        s_cmp_eq_u32 s{sRND}, 0
        s_cbranch_scc1 Lm_pw
        s_waitcnt vmcnt(0)
        Lm_pw:
        """)
    else:
        a("s_waitcnt vmcnt(0)")
    per_slot("Lm_wp", lambda j: a(f"ds_write_b128 v{vMP + j}, {vr(vPAY + 4 * j, 4)}"))
    a(f"""
    s_mov_b32 s{sTMP}, 0x0f0f0f0f
    s_mov_b32 s{sTMP + 1}, 0xf0f0f0f0
    v_mov_b32 v{vT}, {L_NULL}
    v_mov_b32 v{vT + 1}, {L_NULL - 32}
    v_mov_b32 v{vT + 2}, 128
    v_cndmask_b32 v{vT}, v{vT}, v{vEA}, {sr(sTMP, 2)}
    v_cndmask_b32 v{vEA}, v{vT + 1}, v{vEA}, {sr(sTMP, 2)}
    v_cndmask_b32 v{vEINC}, 0, v{vT + 2}, {sr(sTMP, 2)}
    s_waitcnt lgkmcnt(0)
    s_barrier
    """)
    stamp(a, o, 9)
    vK0, vPE0, vEF0 = vT + 1, vT + 2, vTP
    a(f"""
    ds_read_b32 v{vK0}, v{vKA}
    ds_read_b32 v{vPE0}, v{vT} offset:4
    ds_read_b32 v{vPE}, v{vEA} offset:{4 + 32}
    ds_read_b32 v{vPY}, v{vYA} offset:4
    ds_read_b32 v{vKEY}, v{vKA} offset:{8 * D}
    v_lshlrev_b32 v{vT + 3}, 2, v{vLANE}
    v_mov_b32 v{vT + 4}, 0
    ds_write_b32 v{vT + 3}, v{vT + 4} offset:{L_BIN}
    s_add_u32 s{sN}, s{sN}, 3
    s_lshr_b32 s{sN}, s{sN}, 2
    s_cmp_eq_u32 s{sN}, 0
    s_cbranch_scc1 Lm_done
    s_sub_u32 s{sN}, s{sN}, 1
    s_waitcnt lgkmcnt(2)
    ds_read2_b64 {vr(vEF0, 4)}, v{vPE0} offset0:1 offset1:1
    ds_read_b64 {vr(vYN, 2)}, v{vPY}
    ds_read2_b64 {vr(vEF, 4)}, v{vPE} offset0:1 offset1:1
    """)
    for i in range(D + 2):
        a(f"v_readlane_b32 s{sRING + i}, v{vK0}, {i}")
    for i in range(D):
        a(f"s_and_b32 s{sOFF}, s{sRING + i}, 0xfffffc00")
        a(f"buffer_load_dwordx4 {vr(vXB + 4 * i, 4)}, v{vL16}, {sr(sX, 4)}, s{sOFF} offen")
    a(f"s_and_b32 s{sOFF}, s{sRING + D}, 0xfffffc00")
    a(f"s_and_b32 s{sOFF + 1}, s{sRING + D + 1}, 0xfffffc00")

    def mz(h, ef):
        a(f"v_mfma_f32_32x32x16_bf16 {vr(vU + 16 * h, 16)}, {vr(ef, 4)}, {vr(vWR + 4 * h, 4)}, 0")

    def dot(n):
        i, p = n & 3, n >> 2
        c = f"v{vAT + i}" if p else "0"
        a(f"v_dot2_f32_bf16 v{vAT + i}, v{vYN + p}, v{vCG + 2 * i + p}, {c}")

    a("s_waitcnt lgkmcnt(0)")
    mz(0, vEF0)
    mz(1, vEF0)
    for n in range(8):
        dot(n)
    a(f"v_add_u32 v{vEA}, v{vEINC}, v{vEA}")
    a(f"v_add_u32 v{vYA}, 128, v{vYA}")
    a(f"v_add_u32 v{vKA}, 128, v{vKA}")
    a(f"v_cvt_pk_bf16_f32 v{vA}, v{vAT}, v{vAT + 1}")
    a(f"v_cvt_pk_bf16_f32 v{vA + 1}, v{vAT + 2}, v{vAT + 3}")
    tmp = vTP + 8
    for r in range(8):
        a(f"v_exp_f32 v{tmp + r}, v{vU + 16 * (r >> 2) + (r & 3)}")
    a("s_nop 0")
    for r in range(0, 8, 2):
        a(f"v_pk_add_f32 {vr(tmp + r, 2)}, {vr(tmp + r, 2)}, 1.0 op_sel_hi:[1,0]")
    for r in range(8):
        a(f"v_rcp_f32 v{tmp + r}, v{tmp + r}")
    a("s_nop 0")
    for r in range(0, 8, 2):
        a(f"v_pk_mul_f32 {vr(vR + r, 2)}, {vr(vU + 16 * (r >> 2) + (r & 3), 2)}, {vr(tmp + r, 2)}")
    mz(0, vEF)
    a("s_nop 7")
    stamp(a, o, 10)
    a(".p2align 6")
    a("Lm_loop:")
    for P in range(8):
        g, hf = P >> 1, P & 1
        i0 = 2 * P
        sn = vU + 16 * hf + 4 * g
        dn = vR + 8 * ((g + 1) & 1) + 4 * hf
        cur = vR + 8 * (g & 1) + 2 * hf
        a(f"s_waitcnt vmcnt({D - 2})")
        for k in range(2):
            a(f"buffer_load_dwordx4 {vr(vXB + 4 * ((i0 + k + D) & 7), 4)}, v{vL16}, {sr(sX, 4)}, s{sOFF + k} offen")
        for k in range(2):
            xb = vXB + 4 * ((i0 + k) & 7)
            for h in range(2):
                a(f"v_mfma_f32_4x4x4_16b_bf16 {vr(vTP + 8 * k + 4 * h, 4)}, {vr(vA, 2)}, {vr(xb + 2 * h, 2)}, 0 cbsz:4 abid:{i0 + k}")
                a(f"v_exp_f32 v{vE + 2 * k + h}, v{sn + 2 * k + h}")
        if P == 0:
            a("s_waitcnt lgkmcnt(0)")
        for k in range(2):
            a(f"v_readlane_b32 s{sRING + ((i0 + k + D + 2) & 15)}, v{vKEY}, {i0 + k + 2}")
        for k in range(2):
            a(f"v_pk_add_f32 {vr(vE + 2 * k, 2)}, {vr(vE + 2 * k, 2)}, 1.0 op_sel_hi:[1,0]")
        if P == 0:
            mz(1, vEF)
        if P == 7:
            mz(0, vEF)
        for r in range(4):
            a(f"v_rcp_f32 v{vE + r}, v{vE + r}")
        if P == 0:
            a(f"ds_read_b32 v{vPY}, v{vYA} offset:4")
            a(f"ds_read_b32 v{vPE}, v{vEA} offset:{4 + 32}")
        if P == 1:
            a("s_waitcnt lgkmcnt(0)")
            a(f"ds_read_b64 {vr(vYN, 2)}, v{vPY}")
            a(f"ds_read2_b64 {vr(vEF, 4)}, v{vPE} offset0:1 offset1:1")
        if P == 7:
            a(f"ds_read_b32 v{vKEY}, v{vKA} offset:{8 * D}")
        for k in range(2):
            a(f"s_and_b32 s{sOFF + k}, s{sRING + ((i0 + k + D + 2) & 15)}, 0xfffffc00")
        for k in range(2):
            a(f"s_set_gpr_idx_on s{sRING + i0}, 0xc" if k == 0 else f"s_set_gpr_idx_idx s{sRING + i0 + 1}")
            for q in range(4):
                a(f"v_pk_fma_f32 {vr(vACC + 2 * q, 2)}, {vr(cur + 4 * (q >> 1), 2)}, {vr(vTP + 8 * k + 2 * q, 2)}, "
                  f"{vr(vACC + 2 * q, 2)} op_sel:[{k},0,0] op_sel_hi:[{k},1,1]")
        a("s_set_gpr_idx_off")
        for k in range(2):
            a(f"v_pk_mul_f32 {vr(dn + 2 * k, 2)}, {vr(sn + 2 * k, 2)}, {vr(vE + 2 * k, 2)}")
        if P == 1:
            a(f"v_add_u32 v{vEA}, v{vEINC}, v{vEA}")
            a(f"v_add_u32 v{vYA}, 128, v{vYA}")
        if P == 2:
            a("s_waitcnt lgkmcnt(0)")
        if 2 <= P < 6:
            dot(2 * (P - 2))
            dot(2 * (P - 2) + 1)
        if P == 7:
            a(f"""
            v_cvt_pk_bf16_f32 v{vA}, v{vAT}, v{vAT + 1}
            v_cvt_pk_bf16_f32 v{vA + 1}, v{vAT + 2}, v{vAT + 3}
            v_add_u32 v{vKA}, 128, v{vKA}
            """)
        if hf:
            a(f"s_sub_u32 s{sN}, s{sN}, 1")
            a("s_cbranch_scc1 Lm_done" if P < 7 else "s_cbranch_scc0 Lm_loop")
    a("Lm_done:")
    stamp(a, o, 11)
    vWM = vU
    a(f"""
    s_add_u32 s{sRND}, s{sRND}, {2 * SLOTS}
    s_cmp_ge_u32 s{sRND}, s{sMAX}
    s_cbranch_scc1 Lm_epi
    s_waitcnt vmcnt(0) lgkmcnt(0)
    s_barrier
    v_subrev_u32 v{vREM}, {2 * SLOTS}, v{vREM}
    v_add_u32 v{vREC4}, {8 * SLOTS}, v{vREC4}
    v_add_u32 v{vREC16}, {32 * SLOTS}, v{vREC16}
    s_branch Lm_round
    Lm_epi:
    s_cmp_le_u32 s{sBIG}, {ENT_OWN - 64}
    s_cbranch_scc1 Lm_small
    s_waitcnt lgkmcnt(0)
    s_barrier
    Lm_small:
    s_mul_i32 s{sT}, s{sW}, {20 * ROWB}
    s_add_u32 s{sT}, s{sT}, {L_AGG}
    v_lshl_add_u32 v{vT}, v{vLANE}, 2, s{sT}
    s_lshr_b32 s{sTMP}, s{sW}, 2
    s_mul_i32 s{sTMP + 1}, s{sTMP}, 80
    v_lshrrev_b32 v{vT + 1}, 4, v{vLANE}
    v_lshl_add_u32 v{vT + 2}, v{vT + 1}, 2, s{sTMP + 1}
    s_and_b32 s{sTMP + 2}, s{sW}, 3
    s_lshl_b32 s{sTMP + 3}, s{sTMP + 2}, 13
    v_add_u32 v{vT + 4}, s{sTMP + 3}, v{vL16}
    """)
    vINV = vAT
    for s in range(5):
        acc = vACC + 8 * s
        for r in range(0, 8, 2):
            a(f"v_pk_mul_f32 {vr(acc + r, 2)}, {vr(acc + r, 2)}, {sr(sLN2, 2)}")
        for r in range(4):
            a(f"v_cvt_pk_bf16_f32 v{acc + r}, v{acc + r}, v{acc + 4 + r}")
        a(f"ds_write2_b32 v{vT}, v{acc}, v{acc + 1} offset0:0 offset1:{ROWB // 4}")
        a(f"ds_write2_b32 v{vT}, v{acc + 2}, v{acc + 3} offset0:{2 * ROWB // 4} offset1:{3 * ROWB // 4}")
        if s < 4:
            a(f"v_add_u32 v{vT}, {4 * ROWB}, v{vT}")
    a("s_waitcnt lgkmcnt(0)")
    for mt in range(5):
        a(f"ds_read_b32 v{vINV + mt}, v{vT + 2} offset:{L_INV + 16 * mt}")
    for i in range(8):
        a(f"ds_read_b128 {vr(vWM + 4 * i, 4)}, v{vT + 4} offset:{L_WM + 1024 * i}")
    a(f"""
    v_and_b32 v{vT + 3}, 15, v{vLANE}
    v_mul_u32_u24 v{vT}, {ROWB}, v{vT + 3}
    v_lshl_add_u32 v{vT}, v{vT + 1}, 4, v{vT}
    s_mul_i32 s{sTMP + 1}, s{sTMP}, {80 * ROWB}
    s_add_u32 s{sTMP + 1}, s{sTMP + 1}, {L_AGG}
    v_add_u32 v{vT}, s{sTMP + 1}, v{vT}
    s_lshl_b32 s{sT}, s{sTMP + 2}, 8
    s_lshl_b32 s{sTMP + 1}, s{sQ}, 10
    s_add_u32 s{sT}, s{sT}, s{sTMP + 1}
    v_lshl_add_u32 v{vT + 3}, v{vT + 3}, 4, s{sT}
    s_waitcnt vmcnt(0)
    s_barrier
    """)
    a("s_waitcnt lgkmcnt(0)")
    stamp(a, o, 12)

    def frag(mt, s):
        return vWR + 16 * mt + 4 * s

    def rd(mt):
        for s in range(4):
            a(f"ds_read_b128 {vr(frag(mt, s), 4)}, v{vT} offset:{16 * ROWB * mt + 64 * s}")
    for mt in range(3):
        rd(mt)
    for mt in range(5):
        a(f"v_lshl_add_u32 v{vINV + mt}, v{vINV + mt}, 18, v{vT + 3}")
    vD = vACC

    def fin(mt):
        d = vD + 8 * mt
        for r in range(4):
            a(f"v_cvt_pk_bf16_f32 v{d + r}, v{d + 2 * r}, v{d + 2 * r + 1}")
        a(f"buffer_store_dwordx4 {vr(d, 4)}, v{vINV + mt}, {sr(sO, 4)}, 0 offen {o.st_out}")
    for mt in range(5):
        d = vD + 8 * mt
        pend = min(mt + 3, 5) - mt - 1
        for s in range(4):
            a(f"s_waitcnt lgkmcnt({4 * pend + 3 - s})")
            for t in range(2):
                c = vr(d + 4 * t, 4) if s else "0"
                a(f"v_mfma_f32_16x16x32_bf16 {vr(d + 4 * t, 4)}, {vr(frag(mt, s), 4)}, {vr(vWM + 8 * s + 4 * t, 4)}, {c}")
        if mt + 3 < 5:
            rd(mt + 3)
        if mt:
            fin(mt - 1)
    a("s_nop 7")
    fin(4)
    if fused:
        a(f"""
        s_or_b32 s{sT}, s2, s{sW}
        s_cmp_lg_u32 s{sT}, 0
        s_cbranch_scc1 Lm_noep
        v_mov_b32 v{vT}, {WS_EPOCH}
        v_mov_b32 v{vT + 1}, s{sTAG}
        s_mov_b64 exec, 1
        global_store_dword v{vT}, v{vT + 1}, {sr(sWS, 2)} sc1
        Lm_noep:
        """)
    if o.stamps:
        a("s_waitcnt vmcnt(0)")
    stamp(a, o, 13)
    stamp_flush(a, o, 14, 1)
    a("""
    Lm_end:
    s_endpgm
    """)


def generate(o):
    a = Asm()
    ref = open(f"cdna_kernels/{NAME}.s.ref").read().split("\n")
    for ln in ref:
        if ln.startswith("; Override"):
            break
        a.lines.append(ln)
    kerns = []
    if not o.fused:
        a.lines.append(f"; @launch kernel=tfn_sort_kernel grid=(256,1,1) block=(512,1,1) lds={L_STAGE + CHB}")
        kerns.append(("tfn_sort_kernel", NV))
    if o.fused and o.stamps != 1:
        a.lines.append(f"; @launch grid=(256,1,1) block=(512,1,1) lds={L_END}")
    else:
        a.lines.append(f"; @launch kernel={NAME}_kernel grid=(256,1,1) block=(512,1,1) lds={L_END}")
    kerns.append((NAME + "_kernel", NV))
    if o.stamps == 1:
        a.lines.append("; @launch kernel=diag_end_kernel grid=(1,1,1) block=(64,1,1) lds=0")
    a('.amdgcn_target "amdgcn-amd-amdhsa--gfx950"')
    a(".text")
    if not o.fused:
        gen_sort(a, o)
    gen_main(a, o)
    if o.stamps == 1:
        kerns.append(("diag_end_kernel", 8))
        a(f"""
        .p2align 8
        .globl diag_end_kernel
        .type diag_end_kernel,@function
        diag_end_kernel:
        s_memrealtime s[8:9]
        s_load_dwordx2 s[4:5], s[0:1], 80
        v_mov_b32 v1, {WS_STAMP + 2 * 0x80000}
        s_waitcnt lgkmcnt(0)
        v_mov_b32 v2, s8
        global_store_dword v1, v2, s[4:5]
        s_endpgm
        """)
    a('.section .rodata,"a"')
    for kn, v in kerns:
        a(f"""
        .p2align 6
        .amdhsa_kernel {kn}
        .amdhsa_next_free_vgpr {v}
        .amdhsa_next_free_sgpr 102
        .amdhsa_accum_offset {v}
        .amdhsa_group_segment_fixed_size 0
        .amdhsa_kernarg_size 88
        .amdhsa_user_sgpr_count 2
        .amdhsa_user_sgpr_kernarg_segment_ptr 1
        .amdhsa_system_sgpr_workgroup_id_x 1
        .amdhsa_float_denorm_mode_32 3
        .end_amdhsa_kernel
        """)
    return a.text()


if __name__ == "__main__":
    o = Opt()
    out = sys.argv[1]
    for kv in sys.argv[2:]:
        k, v = kv.split("=")
        assert hasattr(o, k), k
        setattr(o, k, int(v) if v.lstrip("-").isdigit() else v.replace("+", " "))
    open(out, "w").write(generate(o))
```

```python
import struct
import sys

NAME = "gather_scatter__tensor_product_equiv_tfn__graph"
N, E = 10000, 160000
NPROD, CH = 250, 640
XBYTES = N * 1024

WS_TAB = 0
WS_REC = 0x80000
CHB = CH * 32
WS_EPOCH = 0x700000
WS_STAMP = 0x800000

SLOTS = 8

L_DEG, L_BIN, L_MAX, L_ZERO, L_NULL, L_MAP, L_INV = 0, 256, 512, 528, 544, 768, 1024
L_HIST, L_START = 1280, 2304
L_CG, L_WR = 3328, 3584
L_WM = 5632
L_PAY = L_WM + 32768
L_ENT = L_PAY + SLOTS * 512 * 16
ENT_OWN = 1024
L_AGG = L_ENT + ENT_OWN * 8
ROWB = 288
L_END = L_AGG + 160 * ROWB
L_STAGE = L_AGG
assert (256 * 2 * SLOTS + 8 * 16 + 64) * 8 <= L_END - L_ENT
assert L_END <= 163840


def f32(x):
    return struct.unpack("<I", struct.pack("<f", x))[0]


class Opt:
    stamps = 0
    fused = 1
    D = 6
    st_out = "sc1"
    st_k1 = "sc1"
    g1at = 1
    wmat = 1
    D0 = 4
    pf2 = 0
    pf3 = 0
    spin = 1 << 16
    dbgwg = 0
    cyc = 0


class Asm:
    def __init__(self):
        self.lines = []

    def __call__(self, s=""):
        for ln in s.split("\n"):
            ln = ln.strip()
            if not ln:
                continue
            self.lines.append(ln if ln.endswith(":") or ln.startswith(".") or ln.startswith(";") else "    " + ln)

    def text(self):
        return "\n".join(self.lines) + "\n"


def vr(a, n=1):
    return "v%d" % a if n == 1 else "v[%d:%d]" % (a, a + n - 1)


def sr(a, n=1):
    return "s%d" % a if n == 1 else "s[%d:%d]" % (a, a + n - 1)


def wave_scan(a, v):
    for c in ("row_shr:1", "row_shr:2", "row_shr:4", "row_shr:8"):
        a("s_nop 1")
        a(f"v_add_u32_dpp v{v}, v{v}, v{v} {c} row_mask:0xf bank_mask:0xf bound_ctrl:1")
    a("s_nop 1")
    a(f"v_add_u32_dpp v{v}, v{v}, v{v} row_bcast:15 row_mask:0xa bank_mask:0xf")
    a("s_nop 1")
    a(f"v_add_u32_dpp v{v}, v{v}, v{v} row_bcast:31 row_mask:0xc bank_mask:0xf")


sX, sO = 20, 24
sWS, sREC = 28, 30
sQ, sW, sRND, sMAX, sSTART, sN, sOFF, sT = 32, 33, 34, 35, 36, 37, 38, 40
sTAG, sBIG, sPF = 41, 42, 43
sSPIN = 3
sRING = 44
sM = 60
sTMP = 76
sLN2 = 86
sST = 88

vL16, vLANE, vREC4, vREC16, vREM, vONE = 1, 2, 3, 4, 5, 6
vKA, vEA, vYA, vEINC = 7, 8, 9, 10
vKEY, vPE, vPY, vPFA = 11, 12, 13, 14
vPF = 15
vREC1 = 192
vS1 = 196
vEF, vYN, vA = 16, 20, 22
vAT = 24
vE = 28
vT = 32
vWR = 40
vCG = 48
vTP = 56
vR = 72
vXB = 88
vU = 120
vACC = 152
NV = 240


def stamp(a, o, idx):
    if o.stamps:
        a(f"""
        {"s_memtime" if o.cyc else "s_memrealtime"} {sr(sTMP + 8, 2)}
        s_waitcnt lgkmcnt(0)
        s_mov_b32 s{sST + idx}, s{sTMP + 8}
        """)


def stamp_flush(a, o, n, kern):
    if not o.stamps:
        return
    if o.stamps == 2:
        a(f"""
        s_mov_b64 exec, -1
        s_cmp_lg_u32 s2, {o.dbgwg}
        s_cbranch_scc1 Lm_end
        s_cmp_lg_u32 s{sW}, 0
        s_cbranch_scc1 Lm_end
        s_load_dwordx2 s[4:5], s[0:1], 72
        v_mov_b32 v{vT}, 0
        s_waitcnt lgkmcnt(0)
        """)
        for i in range(n):
            a(f"s_sub_u32 s3, s{sST + i}, s{sST}")
            a(f"v_mov_b32 v{vT + 1}, s3")
            a(f"global_store_dword v{vT}, v{vT + 1}, s[4:5] offset:{4 * i}")
            a("s_nop 1")
        return
    a(f"""
    s_mov_b64 exec, -1
    s_lshl_b32 s3, s2, 4
    s_add_u32 s3, s3, s{sW}
    s_lshl_b32 s3, s3, 6
    s_add_u32 s3, s3, {WS_STAMP + kern * 0x80000}
    v_mov_b32 v{vT}, s3
    """)
    for i in range(n):
        a(f"v_mov_b32 v{vT + 1}, s{sST + i}")
        a(f"global_store_dword v{vT}, v{vT + 1}, {sr(sWS, 2)} offset:{4 * i}")
        a("s_nop 1")


PF = {"done": 0}


def prefetch(a, k):
    if not k:
        return
    a(f"""
    s_mul_i32 s{sTMP + 4}, s{sPF}, {k * 8192}
    s_add_u32 s{sTMP + 4}, s{sTMP + 4}, {PF["done"] * 262144}
    s_cmp_lt_u32 s{sW}, {k}
    s_cselect_b32 s{sTMP + 4}, s{sTMP + 4}, {XBYTES}
    buffer_load_dword v{vPF}, v{vPFA}, {sr(sX, 4)}, s{sTMP + 4} offen
    """)
    PF["done"] += k


def entry(a, o, kern):
    a(f"""
    s_cmp_ge_u32 s2, 256
    s_cbranch_scc1 L{kern}_end
    """)
    stamp(a, o, 0)
    a(f"""
    s_load_dwordx16 s[4:19], s[0:1], 0
    s_load_dwordx2 {sr(sWS, 2)}, s[0:1], 80
    s_load_dwordx2 {sr(sO, 2)}, s[0:1], 64
    v_lshrrev_b32 v{vT}, 6, v0
    v_and_b32 v{vLANE}, 63, v0
    v_readfirstlane_b32 s{sW}, v{vT}
    v_mov_b32 v{vT}, 0
    v_mov_b32 v{vT + 1}, 0
    v_lshlrev_b32 v{vT + 2}, 3, v0
    ds_write_b64 v{vT + 2}, {vr(vT, 2)}
    v_lshlrev_b32 v{vL16}, 4, v{vLANE}
    v_mov_b32 v{vONE}, 1
    """)


def side_loads(a):
    a(f"""
    s_cmp_lg_u32 s{sW}, 5
    s_cbranch_scc1 Lside_a
    v_lshlrev_b32 v{vT}, 2, v{vLANE}
    global_load_dword v{vTP}, v{vT}, s[14:15]
    global_load_dword v{vTP + 1}, v{vT}, s[14:15] offset:256
    global_load_dword v{vTP + 2}, v{vT}, s[14:15] offset:512
    global_load_dword v{vTP + 3}, v{vT}, s[14:15] offset:768
    Lside_a:
    s_cmp_lg_u32 s{sW}, 6
    s_cbranch_scc1 Lside_b
    v_bfe_u32 v{vT}, v{vLANE}, 3, 2
    v_and_b32 v{vT + 1}, 7, v{vLANE}
    v_lshl_add_u32 v{vT}, v{vT + 1}, 3, v{vT}
    v_lshlrev_b32 v{vT}, 1, v{vT}
    global_load_ushort v{vTP}, v{vT}, s[16:17]
    global_load_ushort v{vTP + 1}, v{vT}, s[16:17] offset:8
    Lside_b:
    """)


def side_finish(a):
    g = vTP + 4
    out = vR
    a(f"""
    s_cmp_lg_u32 s{sW}, 5
    s_cbranch_scc1 Lside_c
    s_mov_b32 s{sT}, {f32(-1.4426950408889634):#x}
    """)
    for k in range(4):
        a(f"v_lshlrev_b32 v{g + k}, 16, v{vTP + k}")
        a(f"v_and_b32 v{g + 4 + k}, 0xffff0000, v{vTP + k}")
    for k in range(8):
        a(f"v_mul_f32 v{g + k}, s{sT}, v{g + k}")
    for h in range(2):
        for p in range(2):
            g0 = g + 4 * h + 2 * p
            hi = out + 4 * h + p
            a(f"""
            v_cvt_pk_bf16_f32 v{hi}, v{g0}, v{g0 + 1}
            v_lshlrev_b32 v{vT}, 16, v{hi}
            v_and_b32 v{vT + 1}, 0xffff0000, v{hi}
            v_sub_f32 v{vT}, v{g0}, v{vT}
            v_sub_f32 v{vT + 1}, v{g0 + 1}, v{vT + 1}
            v_cvt_pk_bf16_f32 v{hi + 2}, v{vT}, v{vT + 1}
            """)
    a(f"""
    ds_write_b128 v{vL16}, {vr(out, 4)} offset:{L_WR}
    ds_write_b128 v{vL16}, {vr(out + 4, 4)} offset:{L_WR + 1024}
    Lside_c:
    s_cmp_lg_u32 s{sW}, 6
    s_cbranch_scc1 Lside_d
    v_lshl_or_b32 v{vTP}, v{vTP + 1}, 16, v{vTP}
    v_lshlrev_b32 v{vT}, 2, v{vLANE}
    ds_write_b32 v{vT}, v{vTP} offset:{L_CG}
    v_mov_b32 v{vT}, {XBYTES}
    v_mov_b32 v{vT + 1}, {L_ZERO}
    v_mov_b32 v{vT + 2}, 0
    ds_write_b64 v{vT + 2}, {vr(vT, 2)} offset:{L_NULL}
    Lside_d:
    """)


vW = 208
vWF = 224


def wmix_loads(a):
    a(f"""
    v_lshrrev_b32 v{vT}, 5, v0
    v_and_b32 v{vT + 1}, 31, v0
    v_lshlrev_b32 v{vT}, 11, v{vT}
    v_lshl_add_u32 v{vT}, v{vT + 1}, 3, v{vT}
    """)
    for j in range(8):
        a(f"global_load_dwordx2 {vr(vW + 2 * j, 2)}, v{vT}, s[18:19] offset:{256 * j}")


def wmix_finish(a):
    a(f"""
    s_mov_b32 s{sTMP}, 0x05040100
    s_mov_b32 s{sTMP + 1}, 0x07060302
    v_bfe_u32 v{vT}, v0, 3, 2
    v_lshrrev_b32 v{vT + 1}, 7, v0
    v_lshlrev_b32 v{vT}, 13, v{vT}
    v_lshl_add_u32 v{vT}, v{vT + 1}, 11, v{vT}
    v_bfe_u32 v{vT + 1}, v0, 5, 2
    v_lshl_add_u32 v{vT}, v{vT + 1}, 8, v{vT}
    v_and_b32 v{vT + 1}, 7, v0
    v_lshl_add_u32 v{vT}, v{vT + 1}, 5, v{vT}
    """)
    for nn in range(2):
        for t in range(2):
            f = vWF + 4 * (2 * nn + t)
            for jj in range(4):
                a(f"v_perm_b32 v{f + jj}, v{vW + 2 * (2 * jj + 1) + nn}, v{vW + 2 * (2 * jj) + nn}, s{sTMP + t}")
            a(f"ds_write_b128 v{vT}, {vr(f, 4)} offset:{L_WM + 1024 * t + 16 * nn}")


def phase_a(a, o):
    vD, vS, vY, vF = vXB, vXB + 2, vXB + 4, vXB + 8
    vQ, vRK, vKK, vC, vSC, vTG = vXB + 12, vXB + 14, vXB + 16, vXB + 20, vXB + 24, vXB + 28
    st = "sc1"
    a(f"""
    s_mul_i32 s3, s2, {CH * 4}
    v_lshl_add_u32 v{vT + 3}, v0, 3, s3
    v_lshlrev_b32 v{vT + 4}, 1, v{vT + 3}
    s_cmp_lt_u32 s2, {NPROD}
    s_cselect_b32 s{sT}, 5, 0
    s_cmp_lt_u32 s{sW}, s{sT}
    s_cselect_b32 s{sBIG}, 1, 0
    s_waitcnt lgkmcnt(0)
    s_cbranch_scc0 La_noload
    global_load_dwordx2 {vr(vD, 2)}, v{vT + 3}, s[8:9]
    La_noload:
    s_add_u32 s{sREC}, s{sWS}, {WS_EPOCH}
    s_addc_u32 s{sREC + 1}, s{sWS + 1}, 0
    s_load_dword s{sTAG}, {sr(sREC, 2)}, 0
    s_barrier
    s_cmp_eq_u32 s{sBIG}, 0
    s_cbranch_scc1 La_noload2
    global_load_dwordx2 {vr(vS, 2)}, v{vT + 3}, s[6:7]
    global_load_dwordx4 {vr(vY, 4)}, v{vT + 4}, s[10:11]
    global_load_dwordx4 {vr(vF, 4)}, v{vT + 4}, s[12:13]
    La_noload2:
    """)
    side_loads(a)
    nw = 8 if o.wmat == 0 else 0
    if nw:
        wmix_loads(a)
    setup_consumer(a, o)
    a(f"""
    s_lshl_b32 s{sT}, s2, 11
    v_lshl_add_u32 v{vT + 6}, v0, 4, s{sT}
    v_lshlrev_b32 v{vT + 7}, 3, v0
    s_waitcnt lgkmcnt(0)
    s_add_u32 s{sREC}, s{sWS}, {WS_REC}
    s_addc_u32 s{sREC + 1}, s{sWS + 1}, 0
    s_add_u32 s{sTAG}, s{sTAG}, 0x9e3779b9
    v_mov_b32 v{vTG}, s{sTAG}
    v_mov_b32 v{vTG + 1}, s{sTAG}
    v_mov_b32 v{vKK + 1}, s{sTAG}
    v_mov_b32 v{vKK + 3}, s{sTAG}
    s_cmp_eq_u32 s{sBIG}, 0
    s_cbranch_scc1 La_other
    s_waitcnt vmcnt({3 + nw})
    """)
    stamp(a, o, 1)
    for k in range(2):
        a(f"""
        v_and_b32 v{vQ + k}, 255, v{vD + k}
        v_lshlrev_b32 v{vQ + k}, 2, v{vQ + k}
        ds_add_rtn_u32 v{vRK + k}, v{vQ + k}, v{vONE} offset:{L_HIST}
        """)
    a(f"""
    s_waitcnt lgkmcnt(0)
    s_barrier
    ds_read_b128 {vr(vC, 4)}, v{vL16} offset:{L_HIST}
    ds_read_b64 {vr(vE, 2)}, v{vT + 7} offset:{L_HIST}
    s_waitcnt lgkmcnt(1)
    v_add_u32 v{vT}, v{vC}, v{vC + 1}
    v_add_u32 v{vT + 1}, v{vT}, v{vC + 2}
    v_add_u32 v{vT + 2}, v{vT + 1}, v{vC + 3}
    v_mov_b32 v{vT + 3}, v{vT + 2}
    """)
    wave_scan(a, vT + 3)
    a(f"""
    v_sub_u32 v{vSC}, v{vT + 3}, v{vT + 2}
    v_add_u32 v{vSC + 1}, v{vSC}, v{vC}
    v_add_u32 v{vSC + 2}, v{vSC}, v{vT}
    v_add_u32 v{vSC + 3}, v{vSC}, v{vT + 1}
    ds_write_b128 v{vL16}, {vr(vSC, 4)} offset:{L_START}
    ds_read_b64 {vr(vE + 2, 2)}, v{vT + 7} offset:{L_START}
    ds_read_b32 v{vT}, v{vQ} offset:{L_START}
    ds_read_b32 v{vT + 1}, v{vQ + 1} offset:{L_START}
    s_mov_b32 s{sT}, {L_STAGE}
    s_cmp_ge_u32 s{sW}, 2
    s_cbranch_scc1 La_notab
    s_waitcnt lgkmcnt(2)
    v_lshl_or_b32 v{vC}, v{vE}, 16, v{vE + 2}
    v_mov_b32 v{vC + 1}, s{sTAG}
    v_lshl_or_b32 v{vC + 2}, v{vE + 1}, 16, v{vE + 3}
    v_mov_b32 v{vC + 3}, s{sTAG}
    global_store_dwordx4 v{vT + 6}, {vr(vC, 4)}, {sr(sWS, 2)} {st}
    s_waitcnt vmcnt({1 + nw})
    s_branch La_tabdone
    La_notab:
    s_waitcnt vmcnt({nw})
    La_tabdone:
    """)
    for k in range(2):
        a(f"""
        v_mul_u32_u24 v{vT + 2}, 13, v{vS + k}
        v_lshrrev_b32 v{vT + 2}, 14, v{vT + 2}
        v_min_u32 v{vT + 2}, 7, v{vT + 2}
        v_bfe_u32 v{vKK + 2 * k}, v{vD + k}, 8, 6
        v_lshl_or_b32 v{vKK + 2 * k}, v{vT + 2}, 6, v{vKK + 2 * k}
        v_lshl_or_b32 v{vKK + 2 * k}, v{vS + k}, 10, v{vKK + 2 * k}
        """)
    a("s_waitcnt lgkmcnt(0)")
    for k in range(2):
        a(f"""
        v_add_u32 v{vRK + k}, v{vRK + k}, v{vT + k}
        v_lshl_add_u32 v{vT + 2}, v{vRK + k}, 4, s{sT}
        v_add_u32 v{vT + 3}, {CH * 16}, v{vT + 2}
        ds_write2_b64 v{vT + 2}, {vr(vKK + 2 * k, 2)}, {vr(vY + 2 * k, 2)} offset0:0 offset1:1
        ds_write2_b64 v{vT + 3}, {vr(vF + 2 * k, 2)}, {vr(vTG, 2)} offset0:0 offset1:1
        """)
    a(f"""
    s_branch La_join
    La_other:
    s_cmp_ge_u32 s{sW}, 2
    s_cbranch_scc1 La_notab2
    v_mov_b32 v{vKK}, 0
    v_mov_b32 v{vKK + 2}, 0
    global_store_dwordx4 v{vT + 6}, {vr(vKK, 4)}, {sr(sWS, 2)} {st}
    La_notab2:
    s_barrier
    s_waitcnt vmcnt({nw})
    """)
    side_finish(a)
    a(f"""
    La_join:
    s_mov_b32 s{sT}, {L_STAGE}
    v_lshl_add_u32 v{vT + 4}, v0, 4, s{sT}
    s_mul_i32 s{sT}, s2, {CHB}
    v_lshl_add_u32 v{vT + 5}, v0, 4, s{sT}
    v_add_u32 v{vT + 6}, 8192, v{vT + 5}
    v_add_u32 v{vKA}, {CH * 16}, v{vT + 5}
    v_add_u32 v{vEA}, {CH * 16 + 8192}, v{vT + 5}
    s_cmp_lt_u32 s{sW}, 2
    s_cselect_b32 s{sBIG}, 2, 1
    s_cmp_lt_u32 s2, {NPROD}
    s_cselect_b32 s{sBIG}, s{sBIG}, 0
    s_waitcnt vmcnt(1) lgkmcnt(0)
    s_barrier
    """)
    stamp(a, o, 2)
    a(f"""
    ds_read_b128 {vr(vY, 4)}, v{vT + 4}
    ds_read_b128 {vr(vF, 4)}, v{vT + 4} offset:8192
    ds_read_b128 {vr(vS1, 4)}, v{vT + 4} offset:{CH * 16}
    ds_read_b128 {vr(vS1 + 4, 4)}, v{vT + 4} offset:{CH * 16 + 8192}
    s_cmp_lt_u32 s{sW}, 2
    s_cbranch_scc1 La_w0
    s_waitcnt vmcnt(0)
    La_w0:
    s_cmp_eq_u32 s{sBIG}, 0
    s_cbranch_scc1 La_nostore
    s_waitcnt lgkmcnt(3)
    global_store_dwordx4 v{vT + 5}, {vr(vY, 4)}, {sr(sREC, 2)} {st}
    s_cmp_eq_u32 s{sBIG}, 1
    s_cbranch_scc1 La_nostore
    s_waitcnt lgkmcnt(2)
    global_store_dwordx4 v{vT + 6}, {vr(vF, 4)}, {sr(sREC, 2)} {st}
    La_nostore:
    """)
    stamp(a, o, 3)


def setup_consumer(a, o):
    a(f"""
    s_and_b32 s{sQ}, s2, 7
    s_lshl_b32 s{sQ}, s{sQ}, 5
    s_lshr_b32 s{sT}, s2, 3
    s_or_b32 s{sQ}, s{sQ}, s{sT}
    s_mov_b32 s{sPF}, s{sT}
    v_lshlrev_b32 v{vPFA}, 7, v0
    s_mov_b32 s{sX}, s4
    s_and_b32 s{sX + 1}, s5, 0xffff
    s_mov_b32 s{sX + 2}, {XBYTES}
    s_mov_b32 s{sX + 3}, 0x20000
    s_and_b32 s{sO + 1}, s{sO + 1}, 0xffff
    s_mov_b32 s{sO + 2}, {XBYTES}
    s_mov_b32 s{sO + 3}, 0x20000
    s_mov_b32 s{sRND}, 0
    s_mov_b32 s{sLN2}, {f32(-0.6931471805599453):#x}
    s_mov_b32 s{sLN2 + 1}, {f32(-0.6931471805599453):#x}
    """)


def gen_main(a, o):
    kn = NAME + "_kernel"
    fused, D = o.fused, o.D
    ld = "sc1" if fused else ""
    a(".p2align 8")
    a(f".globl {kn}")
    a(f".type {kn},@function")
    a(f"{kn}:")
    vG0 = vXB
    vG1 = vTP
    vBA = vU + 8
    vRK = vU + 16
    vMP = vU + 24
    vEN = vE
    vK = [vG0 + 4 * j for j in range(SLOTS)]
    entry(a, o, "m")
    phase_a(a, o)
    a(f"""
    s_lshl_b32 s{sT}, s{sQ}, 3
    v_lshrrev_b32 v{vT + 2}, 1, v0
    v_lshl_add_u32 v{vT + 3}, v{vT + 2}, 11, s{sT}
    """)
    if o.wmat == 0:
        wmix_finish(a)
    if o.wmat == 1:
        wmix_loads(a)
    if o.wmat == 3:
        for i in range(40):
            a(f"v_mov_b32 v{vACC + i}, 0")
    a(f"global_load_dwordx2 {vr(vEN, 2)}, v{vT + 3}, {sr(sWS, 2)} sc1")
    if o.wmat in (2, 3):
        wmix_loads(a)
    if o.wmat != 3:
        for i in range(40):
            a(f"v_mov_b32 v{vACC + i}, 0")
    a(f"""
    v_mul_u32_u24 v{vREC16}, {CHB}, v{vT + 2}
    v_and_b32 v{vT + 4}, 1, v0
    v_mov_b32 v{vT + 5}, {L_MAX}
    v_lshlrev_b32 v{vREC4}, 4, v0
    v_add_u32 v{vREC4}, {L_PAY}, v{vREC4}
    s_mov_b32 s{sSPIN}, {o.spin}
    """)
    if o.wmat in (2, 3):
        a("""
        s_waitcnt vmcnt(8)
        s_branch Lm_poll2
        """)
    a(f"""
    Lm_poll:
    s_waitcnt vmcnt(0)
    Lm_poll2:
    v_cmp_ne_u32 vcc, s{sTAG}, v{vEN + 1}
    s_cbranch_vccz Lm_ready
    s_sub_u32 s{sSPIN}, s{sSPIN}, 1
    s_cbranch_scc1 Lm_end
    s_mov_b64 exec, vcc
    global_load_dwordx2 {vr(vEN, 2)}, v{vT + 3}, {sr(sWS, 2)} sc1
    s_branch Lm_poll
    Lm_ready:
    s_mov_b64 exec, -1
    """)
    stamp(a, o, 4)
    a(f"""
    v_and_b32 v{vT}, 0xffff, v{vEN}
    v_lshrrev_b32 v{vREM}, 16, v{vEN}
    v_add_u32 v{vT}, v{vT}, v{vT + 4}
    v_lshl_add_u32 v{vREC16}, v{vT}, 4, v{vREC16}
    v_add_u32 v{vREC1}, {CH * 16}, v{vREC16}
    v_cmp_lt_u32 vcc, {2 * SLOTS}, v{vREM}
    s_and_saveexec_b64 {sr(sTMP, 2)}, vcc
    ds_max_u32 v{vT + 5}, v{vREM}
    s_mov_b64 exec, -1
    v_sub_u32 v{vREM}, v{vREM}, v{vT + 4}
    Lm_round:
    """)
    for j in range(SLOTS):
        a(f"v_cmp_lt_i32 {sr(sM + 2 * j, 2)}, {2 * j}, v{vREM}")

    def per_slot(label, body):
        for j in range(SLOTS):
            a(f"s_mov_b64 exec, {sr(sM + 2 * j, 2)}")
            a(f"s_cbranch_execz {label}")
            body(j)
        a(f"{label}:")
        a("s_mov_b64 exec, -1")

    def check(j, v, retry):
        a(f"v_cmp_ne_u32 vcc, s{sTAG}, v{v}")
        a(f"s_cbranch_vccnz {retry}")

    a("Lm_g0:")
    per_slot("Lm_ld", lambda j: a(f"global_load_dwordx4 {vr(vG0 + 4 * j, 4)}, v{vREC16}, {sr(sREC, 2)} offset:{32 * j} sc1"))
    if o.wmat == 1:
        a(f"""
        s_cmp_lg_u32 s{sRND}, 0
        s_cbranch_scc1 Lm_nowm
        """)
        wmix_finish(a)
        a("Lm_nowm:")
    a(f"""
    s_cmp_eq_u32 s{sBIG}, 0
    s_cbranch_scc1 Lm_s0
    s_waitcnt lgkmcnt(0)
    global_store_dwordx4 v{vKA}, {vr(vS1, 4)}, {sr(sREC, 2)} sc1
    s_cmp_eq_u32 s{sBIG}, 1
    s_cbranch_scc1 Lm_s1
    global_store_dwordx4 v{vEA}, {vr(vS1 + 4, 4)}, {sr(sREC, 2)} sc1
    s_waitcnt vmcnt(2)
    s_branch Lm_s2
    Lm_s0:
    s_waitcnt vmcnt(0)
    Lm_s1:
    s_waitcnt vmcnt(1)
    Lm_s2:
    s_mov_b32 s{sBIG}, 0
    """)
    per_slot("Lm_ck0", lambda j: check(j, vG0 + 4 * j + 1, "Lm_re0"))
    stamp(a, o, 5)

    def ldg1(j):
        a(f"global_load_dwordx3 {vr(vG1 + 4 * j, 3)}, v{vREC1}, {sr(sREC, 2)} offset:{32 * j} sc1")

    def hist1(j):
        a(f"v_and_b32 v{vBA + j}, 63, v{vK[j]}")
        a(f"v_lshlrev_b32 v{vBA + j}, 2, v{vBA + j}")
        a(f"ds_add_u32 v{vBA + j}, v{vONE} offset:{L_DEG}")
        if o.g1at == 0:
            ldg1(j)
        a(f"ds_write_b64 v{vREC4}, {vr(vG0 + 4 * j + 2, 2)} offset:{8192 * j}")
    per_slot("Lm_h1", hist1)
    a(f"""
    s_cmp_lg_u32 s{sRND}, 0
    s_cbranch_scc1 Lm_bins
    """)
    if o.wmat >= 2:
        wmix_finish(a)
    a(f"""
    v_lshlrev_b32 v{vT + 1}, 2, v{vLANE}
    s_mul_i32 s{sT}, s{sW}, 5
    s_waitcnt lgkmcnt(0)
    s_barrier
    """)
    stamp(a, o, 6)
    a(f"""
    ds_read_b32 v{vT}, v{vT + 1} offset:{L_DEG}
    ds_read_b32 v{vT + 5}, v{vT + 5}
    """)
    prefetch(a, o.pf2)
    a(f"""
    v_sub_u32 v{vT + 2}, 63, v{vLANE}
    s_add_u32 s{sTMP}, s{sT}, 1
    s_add_u32 s{sTMP + 1}, s{sT}, 2
    s_add_u32 s{sTMP + 2}, s{sT}, 3
    s_add_u32 s{sTMP + 3}, s{sT}, 4
    s_waitcnt lgkmcnt(0)
    v_lshl_or_b32 v{vT}, v{vT}, 6, v{vT + 2}
    v_readfirstlane_b32 s{sMAX}, v{vT + 5}
    v_readlane_b32 s{sRING}, v{vT}, s{sT}
    v_readlane_b32 s{sRING + 1}, v{vT}, s{sTMP}
    v_readlane_b32 s{sRING + 2}, v{vT}, s{sTMP + 1}
    v_readlane_b32 s{sRING + 3}, v{vT}, s{sTMP + 2}
    v_readlane_b32 s{sRING + 4}, v{vT}, s{sTMP + 3}
    """)
    for k in range(5):
        a(f"v_cmp_lt_u32 {sr(sTMP + 2 * k, 2)}, s{sRING + k}, v{vT}")
    for k in range(5):
        a(f"s_bcnt1_i32_b64 s{sRING + 8 + k}, {sr(sTMP + 2 * k, 2)}")
    for k in range(5):
        a(f"v_writelane_b32 v{vT + 2}, s{sRING + 8 + k}, {k}")
    a(f"""
    s_mov_b64 exec, 31
    v_lshrrev_b32 v{vT}, 3, v{vT + 2}
    v_and_b32 v{vT + 3}, 7, v{vT + 2}
    v_cmp_lt_u32 vcc, 15, v{vT + 2}
    v_xor_b32 v{vT + 4}, 7, v{vT + 3}
    v_add_u32 v{vT + 5}, s{sT}, v{vLANE}
    v_cndmask_b32 v{vT + 3}, v{vT + 3}, v{vT + 4}, vcc
    v_lshlrev_b32 v{vT + 2}, 5, v{vT + 3}
    v_lshl_or_b32 v{vT + 2}, v{vT}, 19, v{vT + 2}
    v_mad_u32_u24 v{vT + 3}, v{vT + 3}, 5, v{vT}
    v_lshlrev_b32 v{vT + 4}, 2, v{vT + 5}
    v_lshlrev_b32 v{vT + 3}, 2, v{vT + 3}
    ds_write_b32 v{vT + 4}, v{vT + 2} offset:{L_MAP}
    ds_write_b32 v{vT + 3}, v{vT + 5} offset:{L_INV}
    s_mov_b64 exec, -1
    """)
    a(f"""
    v_and_b32 v{vT}, 3, v0
    v_lshlrev_b32 v{vT}, 5, v{vT}
    ds_read_b128 {vr(vWR, 4)}, v{vL16} offset:{L_WR}
    ds_read_b128 {vr(vWR + 4, 4)}, v{vL16} offset:{L_WR + 1024}
    ds_read_b128 {vr(vCG, 4)}, v{vT} offset:{L_CG}
    ds_read_b128 {vr(vCG + 4, 4)}, v{vT} offset:{L_CG + 16}
    s_waitcnt lgkmcnt(4)
    s_barrier
    """)
    prefetch(a, o.pf3)
    a("Lm_bins:")
    stamp(a, o, 7)

    def rdmap(j):
        a(f"ds_read_b32 v{vMP + j}, v{vBA + j} offset:{L_MAP}")
        a(f"v_bfe_u32 v{vBA + j}, v{vK[j]}, 6, 3")
        a(f"v_and_b32 v{vK[j]}, 0xfffffc00, v{vK[j]}")
    per_slot("Lm_mp", rdmap)
    a("s_waitcnt lgkmcnt(0)")

    def hist2(j):
        a(f"v_and_b32 v{vRK + j}, 0xffff, v{vMP + j}")
        a(f"v_lshl_add_u32 v{vBA + j}, v{vBA + j}, 2, v{vRK + j}")
        a(f"ds_add_rtn_u32 v{vRK + j}, v{vBA + j}, v{vONE} offset:{L_BIN}")
        a(f"v_lshrrev_b32 v{vMP + j}, 16, v{vMP + j}")
        a(f"v_or_b32 v{vK[j]}, v{vK[j]}, v{vMP + j}")
        if o.g1at == 1:
            ldg1(j)
    per_slot("Lm_h2", hist2)
    a(f"""
    v_lshlrev_b32 v{vT + 1}, 2, v{vLANE}
    s_lshl_b32 s{sT}, s{sW}, 3
    s_add_u32 s{sTMP}, s{sT}, 7
    v_lshrrev_b32 v{vT + 3}, 3, v{vLANE}
    s_waitcnt lgkmcnt(0)
    s_barrier
    """)
    stamp(a, o, 8)
    a(f"""
    ds_read_b32 v{vT}, v{vT + 1} offset:{L_BIN}
    s_waitcnt lgkmcnt(0)
    v_mov_b32 v{vT + 2}, v{vT}
    """)
    wave_scan(a, vT + 2)
    a(f"""
    v_lshl_add_u32 v{vT + 2}, v{vT + 3}, 4, v{vT + 2}
    v_sub_u32 v{vT}, v{vT + 2}, v{vT}
    """)
    for j in range(SLOTS):
        if j:
            a(f"s_cmp_eq_u64 {sr(sM + 2 * j, 2)}, 0")
            a("s_cbranch_scc1 Lm_bp")
        a(f"ds_bpermute_b32 v{vMP + j}, v{vBA + j}, v{vT}")
    a(f"""
    Lm_bp:
    v_readlane_b32 s{sSTART}, v{vT}, s{sT}
    v_readlane_b32 s{sN}, v{vT + 2}, s{sTMP}
    v_readlane_b32 s{sBIG}, v{vT + 2}, 63
    v_mov_b32 v{vT + 4}, {XBYTES}
    v_mov_b32 v{vT + 5}, {L_ZERO}
    s_mov_b32 s{sTMP + 2}, {L_ENT}
    v_add_u32 v{vT + 2}, s{sN}, v{vLANE}
    v_lshl_add_u32 v{vT + 2}, v{vT + 2}, 3, s{sTMP + 2}
    s_cmp_eq_u32 s{sW}, 7
    s_cselect_b64 exec, -1, 0xffff
    ds_write_b64 v{vT + 2}, {vr(vT + 4, 2)}
    s_mov_b64 exec, -1
    s_sub_u32 s{sN}, s{sN}, s{sSTART}
    s_lshl_b32 s{sSTART}, s{sSTART}, 3
    s_add_u32 s{sSTART}, s{sSTART}, {L_ENT}
    v_lshl_add_u32 v{vKA}, v{vLANE}, 3, s{sSTART}
    v_lshrrev_b32 v{vYA}, 2, v{vLANE}
    v_lshl_add_u32 v{vYA}, v{vYA}, 3, s{sSTART}
    v_bfe_u32 v{vT}, v{vLANE}, 3, 2
    v_and_b32 v{vT + 1}, 3, v{vLANE}
    v_lshl_add_u32 v{vT}, v{vT}, 2, v{vT + 1}
    v_lshl_add_u32 v{vEA}, v{vT}, 3, s{sSTART}
    s_waitcnt lgkmcnt(1)
    """)

    def wr(j):
        a(f"v_add_u32 v{vRK + j}, v{vRK + j}, v{vMP + j}")
        a(f"v_lshl_add_u32 v{vRK + j}, v{vRK + j}, 3, s{sTMP + 2}")
        a(f"v_add_u32 v{vMP + j}, {8192 * j}, v{vREC4}")
        a(f"ds_write2_b32 v{vRK + j}, v{vK[j]}, v{vMP + j} offset0:0 offset1:1")
        if o.g1at == 2:
            ldg1(j)
    per_slot("Lm_wr", wr)
    a(f"""
    s_mov_b32 s{sTMP}, 0x0f0f0f0f
    s_mov_b32 s{sTMP + 1}, 0xf0f0f0f0
    v_mov_b32 v{vT}, {L_NULL}
    v_mov_b32 v{vT + 1}, {L_NULL - 32}
    v_mov_b32 v{vT + 2}, 128
    v_cndmask_b32 v{vT}, v{vT}, v{vEA}, {sr(sTMP, 2)}
    v_cndmask_b32 v{vEA}, v{vT + 1}, v{vEA}, {sr(sTMP, 2)}
    v_cndmask_b32 v{vEINC}, 0, v{vT + 2}, {sr(sTMP, 2)}
    s_waitcnt lgkmcnt(0)
    s_barrier
    """)
    stamp(a, o, 9)
    vK0, vPE0, vEF0 = vT + 1, vT + 2, vTP
    npf = (1 if o.pf2 else 0) + (1 if o.pf3 else 0)
    a(f"""
    ds_read_b32 v{vK0}, v{vKA}
    ds_read_b32 v{vPE0}, v{vT} offset:4
    ds_read_b32 v{vPE}, v{vEA} offset:{4 + 32}
    ds_read_b32 v{vPY}, v{vYA} offset:4
    ds_read_b32 v{vKEY}, v{vKA} offset:{8 * D}
    v_lshlrev_b32 v{vT + 3}, 2, v{vLANE}
    v_mov_b32 v{vT + 4}, 0
    ds_write_b32 v{vT + 3}, v{vT + 4} offset:{L_BIN}
    s_add_u32 s{sN}, s{sN}, 3
    s_lshr_b32 s{sN}, s{sN}, 2
    s_waitcnt lgkmcnt(5)
    """)
    for i in range(D + 2):
        a(f"v_readlane_b32 s{sRING + i}, v{vK0}, {i}")
    D0 = min(D, o.D0)

    def rowld(i):
        a(f"s_and_b32 s{sOFF}, s{sRING + i}, 0xfffffc00")
        a(f"buffer_load_dwordx4 {vr(vXB + 4 * i, 4)}, v{vL16}, {sr(sX, 4)}, s{sOFF} offen")
    for i in range(D0):
        rowld(i)
    if o.g1at:
        npf = 0
    a(f"s_waitcnt vmcnt({D0 + npf})")
    if npf:
        a(f"""
        s_cmp_eq_u32 s{sRND}, 0
        s_cbranch_scc1 Lm_g1
        s_waitcnt vmcnt({D0})
        """)
    a("Lm_g1:")
    per_slot("Lm_ck1", lambda j: check(j, vG1 + 4 * j + 2, "Lm_re1"))
    per_slot("Lm_wp", lambda j: a(f"ds_write_b64 v{vREC4}, {vr(vG1 + 4 * j, 2)} offset:{8192 * j + 8}"))
    a(f"""
    s_waitcnt lgkmcnt(0)
    s_barrier
    s_cmp_eq_u32 s{sN}, 0
    s_cbranch_scc1 Lm_done
    s_sub_u32 s{sN}, s{sN}, 1
    ds_read2_b64 {vr(vEF0, 4)}, v{vPE0} offset0:1 offset1:1
    ds_read_b64 {vr(vYN, 2)}, v{vPY}
    ds_read2_b64 {vr(vEF, 4)}, v{vPE} offset0:1 offset1:1
    """)
    for i in range(D0, D):
        rowld(i)
    a(f"s_and_b32 s{sOFF}, s{sRING + D}, 0xfffffc00")
    a(f"s_and_b32 s{sOFF + 1}, s{sRING + D + 1}, 0xfffffc00")

    def mz(h, ef):
        a(f"v_mfma_f32_32x32x16_bf16 {vr(vU + 16 * h, 16)}, {vr(ef, 4)}, {vr(vWR + 4 * h, 4)}, 0")

    def dot(n):
        i, p = n & 3, n >> 2
        c = f"v{vAT + i}" if p else "0"
        a(f"v_dot2_f32_bf16 v{vAT + i}, v{vYN + p}, v{vCG + 2 * i + p}, {c}")

    a("s_waitcnt lgkmcnt(0)")
    mz(0, vEF0)
    mz(1, vEF0)
    for n in range(8):
        dot(n)
    a(f"v_add_u32 v{vEA}, v{vEINC}, v{vEA}")
    a(f"v_add_u32 v{vYA}, 128, v{vYA}")
    a(f"v_add_u32 v{vKA}, 128, v{vKA}")
    a(f"v_cvt_pk_bf16_f32 v{vA}, v{vAT}, v{vAT + 1}")
    a(f"v_cvt_pk_bf16_f32 v{vA + 1}, v{vAT + 2}, v{vAT + 3}")
    tmp = vTP + 8
    for r in range(8):
        a(f"v_exp_f32 v{tmp + r}, v{vU + 16 * (r >> 2) + (r & 3)}")
    a("s_nop 0")
    for r in range(0, 8, 2):
        a(f"v_pk_add_f32 {vr(tmp + r, 2)}, {vr(tmp + r, 2)}, 1.0 op_sel_hi:[1,0]")
    for r in range(8):
        a(f"v_rcp_f32 v{tmp + r}, v{tmp + r}")
    a("s_nop 0")
    for r in range(0, 8, 2):
        a(f"v_pk_mul_f32 {vr(vR + r, 2)}, {vr(vU + 16 * (r >> 2) + (r & 3), 2)}, {vr(tmp + r, 2)}")
    mz(0, vEF)
    a("s_nop 7")
    stamp(a, o, 10)
    a(".p2align 6")
    a("Lm_loop:")
    for P in range(8):
        g, hf = P >> 1, P & 1
        i0 = 2 * P
        sn = vU + 16 * hf + 4 * g
        dn = vR + 8 * ((g + 1) & 1) + 4 * hf
        cur = vR + 8 * (g & 1) + 2 * hf
        a(f"s_waitcnt vmcnt({D - 2})")
        for k in range(2):
            a(f"buffer_load_dwordx4 {vr(vXB + 4 * ((i0 + k + D) & 7), 4)}, v{vL16}, {sr(sX, 4)}, s{sOFF + k} offen")
        for k in range(2):
            xb = vXB + 4 * ((i0 + k) & 7)
            for h in range(2):
                a(f"v_mfma_f32_4x4x4_16b_bf16 {vr(vTP + 8 * k + 4 * h, 4)}, {vr(vA, 2)}, {vr(xb + 2 * h, 2)}, 0 cbsz:4 abid:{i0 + k}")
                a(f"v_exp_f32 v{vE + 2 * k + h}, v{sn + 2 * k + h}")
        if P == 0:
            a("s_waitcnt lgkmcnt(0)")
        for k in range(2):
            a(f"v_readlane_b32 s{sRING + ((i0 + k + D + 2) & 15)}, v{vKEY}, {i0 + k + 2}")
        for k in range(2):
            a(f"v_pk_add_f32 {vr(vE + 2 * k, 2)}, {vr(vE + 2 * k, 2)}, 1.0 op_sel_hi:[1,0]")
        if P == 0:
            mz(1, vEF)
        if P == 7:
            mz(0, vEF)
        for r in range(4):
            a(f"v_rcp_f32 v{vE + r}, v{vE + r}")
        if P == 0:
            a(f"ds_read_b32 v{vPY}, v{vYA} offset:4")
            a(f"ds_read_b32 v{vPE}, v{vEA} offset:{4 + 32}")
        if P == 1:
            a("s_waitcnt lgkmcnt(0)")
            a(f"ds_read_b64 {vr(vYN, 2)}, v{vPY}")
            a(f"ds_read2_b64 {vr(vEF, 4)}, v{vPE} offset0:1 offset1:1")
        if P == 7:
            a(f"ds_read_b32 v{vKEY}, v{vKA} offset:{8 * D}")
        for k in range(2):
            a(f"s_and_b32 s{sOFF + k}, s{sRING + ((i0 + k + D + 2) & 15)}, 0xfffffc00")
        for k in range(2):
            a(f"s_set_gpr_idx_on s{sRING + i0}, 0xc" if k == 0 else f"s_set_gpr_idx_idx s{sRING + i0 + 1}")
            for q in range(4):
                a(f"v_pk_fma_f32 {vr(vACC + 2 * q, 2)}, {vr(cur + 4 * (q >> 1), 2)}, {vr(vTP + 8 * k + 2 * q, 2)}, "
                  f"{vr(vACC + 2 * q, 2)} op_sel:[{k},0,0] op_sel_hi:[{k},1,1]")
        a("s_set_gpr_idx_off")
        for k in range(2):
            a(f"v_pk_mul_f32 {vr(dn + 2 * k, 2)}, {vr(sn + 2 * k, 2)}, {vr(vE + 2 * k, 2)}")
        if P == 1:
            a(f"v_add_u32 v{vEA}, v{vEINC}, v{vEA}")
            a(f"v_add_u32 v{vYA}, 128, v{vYA}")
        if P == 2:
            a("s_waitcnt lgkmcnt(0)")
        if 2 <= P < 6:
            dot(2 * (P - 2))
            dot(2 * (P - 2) + 1)
        if P == 7:
            a(f"""
            v_cvt_pk_bf16_f32 v{vA}, v{vAT}, v{vAT + 1}
            v_cvt_pk_bf16_f32 v{vA + 1}, v{vAT + 2}, v{vAT + 3}
            v_add_u32 v{vKA}, 128, v{vKA}
            """)
        if hf:
            a(f"s_sub_u32 s{sN}, s{sN}, 1")
            a("s_cbranch_scc1 Lm_done" if P < 7 else "s_cbranch_scc0 Lm_loop")
    a("Lm_done:")
    stamp(a, o, 11)
    vWM = vU
    a(f"""
    s_add_u32 s{sRND}, s{sRND}, {2 * SLOTS}
    s_cmp_ge_u32 s{sRND}, s{sMAX}
    s_cbranch_scc1 Lm_epi
    s_waitcnt vmcnt(0) lgkmcnt(0)
    s_barrier
    s_mov_b32 s{sBIG}, 0
    v_subrev_u32 v{vREM}, {2 * SLOTS}, v{vREM}
    v_add_u32 v{vREC1}, {32 * SLOTS}, v{vREC1}
    v_add_u32 v{vREC16}, {32 * SLOTS}, v{vREC16}
    s_branch Lm_round
    Lm_epi:
    s_cmp_le_u32 s{sBIG}, {ENT_OWN - 64}
    s_cbranch_scc1 Lm_small
    s_waitcnt lgkmcnt(0)
    s_barrier
    Lm_small:
    s_mul_i32 s{sT}, s{sW}, {20 * ROWB}
    s_add_u32 s{sT}, s{sT}, {L_AGG}
    v_lshl_add_u32 v{vT}, v{vLANE}, 2, s{sT}
    s_lshr_b32 s{sTMP}, s{sW}, 2
    s_mul_i32 s{sTMP + 1}, s{sTMP}, 80
    v_lshrrev_b32 v{vT + 1}, 4, v{vLANE}
    v_lshl_add_u32 v{vT + 2}, v{vT + 1}, 2, s{sTMP + 1}
    s_and_b32 s{sTMP + 2}, s{sW}, 3
    s_lshl_b32 s{sTMP + 3}, s{sTMP + 2}, 13
    v_add_u32 v{vT + 4}, s{sTMP + 3}, v{vL16}
    """)
    vINV = vAT
    for s in range(5):
        acc = vACC + 8 * s
        for r in range(0, 8, 2):
            a(f"v_pk_mul_f32 {vr(acc + r, 2)}, {vr(acc + r, 2)}, {sr(sLN2, 2)}")
        for r in range(4):
            a(f"v_cvt_pk_bf16_f32 v{acc + r}, v{acc + r}, v{acc + 4 + r}")
        a(f"ds_write2_b32 v{vT}, v{acc}, v{acc + 1} offset0:0 offset1:{ROWB // 4}")
        a(f"ds_write2_b32 v{vT}, v{acc + 2}, v{acc + 3} offset0:{2 * ROWB // 4} offset1:{3 * ROWB // 4}")
        if s < 4:
            a(f"v_add_u32 v{vT}, {4 * ROWB}, v{vT}")
    a("s_waitcnt lgkmcnt(0)")
    for mt in range(5):
        a(f"ds_read_b32 v{vINV + mt}, v{vT + 2} offset:{L_INV + 16 * mt}")
    for i in range(8):
        a(f"ds_read_b128 {vr(vWM + 4 * i, 4)}, v{vT + 4} offset:{L_WM + 1024 * i}")
    a(f"""
    v_and_b32 v{vT + 3}, 15, v{vLANE}
    v_mul_u32_u24 v{vT}, {ROWB}, v{vT + 3}
    v_lshl_add_u32 v{vT}, v{vT + 1}, 4, v{vT}
    s_mul_i32 s{sTMP + 1}, s{sTMP}, {80 * ROWB}
    s_add_u32 s{sTMP + 1}, s{sTMP + 1}, {L_AGG}
    v_add_u32 v{vT}, s{sTMP + 1}, v{vT}
    s_lshl_b32 s{sT}, s{sTMP + 2}, 8
    s_lshl_b32 s{sTMP + 1}, s{sQ}, 10
    s_add_u32 s{sT}, s{sT}, s{sTMP + 1}
    v_lshl_add_u32 v{vT + 3}, v{vT + 3}, 4, s{sT}
    s_waitcnt vmcnt(0)
    s_barrier
    """)
    a("s_waitcnt lgkmcnt(0)")
    stamp(a, o, 12)

    def frag(mt, s):
        return vWR + 16 * mt + 4 * s

    def rd(mt):
        for s in range(4):
            a(f"ds_read_b128 {vr(frag(mt, s), 4)}, v{vT} offset:{16 * ROWB * mt + 64 * s}")
    for mt in range(3):
        rd(mt)
    for mt in range(5):
        a(f"v_lshl_add_u32 v{vINV + mt}, v{vINV + mt}, 18, v{vT + 3}")
    vD = vACC

    def fin(mt):
        d = vD + 8 * mt
        for r in range(4):
            a(f"v_cvt_pk_bf16_f32 v{d + r}, v{d + 2 * r}, v{d + 2 * r + 1}")
        a(f"buffer_store_dwordx4 {vr(d, 4)}, v{vINV + mt}, {sr(sO, 4)}, 0 offen {o.st_out}")
    for mt in range(5):
        d = vD + 8 * mt
        pend = min(mt + 3, 5) - mt - 1
        for s in range(4):
            a(f"s_waitcnt lgkmcnt({4 * pend + 3 - s})")
            for t in range(2):
                c = vr(d + 4 * t, 4) if s else "0"
                a(f"v_mfma_f32_16x16x32_bf16 {vr(d + 4 * t, 4)}, {vr(frag(mt, s), 4)}, {vr(vWM + 8 * s + 4 * t, 4)}, {c}")
        if mt + 3 < 5:
            rd(mt + 3)
        if mt:
            fin(mt - 1)
    a("s_nop 7")
    fin(4)
    if fused:
        a(f"""
        s_or_b32 s{sT}, s2, s{sW}
        s_cmp_lg_u32 s{sT}, 0
        s_cbranch_scc1 Lm_noep
        v_mov_b32 v{vT}, {WS_EPOCH}
        v_mov_b32 v{vT + 1}, s{sTAG}
        s_mov_b64 exec, 1
        global_store_dword v{vT}, v{vT + 1}, {sr(sWS, 2)} sc1
        Lm_noep:
        """)
    if o.stamps:
        a("s_waitcnt vmcnt(0)")
    stamp(a, o, 13)
    stamp_flush(a, o, 14, 1)
    a(f"""
    Lm_end:
    s_endpgm
    Lm_re0:
    s_sub_u32 s{sSPIN}, s{sSPIN}, 1
    s_cbranch_scc0 Lm_g0
    s_endpgm
    Lm_re1:
    s_sub_u32 s{sSPIN}, s{sSPIN}, 1
    s_cbranch_scc1 Lm_end
    """)
    per_slot("Lm_rl1", lambda j: a(f"global_load_dwordx3 {vr(vG1 + 4 * j, 3)}, v{vREC1}, {sr(sREC, 2)} offset:{32 * j} sc1"))
    a("""
    s_waitcnt vmcnt(0)
    s_branch Lm_g1
    """)


def generate(o):
    a = Asm()
    ref = open(f"cdna_kernels/{NAME}.s.ref").read().split("\n")
    for ln in ref:
        if ln.startswith("; Override"):
            break
        a.lines.append(ln)
    kerns = []
    if not o.fused:
        a.lines.append(f"; @launch kernel=tfn_sort_kernel grid=(256,1,1) block=(512,1,1) lds={L_STAGE + CHB}")
        kerns.append(("tfn_sort_kernel", NV))
    if o.fused and o.stamps != 1:
        a.lines.append(f"; @launch grid=(256,1,1) block=(512,1,1) lds={L_END}")
    else:
        a.lines.append(f"; @launch kernel={NAME}_kernel grid=(256,1,1) block=(512,1,1) lds={L_END}")
    kerns.append((NAME + "_kernel", NV))
    if o.stamps == 1:
        a.lines.append("; @launch kernel=diag_end_kernel grid=(1,1,1) block=(64,1,1) lds=0")
    a('.amdgcn_target "amdgcn-amd-amdhsa--gfx950"')
    a(".text")
    gen_main(a, o)
    if o.stamps == 1:
        kerns.append(("diag_end_kernel", 8))
        a(f"""
        .p2align 8
        .globl diag_end_kernel
        .type diag_end_kernel,@function
        diag_end_kernel:
        s_memrealtime s[8:9]
        s_load_dwordx2 s[4:5], s[0:1], 80
        v_mov_b32 v1, {WS_STAMP + 2 * 0x80000}
        s_waitcnt lgkmcnt(0)
        v_mov_b32 v2, s8
        global_store_dword v1, v2, s[4:5]
        s_endpgm
        """)
    a('.section .rodata,"a"')
    for kn, v in kerns:
        a(f"""
        .p2align 6
        .amdhsa_kernel {kn}
        .amdhsa_next_free_vgpr {v}
        .amdhsa_next_free_sgpr 102
        .amdhsa_accum_offset {v}
        .amdhsa_group_segment_fixed_size 0
        .amdhsa_kernarg_size 88
        .amdhsa_user_sgpr_count 2
        .amdhsa_user_sgpr_kernarg_segment_ptr 1
        .amdhsa_system_sgpr_workgroup_id_x 1
        .amdhsa_float_denorm_mode_32 3
        .end_amdhsa_kernel
        """)
    return a.text()


if __name__ == "__main__":
    o = Opt()
    out = sys.argv[1]
    for kv in sys.argv[2:]:
        k, v = kv.split("=")
        assert hasattr(o, k), k
        setattr(o, k, int(v) if v.lstrip("-").isdigit() else v.replace("+", " "))
    open(out, "w").write(generate(o))
```

```python
import struct
import sys

NAME = "gather_scatter__tensor_product_equiv_tfn__graph"
N, E = 10000, 160000
NPROD, CH = 250, 640
XBYTES = N * 1024

WS_TAB = 0
WS_REC = 0x80000
CHB = CH * 32
WS_EPOCH = 0x700000
WS_STAMP = 0x800000

SLOTS = 8

L_DEG, L_BIN, L_MAX, L_ZERO, L_NULL, L_MAP, L_INV = 0, 256, 512, 528, 544, 768, 1024
L_HIST, L_START = 1280, 2304
L_CG, L_WR = 3328, 3584
L_WM = 5632
L_PAY = L_WM + 32768
L_ENT = L_PAY + SLOTS * 512 * 16
ENT_OWN = 1024
L_AGG = L_ENT + ENT_OWN * 8
ROWB = 288
L_END = L_AGG + 160 * ROWB
L_STAGE = L_AGG
assert (256 * 2 * SLOTS + 8 * 16 + 64) * 8 <= L_END - L_ENT
assert L_END <= 163840


def f32(x):
    return struct.unpack("<I", struct.pack("<f", x))[0]


class Opt:
    stamps = 0
    fused = 1
    D = 6
    st_out = "sc1"
    st_k1 = "sc1"
    g1at = 1
    wmat = 0
    D0 = 2
    pf2 = 0
    pf3 = 0
    spin = 1 << 16
    dbgwg = 0
    dbgidx = 0
    cyc = 0


class Asm:
    def __init__(self):
        self.lines = []

    def __call__(self, s=""):
        for ln in s.split("\n"):
            ln = ln.strip()
            if not ln:
                continue
            self.lines.append(ln if ln.endswith(":") or ln.startswith(".") or ln.startswith(";") else "    " + ln)

    def text(self):
        return "\n".join(self.lines) + "\n"


def vr(a, n=1):
    return "v%d" % a if n == 1 else "v[%d:%d]" % (a, a + n - 1)


def sr(a, n=1):
    return "s%d" % a if n == 1 else "s[%d:%d]" % (a, a + n - 1)


def wave_scan(a, v):
    for c in ("row_shr:1", "row_shr:2", "row_shr:4", "row_shr:8"):
        a("s_nop 1")
        a(f"v_add_u32_dpp v{v}, v{v}, v{v} {c} row_mask:0xf bank_mask:0xf bound_ctrl:1")
    a("s_nop 1")
    a(f"v_add_u32_dpp v{v}, v{v}, v{v} row_bcast:15 row_mask:0xa bank_mask:0xf")
    a("s_nop 1")
    a(f"v_add_u32_dpp v{v}, v{v}, v{v} row_bcast:31 row_mask:0xc bank_mask:0xf")


sX, sO = 20, 24
sWS, sREC = 28, 30
sQ, sW, sRND, sMAX, sSTART, sN, sOFF, sT = 32, 33, 34, 35, 36, 37, 38, 40
sTAG, sBIG, sPF = 41, 42, 43
sSPIN = 3
sRING = 44
sM = 60
sTMP = 76
sLN2 = 86
sST = 88

vL16, vLANE, vREC4, vREC16, vREM, vONE = 1, 2, 3, 4, 5, 6
vKA, vEA, vYA, vEINC = 7, 8, 9, 10
vKEY, vPE, vPY, vPFA = 11, 12, 13, 14
vPF = 15
vREC1 = 192
vS1 = 196
vEF, vYN, vA = 16, 20, 22
vAT = 24
vE = 28
vT = 32
vWR = 40
vCG = 48
vTP = 56
vR = 72
vXB = 88
vU = 120
vACC = 152
NV = 240


def stamp(a, o, idx):
    if o.stamps and (o.stamps != 3 or idx in (0, o.dbgidx)):
        a(f"""
        {"s_memtime" if o.cyc else "s_memrealtime"} {sr(sTMP + 8, 2)}
        s_waitcnt lgkmcnt(0)
        s_mov_b32 s{sST + idx}, s{sTMP + 8}
        """)


def stamp_flush(a, o, n, kern):
    if not o.stamps:
        return
    if o.stamps == 3:
        a(f"""
        s_cmp_lg_u32 s2, {o.dbgwg}
        s_cbranch_scc1 Lm_end
        s_cmp_lg_u32 s{sW}, 0
        s_cbranch_scc1 Lm_end
        s_sub_u32 s4, s{sST + o.dbgidx}, s{sST}
        s_mul_i32 s4, s4, 4
        s_add_u32 s4, s4, 3000
        s_mov_b32 s5, 0
        Ldbg_spin:
        s_memrealtime s[6:7]
        s_waitcnt lgkmcnt(0)
        s_sub_u32 s6, s6, s{sST}
        s_add_u32 s5, s5, 1
        s_cmp_ge_u32 s5, 20000
        s_cbranch_scc1 Lm_end
        s_cmp_lt_u32 s6, s4
        s_cbranch_scc1 Ldbg_spin
        """)
        return
    if o.stamps == 2:
        a(f"""
        s_mov_b64 exec, -1
        s_cmp_lg_u32 s2, {o.dbgwg}
        s_cbranch_scc1 Lm_end
        s_cmp_lg_u32 s{sW}, 0
        s_cbranch_scc1 Lm_end
        s_load_dwordx2 s[4:5], s[0:1], 72
        v_mov_b32 v{vT}, 0
        s_waitcnt lgkmcnt(0)
        """)
        for i in range(n):
            a(f"s_sub_u32 s3, s{sST + i}, s{sST}")
            a(f"v_mov_b32 v{vT + 1}, s3")
            a(f"global_store_dword v{vT}, v{vT + 1}, s[4:5] offset:{4 * i}")
            a("s_nop 1")
        return
    a(f"""
    s_mov_b64 exec, -1
    s_lshl_b32 s3, s2, 4
    s_add_u32 s3, s3, s{sW}
    s_lshl_b32 s3, s3, 6
    s_add_u32 s3, s3, {WS_STAMP + kern * 0x80000}
    v_mov_b32 v{vT}, s3
    """)
    for i in range(n):
        a(f"v_mov_b32 v{vT + 1}, s{sST + i}")
        a(f"global_store_dword v{vT}, v{vT + 1}, {sr(sWS, 2)} offset:{4 * i}")
        a("s_nop 1")


PF = {"done": 0}


def prefetch(a, k):
    if not k:
        return
    a(f"""
    s_mul_i32 s{sTMP + 4}, s{sPF}, {k * 8192}
    s_add_u32 s{sTMP + 4}, s{sTMP + 4}, {PF["done"] * 262144}
    s_cmp_lt_u32 s{sW}, {k}
    s_cselect_b32 s{sTMP + 4}, s{sTMP + 4}, {XBYTES}
    buffer_load_dword v{vPF}, v{vPFA}, {sr(sX, 4)}, s{sTMP + 4} offen
    """)
    PF["done"] += k


def entry(a, o, kern):
    a(f"""
    s_cmp_ge_u32 s2, 256
    s_cbranch_scc1 L{kern}_end
    """)
    stamp(a, o, 0)
    a(f"""
    s_load_dwordx16 s[4:19], s[0:1], 0
    s_load_dwordx2 {sr(sWS, 2)}, s[0:1], 80
    s_load_dwordx2 {sr(sO, 2)}, s[0:1], 64
    v_lshrrev_b32 v{vT}, 6, v0
    v_and_b32 v{vLANE}, 63, v0
    v_readfirstlane_b32 s{sW}, v{vT}
    v_mov_b32 v{vT}, 0
    v_mov_b32 v{vT + 1}, 0
    v_lshlrev_b32 v{vT + 2}, 3, v0
    ds_write_b64 v{vT + 2}, {vr(vT, 2)}
    v_lshlrev_b32 v{vL16}, 4, v{vLANE}
    v_mov_b32 v{vONE}, 1
    """)


def side_loads(a):
    a(f"""
    s_cmp_lg_u32 s{sW}, 5
    s_cbranch_scc1 Lside_a
    v_lshlrev_b32 v{vT}, 2, v{vLANE}
    global_load_dword v{vTP}, v{vT}, s[14:15]
    global_load_dword v{vTP + 1}, v{vT}, s[14:15] offset:256
    global_load_dword v{vTP + 2}, v{vT}, s[14:15] offset:512
    global_load_dword v{vTP + 3}, v{vT}, s[14:15] offset:768
    Lside_a:
    s_cmp_lg_u32 s{sW}, 6
    s_cbranch_scc1 Lside_b
    v_bfe_u32 v{vT}, v{vLANE}, 3, 2
    v_and_b32 v{vT + 1}, 7, v{vLANE}
    v_lshl_add_u32 v{vT}, v{vT + 1}, 3, v{vT}
    v_lshlrev_b32 v{vT}, 1, v{vT}
    global_load_ushort v{vTP}, v{vT}, s[16:17]
    global_load_ushort v{vTP + 1}, v{vT}, s[16:17] offset:8
    Lside_b:
    """)


def side_finish(a):
    g = vTP + 4
    out = vR
    a(f"""
    s_cmp_lg_u32 s{sW}, 5
    s_cbranch_scc1 Lside_c
    s_mov_b32 s{sT}, {f32(-1.4426950408889634):#x}
    """)
    for k in range(4):
        a(f"v_lshlrev_b32 v{g + k}, 16, v{vTP + k}")
        a(f"v_and_b32 v{g + 4 + k}, 0xffff0000, v{vTP + k}")
    for k in range(8):
        a(f"v_mul_f32 v{g + k}, s{sT}, v{g + k}")
    for h in range(2):
        for p in range(2):
            g0 = g + 4 * h + 2 * p
            hi = out + 4 * h + p
            a(f"""
            v_cvt_pk_bf16_f32 v{hi}, v{g0}, v{g0 + 1}
            v_lshlrev_b32 v{vT}, 16, v{hi}
            v_and_b32 v{vT + 1}, 0xffff0000, v{hi}
            v_sub_f32 v{vT}, v{g0}, v{vT}
            v_sub_f32 v{vT + 1}, v{g0 + 1}, v{vT + 1}
            v_cvt_pk_bf16_f32 v{hi + 2}, v{vT}, v{vT + 1}
            """)
    a(f"""
    ds_write_b128 v{vL16}, {vr(out, 4)} offset:{L_WR}
    ds_write_b128 v{vL16}, {vr(out + 4, 4)} offset:{L_WR + 1024}
    Lside_c:
    s_cmp_lg_u32 s{sW}, 6
    s_cbranch_scc1 Lside_d
    v_lshl_or_b32 v{vTP}, v{vTP + 1}, 16, v{vTP}
    v_lshlrev_b32 v{vT}, 2, v{vLANE}
    ds_write_b32 v{vT}, v{vTP} offset:{L_CG}
    v_mov_b32 v{vT}, {XBYTES}
    v_mov_b32 v{vT + 1}, {L_ZERO}
    v_mov_b32 v{vT + 2}, 0
    ds_write_b64 v{vT + 2}, {vr(vT, 2)} offset:{L_NULL}
    Lside_d:
    """)


vW = 208
vWF = 224


def wmix_loads(a):
    a(f"""
    v_lshrrev_b32 v{vT}, 5, v0
    v_and_b32 v{vT + 1}, 31, v0
    v_lshlrev_b32 v{vT}, 11, v{vT}
    v_lshl_add_u32 v{vT}, v{vT + 1}, 3, v{vT}
    """)
    for j in range(8):
        a(f"global_load_dwordx2 {vr(vW + 2 * j, 2)}, v{vT}, s[18:19] offset:{256 * j}")


def wmix_finish(a):
    a(f"""
    s_mov_b32 s{sTMP}, 0x05040100
    s_mov_b32 s{sTMP + 1}, 0x07060302
    v_bfe_u32 v{vT}, v0, 3, 2
    v_lshrrev_b32 v{vT + 1}, 7, v0
    v_lshlrev_b32 v{vT}, 13, v{vT}
    v_lshl_add_u32 v{vT}, v{vT + 1}, 11, v{vT}
    v_bfe_u32 v{vT + 1}, v0, 5, 2
    v_lshl_add_u32 v{vT}, v{vT + 1}, 8, v{vT}
    v_and_b32 v{vT + 1}, 7, v0
    v_lshl_add_u32 v{vT}, v{vT + 1}, 5, v{vT}
    """)
    for nn in range(2):
        for t in range(2):
            f = vWF + 4 * (2 * nn + t)
            for jj in range(4):
                a(f"v_perm_b32 v{f + jj}, v{vW + 2 * (2 * jj + 1) + nn}, v{vW + 2 * (2 * jj) + nn}, s{sTMP + t}")
            a(f"ds_write_b128 v{vT}, {vr(f, 4)} offset:{L_WM + 1024 * t + 16 * nn}")


def phase_a(a, o):
    vD, vS, vY, vF = vXB, vXB + 2, vXB + 4, vXB + 8
    vQ, vRK, vKK, vC, vSC, vTG = vXB + 12, vXB + 14, vXB + 16, vXB + 20, vXB + 24, vXB + 28
    st = "sc1"
    a(f"""
    s_mul_i32 s3, s2, {CH * 4}
    v_lshl_add_u32 v{vT + 3}, v0, 3, s3
    v_lshlrev_b32 v{vT + 4}, 1, v{vT + 3}
    s_cmp_lt_u32 s2, {NPROD}
    s_cselect_b32 s{sT}, 5, 0
    s_cmp_lt_u32 s{sW}, s{sT}
    s_cselect_b32 s{sBIG}, 1, 0
    s_waitcnt lgkmcnt(0)
    s_cbranch_scc0 La_noload
    global_load_dwordx2 {vr(vD, 2)}, v{vT + 3}, s[8:9]
    La_noload:
    s_add_u32 s{sREC}, s{sWS}, {WS_EPOCH}
    s_addc_u32 s{sREC + 1}, s{sWS + 1}, 0
    s_load_dword s{sTAG}, {sr(sREC, 2)}, 0
    s_barrier
    s_cmp_eq_u32 s{sBIG}, 0
    s_cbranch_scc1 La_noload2
    global_load_dwordx2 {vr(vS, 2)}, v{vT + 3}, s[6:7]
    global_load_dwordx4 {vr(vY, 4)}, v{vT + 4}, s[10:11]
    global_load_dwordx4 {vr(vF, 4)}, v{vT + 4}, s[12:13]
    La_noload2:
    """)
    side_loads(a)
    nw = 8 if o.wmat == 0 else 0
    if nw:
        wmix_loads(a)
    setup_consumer(a, o)
    a(f"""
    s_lshl_b32 s{sT}, s2, 11
    v_lshl_add_u32 v{vT + 6}, v0, 4, s{sT}
    v_lshlrev_b32 v{vT + 7}, 3, v0
    s_waitcnt lgkmcnt(0)
    s_add_u32 s{sREC}, s{sWS}, {WS_REC}
    s_addc_u32 s{sREC + 1}, s{sWS + 1}, 0
    s_add_u32 s{sTAG}, s{sTAG}, 0x9e3779b9
    v_mov_b32 v{vTG}, s{sTAG}
    v_mov_b32 v{vTG + 1}, s{sTAG}
    v_mov_b32 v{vKK + 1}, s{sTAG}
    v_mov_b32 v{vKK + 3}, s{sTAG}
    s_cmp_eq_u32 s{sBIG}, 0
    s_cbranch_scc1 La_other
    s_waitcnt vmcnt({3 + nw})
    """)
    stamp(a, o, 1)
    for k in range(2):
        a(f"""
        v_and_b32 v{vQ + k}, 255, v{vD + k}
        v_lshlrev_b32 v{vQ + k}, 2, v{vQ + k}
        ds_add_rtn_u32 v{vRK + k}, v{vQ + k}, v{vONE} offset:{L_HIST}
        """)
    a(f"""
    s_waitcnt lgkmcnt(0)
    s_barrier
    ds_read_b128 {vr(vC, 4)}, v{vL16} offset:{L_HIST}
    ds_read_b64 {vr(vE, 2)}, v{vT + 7} offset:{L_HIST}
    s_waitcnt lgkmcnt(1)
    v_add_u32 v{vT}, v{vC}, v{vC + 1}
    v_add_u32 v{vT + 1}, v{vT}, v{vC + 2}
    v_add_u32 v{vT + 2}, v{vT + 1}, v{vC + 3}
    v_mov_b32 v{vT + 3}, v{vT + 2}
    """)
    wave_scan(a, vT + 3)
    a(f"""
    v_sub_u32 v{vSC}, v{vT + 3}, v{vT + 2}
    v_add_u32 v{vSC + 1}, v{vSC}, v{vC}
    v_add_u32 v{vSC + 2}, v{vSC}, v{vT}
    v_add_u32 v{vSC + 3}, v{vSC}, v{vT + 1}
    ds_write_b128 v{vL16}, {vr(vSC, 4)} offset:{L_START}
    ds_read_b64 {vr(vE + 2, 2)}, v{vT + 7} offset:{L_START}
    ds_read_b32 v{vT}, v{vQ} offset:{L_START}
    ds_read_b32 v{vT + 1}, v{vQ + 1} offset:{L_START}
    s_mov_b32 s{sT}, {L_STAGE}
    s_cmp_ge_u32 s{sW}, 2
    s_cbranch_scc1 La_notab
    s_waitcnt lgkmcnt(2)
    v_lshl_or_b32 v{vC}, v{vE}, 16, v{vE + 2}
    v_mov_b32 v{vC + 1}, s{sTAG}
    v_lshl_or_b32 v{vC + 2}, v{vE + 1}, 16, v{vE + 3}
    v_mov_b32 v{vC + 3}, s{sTAG}
    global_store_dwordx4 v{vT + 6}, {vr(vC, 4)}, {sr(sWS, 2)} {st}
    s_waitcnt vmcnt({1 + nw})
    s_branch La_tabdone
    La_notab:
    s_waitcnt vmcnt({nw})
    La_tabdone:
    """)
    for k in range(2):
        a(f"""
        v_mul_u32_u24 v{vT + 2}, 13, v{vS + k}
        v_lshrrev_b32 v{vT + 2}, 14, v{vT + 2}
        v_min_u32 v{vT + 2}, 7, v{vT + 2}
        v_bfe_u32 v{vKK + 2 * k}, v{vD + k}, 8, 6
        v_lshl_or_b32 v{vKK + 2 * k}, v{vT + 2}, 6, v{vKK + 2 * k}
        v_lshl_or_b32 v{vKK + 2 * k}, v{vS + k}, 10, v{vKK + 2 * k}
        """)
    a("s_waitcnt lgkmcnt(0)")
    for k in range(2):
        a(f"""
        v_add_u32 v{vRK + k}, v{vRK + k}, v{vT + k}
        v_lshl_add_u32 v{vT + 2}, v{vRK + k}, 4, s{sT}
        v_add_u32 v{vT + 3}, {CH * 16}, v{vT + 2}
        ds_write2_b64 v{vT + 2}, {vr(vKK + 2 * k, 2)}, {vr(vY + 2 * k, 2)} offset0:0 offset1:1
        ds_write2_b64 v{vT + 3}, {vr(vF + 2 * k, 2)}, {vr(vTG, 2)} offset0:0 offset1:1
        """)
    a(f"""
    s_branch La_join
    La_other:
    s_cmp_ge_u32 s{sW}, 2
    s_cbranch_scc1 La_notab2
    v_mov_b32 v{vKK}, 0
    v_mov_b32 v{vKK + 2}, 0
    global_store_dwordx4 v{vT + 6}, {vr(vKK, 4)}, {sr(sWS, 2)} {st}
    La_notab2:
    s_barrier
    s_waitcnt vmcnt({nw})
    """)
    side_finish(a)
    a(f"""
    La_join:
    s_mov_b32 s{sT}, {L_STAGE}
    v_lshl_add_u32 v{vT + 4}, v0, 4, s{sT}
    s_mul_i32 s{sT}, s2, {CHB}
    v_lshl_add_u32 v{vT + 5}, v0, 4, s{sT}
    v_add_u32 v{vT + 6}, 8192, v{vT + 5}
    v_add_u32 v{vKA}, {CH * 16}, v{vT + 5}
    v_add_u32 v{vEA}, {CH * 16 + 8192}, v{vT + 5}
    s_cmp_lt_u32 s{sW}, 2
    s_cselect_b32 s{sBIG}, 2, 1
    s_cmp_lt_u32 s2, {NPROD}
    s_cselect_b32 s{sBIG}, s{sBIG}, 0
    s_waitcnt vmcnt(1) lgkmcnt(0)
    s_barrier
    """)
    stamp(a, o, 2)
    a(f"""
    ds_read_b128 {vr(vY, 4)}, v{vT + 4}
    ds_read_b128 {vr(vF, 4)}, v{vT + 4} offset:8192
    ds_read_b128 {vr(vS1, 4)}, v{vT + 4} offset:{CH * 16}
    ds_read_b128 {vr(vS1 + 4, 4)}, v{vT + 4} offset:{CH * 16 + 8192}
    s_cmp_lt_u32 s{sW}, 2
    s_cbranch_scc1 La_w0
    s_waitcnt vmcnt(0)
    La_w0:
    s_cmp_eq_u32 s{sBIG}, 0
    s_cbranch_scc1 La_nostore
    s_waitcnt lgkmcnt(3)
    global_store_dwordx4 v{vT + 5}, {vr(vY, 4)}, {sr(sREC, 2)} {st}
    s_cmp_eq_u32 s{sBIG}, 1
    s_cbranch_scc1 La_nostore
    s_waitcnt lgkmcnt(2)
    global_store_dwordx4 v{vT + 6}, {vr(vF, 4)}, {sr(sREC, 2)} {st}
    La_nostore:
    """)
    stamp(a, o, 3)


def setup_consumer(a, o):
    a(f"""
    s_and_b32 s{sQ}, s2, 7
    s_lshl_b32 s{sQ}, s{sQ}, 5
    s_lshr_b32 s{sT}, s2, 3
    s_or_b32 s{sQ}, s{sQ}, s{sT}
    s_mov_b32 s{sPF}, s{sT}
    v_lshlrev_b32 v{vPFA}, 7, v0
    s_mov_b32 s{sX}, s4
    s_and_b32 s{sX + 1}, s5, 0xffff
    s_mov_b32 s{sX + 2}, {XBYTES}
    s_mov_b32 s{sX + 3}, 0x20000
    s_and_b32 s{sO + 1}, s{sO + 1}, 0xffff
    s_mov_b32 s{sO + 2}, {XBYTES}
    s_mov_b32 s{sO + 3}, 0x20000
    s_mov_b32 s{sRND}, 0
    s_mov_b32 s{sLN2}, {f32(-0.6931471805599453):#x}
    s_mov_b32 s{sLN2 + 1}, {f32(-0.6931471805599453):#x}
    """)


def gen_main(a, o):
    kn = NAME + "_kernel"
    fused, D = o.fused, o.D
    ld = "sc1" if fused else ""
    a(".p2align 8")
    a(f".globl {kn}")
    a(f".type {kn},@function")
    a(f"{kn}:")
    vG0 = vXB
    vG1 = vTP
    vBA = vU + 8
    vRK = vU + 16
    vMP = vU + 24
    vEN = vE
    vK = [vG0 + 4 * j for j in range(SLOTS)]
    entry(a, o, "m")
    phase_a(a, o)
    a(f"""
    s_lshl_b32 s{sT}, s{sQ}, 3
    v_lshrrev_b32 v{vT + 2}, 1, v0
    v_lshl_add_u32 v{vT + 3}, v{vT + 2}, 11, s{sT}
    """)
    if o.wmat == 0:
        wmix_finish(a)
    if o.wmat == 1:
        wmix_loads(a)
    if o.wmat == 3:
        for i in range(40):
            a(f"v_mov_b32 v{vACC + i}, 0")
    a(f"global_load_dwordx2 {vr(vEN, 2)}, v{vT + 3}, {sr(sWS, 2)} sc1")
    if o.wmat in (2, 3):
        wmix_loads(a)
    if o.wmat != 3:
        for i in range(40):
            a(f"v_mov_b32 v{vACC + i}, 0")
    a(f"""
    v_mul_u32_u24 v{vREC16}, {CHB}, v{vT + 2}
    v_and_b32 v{vT + 4}, 1, v0
    v_mov_b32 v{vT + 5}, {L_MAX}
    v_lshlrev_b32 v{vREC4}, 4, v0
    v_add_u32 v{vREC4}, {L_PAY}, v{vREC4}
    s_mov_b32 s{sSPIN}, {o.spin}
    """)
    if o.wmat in (2, 3):
        a("""
        s_waitcnt vmcnt(8)
        s_branch Lm_poll2
        """)
    a(f"""
    Lm_poll:
    s_waitcnt vmcnt(0)
    Lm_poll2:
    v_cmp_ne_u32 vcc, s{sTAG}, v{vEN + 1}
    s_cbranch_vccz Lm_ready
    s_sub_u32 s{sSPIN}, s{sSPIN}, 1
    s_cbranch_scc1 Lm_end
    s_mov_b64 exec, vcc
    global_load_dwordx2 {vr(vEN, 2)}, v{vT + 3}, {sr(sWS, 2)} sc1
    s_branch Lm_poll
    Lm_ready:
    s_mov_b64 exec, -1
    """)
    stamp(a, o, 4)
    a(f"""
    v_and_b32 v{vT}, 0xffff, v{vEN}
    v_lshrrev_b32 v{vREM}, 16, v{vEN}
    v_add_u32 v{vT}, v{vT}, v{vT + 4}
    v_lshl_add_u32 v{vREC16}, v{vT}, 4, v{vREC16}
    v_add_u32 v{vREC1}, {CH * 16}, v{vREC16}
    v_cmp_lt_u32 vcc, {2 * SLOTS}, v{vREM}
    s_and_saveexec_b64 {sr(sTMP, 2)}, vcc
    ds_max_u32 v{vT + 5}, v{vREM}
    s_mov_b64 exec, -1
    v_sub_u32 v{vREM}, v{vREM}, v{vT + 4}
    Lm_round:
    """)
    for j in range(SLOTS):
        a(f"v_cmp_lt_i32 {sr(sM + 2 * j, 2)}, {2 * j}, v{vREM}")

    def per_slot(label, body):
        for j in range(SLOTS):
            a(f"s_mov_b64 exec, {sr(sM + 2 * j, 2)}")
            a(f"s_cbranch_execz {label}")
            body(j)
        a(f"{label}:")
        a("s_mov_b64 exec, -1")

    def check(j, v, retry):
        a(f"v_cmp_ne_u32 vcc, s{sTAG}, v{v}")
        a(f"s_cbranch_vccnz {retry}")

    a("Lm_g0:")
    per_slot("Lm_ld", lambda j: a(f"global_load_dwordx4 {vr(vG0 + 4 * j, 4)}, v{vREC16}, {sr(sREC, 2)} offset:{32 * j} sc1"))
    if o.wmat == 1:
        a(f"""
        s_cmp_lg_u32 s{sRND}, 0
        s_cbranch_scc1 Lm_nowm
        """)
        wmix_finish(a)
        a("Lm_nowm:")
    a(f"""
    s_cmp_eq_u32 s{sBIG}, 0
    s_cbranch_scc1 Lm_s0
    s_waitcnt lgkmcnt(0)
    global_store_dwordx4 v{vKA}, {vr(vS1, 4)}, {sr(sREC, 2)} sc1
    s_cmp_eq_u32 s{sBIG}, 1
    s_cbranch_scc1 Lm_s1
    global_store_dwordx4 v{vEA}, {vr(vS1 + 4, 4)}, {sr(sREC, 2)} sc1
    s_waitcnt vmcnt(2)
    s_branch Lm_s2
    Lm_s0:
    s_waitcnt vmcnt(0)
    Lm_s1:
    s_waitcnt vmcnt(1)
    Lm_s2:
    s_mov_b32 s{sBIG}, 0
    """)
    per_slot("Lm_ck0", lambda j: check(j, vG0 + 4 * j + 1, "Lm_re0"))
    stamp(a, o, 5)

    def ldg1(j):
        a(f"global_load_dwordx3 {vr(vG1 + 4 * j, 3)}, v{vREC1}, {sr(sREC, 2)} offset:{32 * j} sc1")

    def hist1(j):
        a(f"v_and_b32 v{vBA + j}, 63, v{vK[j]}")
        a(f"v_lshlrev_b32 v{vBA + j}, 2, v{vBA + j}")
        a(f"ds_add_u32 v{vBA + j}, v{vONE} offset:{L_DEG}")
        if o.g1at == 0:
            ldg1(j)
        a(f"ds_write_b64 v{vREC4}, {vr(vG0 + 4 * j + 2, 2)} offset:{8192 * j}")
    per_slot("Lm_h1", hist1)
    a(f"""
    s_cmp_lg_u32 s{sRND}, 0
    s_cbranch_scc1 Lm_bins
    """)
    if o.wmat >= 2:
        wmix_finish(a)
    a(f"""
    v_lshlrev_b32 v{vT + 1}, 2, v{vLANE}
    s_mul_i32 s{sT}, s{sW}, 5
    s_waitcnt lgkmcnt(0)
    s_barrier
    """)
    stamp(a, o, 6)
    a(f"""
    ds_read_b32 v{vT}, v{vT + 1} offset:{L_DEG}
    ds_read_b32 v{vT + 5}, v{vT + 5}
    """)
    prefetch(a, o.pf2)
    a(f"""
    v_sub_u32 v{vT + 2}, 63, v{vLANE}
    s_add_u32 s{sTMP}, s{sT}, 1
    s_add_u32 s{sTMP + 1}, s{sT}, 2
    s_add_u32 s{sTMP + 2}, s{sT}, 3
    s_add_u32 s{sTMP + 3}, s{sT}, 4
    s_waitcnt lgkmcnt(0)
    v_lshl_or_b32 v{vT}, v{vT}, 6, v{vT + 2}
    v_readfirstlane_b32 s{sMAX}, v{vT + 5}
    v_readlane_b32 s{sRING}, v{vT}, s{sT}
    v_readlane_b32 s{sRING + 1}, v{vT}, s{sTMP}
    v_readlane_b32 s{sRING + 2}, v{vT}, s{sTMP + 1}
    v_readlane_b32 s{sRING + 3}, v{vT}, s{sTMP + 2}
    v_readlane_b32 s{sRING + 4}, v{vT}, s{sTMP + 3}
    """)
    for k in range(5):
        a(f"v_cmp_lt_u32 {sr(sTMP + 2 * k, 2)}, s{sRING + k}, v{vT}")
    for k in range(5):
        a(f"s_bcnt1_i32_b64 s{sRING + 8 + k}, {sr(sTMP + 2 * k, 2)}")
    for k in range(5):
        a(f"v_writelane_b32 v{vT + 2}, s{sRING + 8 + k}, {k}")
    a(f"""
    s_mov_b64 exec, 31
    v_lshrrev_b32 v{vT}, 3, v{vT + 2}
    v_and_b32 v{vT + 3}, 7, v{vT + 2}
    v_cmp_lt_u32 vcc, 15, v{vT + 2}
    v_xor_b32 v{vT + 4}, 7, v{vT + 3}
    v_add_u32 v{vT + 5}, s{sT}, v{vLANE}
    v_cndmask_b32 v{vT + 3}, v{vT + 3}, v{vT + 4}, vcc
    v_lshlrev_b32 v{vT + 2}, 5, v{vT + 3}
    v_lshl_or_b32 v{vT + 2}, v{vT}, 19, v{vT + 2}
    v_mad_u32_u24 v{vT + 3}, v{vT + 3}, 5, v{vT}
    v_lshlrev_b32 v{vT + 4}, 2, v{vT + 5}
    v_lshlrev_b32 v{vT + 3}, 2, v{vT + 3}
    ds_write_b32 v{vT + 4}, v{vT + 2} offset:{L_MAP}
    ds_write_b32 v{vT + 3}, v{vT + 5} offset:{L_INV}
    s_mov_b64 exec, -1
    """)
    a(f"""
    v_and_b32 v{vT}, 3, v0
    v_lshlrev_b32 v{vT}, 5, v{vT}
    ds_read_b128 {vr(vWR, 4)}, v{vL16} offset:{L_WR}
    ds_read_b128 {vr(vWR + 4, 4)}, v{vL16} offset:{L_WR + 1024}
    ds_read_b128 {vr(vCG, 4)}, v{vT} offset:{L_CG}
    ds_read_b128 {vr(vCG + 4, 4)}, v{vT} offset:{L_CG + 16}
    s_waitcnt lgkmcnt(4)
    s_barrier
    """)
    prefetch(a, o.pf3)
    a("Lm_bins:")
    stamp(a, o, 7)

    def rdmap(j):
        a(f"ds_read_b32 v{vMP + j}, v{vBA + j} offset:{L_MAP}")
        a(f"v_bfe_u32 v{vBA + j}, v{vK[j]}, 6, 3")
        a(f"v_and_b32 v{vK[j]}, 0xfffffc00, v{vK[j]}")
    per_slot("Lm_mp", rdmap)
    a("s_waitcnt lgkmcnt(0)")

    def hist2(j):
        a(f"v_and_b32 v{vRK + j}, 0xffff, v{vMP + j}")
        a(f"v_lshl_add_u32 v{vBA + j}, v{vBA + j}, 2, v{vRK + j}")
        a(f"ds_add_rtn_u32 v{vRK + j}, v{vBA + j}, v{vONE} offset:{L_BIN}")
        a(f"v_lshrrev_b32 v{vMP + j}, 16, v{vMP + j}")
        a(f"v_or_b32 v{vK[j]}, v{vK[j]}, v{vMP + j}")
        if o.g1at == 1:
            ldg1(j)
    per_slot("Lm_h2", hist2)
    a(f"""
    v_lshlrev_b32 v{vT + 1}, 2, v{vLANE}
    s_lshl_b32 s{sT}, s{sW}, 3
    s_add_u32 s{sTMP}, s{sT}, 7
    v_lshrrev_b32 v{vT + 3}, 3, v{vLANE}
    s_waitcnt lgkmcnt(0)
    s_barrier
    """)
    stamp(a, o, 8)
    a(f"""
    ds_read_b32 v{vT}, v{vT + 1} offset:{L_BIN}
    s_waitcnt lgkmcnt(0)
    v_mov_b32 v{vT + 2}, v{vT}
    """)
    wave_scan(a, vT + 2)
    a(f"""
    v_lshl_add_u32 v{vT + 2}, v{vT + 3}, 4, v{vT + 2}
    v_sub_u32 v{vT}, v{vT + 2}, v{vT}
    """)
    for j in range(SLOTS):
        if j:
            a(f"s_cmp_eq_u64 {sr(sM + 2 * j, 2)}, 0")
            a("s_cbranch_scc1 Lm_bp")
        a(f"ds_bpermute_b32 v{vMP + j}, v{vBA + j}, v{vT}")
    a(f"""
    Lm_bp:
    v_readlane_b32 s{sSTART}, v{vT}, s{sT}
    v_readlane_b32 s{sN}, v{vT + 2}, s{sTMP}
    v_readlane_b32 s{sBIG}, v{vT + 2}, 63
    v_mov_b32 v{vT + 4}, {XBYTES}
    v_mov_b32 v{vT + 5}, {L_ZERO}
    s_mov_b32 s{sTMP + 2}, {L_ENT}
    v_add_u32 v{vT + 2}, s{sN}, v{vLANE}
    v_lshl_add_u32 v{vT + 2}, v{vT + 2}, 3, s{sTMP + 2}
    s_cmp_eq_u32 s{sW}, 7
    s_cselect_b64 exec, -1, 0xffff
    ds_write_b64 v{vT + 2}, {vr(vT + 4, 2)}
    s_mov_b64 exec, -1
    s_sub_u32 s{sN}, s{sN}, s{sSTART}
    s_lshl_b32 s{sSTART}, s{sSTART}, 3
    s_add_u32 s{sSTART}, s{sSTART}, {L_ENT}
    v_lshl_add_u32 v{vKA}, v{vLANE}, 3, s{sSTART}
    v_lshrrev_b32 v{vYA}, 2, v{vLANE}
    v_lshl_add_u32 v{vYA}, v{vYA}, 3, s{sSTART}
    v_bfe_u32 v{vT}, v{vLANE}, 3, 2
    v_and_b32 v{vT + 1}, 3, v{vLANE}
    v_lshl_add_u32 v{vT}, v{vT}, 2, v{vT + 1}
    v_lshl_add_u32 v{vEA}, v{vT}, 3, s{sSTART}
    s_waitcnt lgkmcnt(1)
    """)

    def wr(j):
        a(f"v_add_u32 v{vRK + j}, v{vRK + j}, v{vMP + j}")
        a(f"v_lshl_add_u32 v{vRK + j}, v{vRK + j}, 3, s{sTMP + 2}")
        a(f"v_add_u32 v{vMP + j}, {8192 * j}, v{vREC4}")
        a(f"ds_write2_b32 v{vRK + j}, v{vK[j]}, v{vMP + j} offset0:0 offset1:1")
        if o.g1at == 2:
            ldg1(j)
    per_slot("Lm_wr", wr)
    a(f"""
    s_mov_b32 s{sTMP}, 0x0f0f0f0f
    s_mov_b32 s{sTMP + 1}, 0xf0f0f0f0
    v_mov_b32 v{vT}, {L_NULL}
    v_mov_b32 v{vT + 1}, {L_NULL - 32}
    v_mov_b32 v{vT + 2}, 128
    v_cndmask_b32 v{vT}, v{vT}, v{vEA}, {sr(sTMP, 2)}
    v_cndmask_b32 v{vEA}, v{vT + 1}, v{vEA}, {sr(sTMP, 2)}
    v_cndmask_b32 v{vEINC}, 0, v{vT + 2}, {sr(sTMP, 2)}
    s_waitcnt lgkmcnt(0)
    s_barrier
    """)
    stamp(a, o, 9)
    vK0, vPE0, vEF0 = vT + 1, vT + 2, vTP
    npf = (1 if o.pf2 else 0) + (1 if o.pf3 else 0)
    a(f"""
    ds_read_b32 v{vK0}, v{vKA}
    ds_read_b32 v{vPE0}, v{vT} offset:4
    ds_read_b32 v{vPE}, v{vEA} offset:{4 + 32}
    ds_read_b32 v{vPY}, v{vYA} offset:4
    ds_read_b32 v{vKEY}, v{vKA} offset:{8 * D}
    v_lshlrev_b32 v{vT + 3}, 2, v{vLANE}
    v_mov_b32 v{vT + 4}, 0
    ds_write_b32 v{vT + 3}, v{vT + 4} offset:{L_BIN}
    s_add_u32 s{sN}, s{sN}, 3
    s_lshr_b32 s{sN}, s{sN}, 2
    s_waitcnt lgkmcnt(5)
    """)
    for i in range(D + 2):
        a(f"v_readlane_b32 s{sRING + i}, v{vK0}, {i}")
    D0 = min(D, o.D0)

    def rowld(i):
        a(f"s_and_b32 s{sOFF}, s{sRING + i}, 0xfffffc00")
        a(f"buffer_load_dwordx4 {vr(vXB + 4 * i, 4)}, v{vL16}, {sr(sX, 4)}, s{sOFF} offen")
    for i in range(D0):
        rowld(i)
    if o.g1at:
        npf = 0
    a(f"s_waitcnt vmcnt({D0 + npf})")
    if npf:
        a(f"""
        s_cmp_eq_u32 s{sRND}, 0
        s_cbranch_scc1 Lm_g1
        s_waitcnt vmcnt({D0})
        """)
    a("Lm_g1:")
    per_slot("Lm_ck1", lambda j: check(j, vG1 + 4 * j + 2, "Lm_re1"))
    per_slot("Lm_wp", lambda j: a(f"ds_write_b64 v{vREC4}, {vr(vG1 + 4 * j, 2)} offset:{8192 * j + 8}"))
    a(f"""
    s_waitcnt lgkmcnt(0)
    s_barrier
    s_cmp_eq_u32 s{sN}, 0
    s_cbranch_scc1 Lm_done
    s_sub_u32 s{sN}, s{sN}, 1
    ds_read2_b64 {vr(vEF0, 4)}, v{vPE0} offset0:1 offset1:1
    ds_read_b64 {vr(vYN, 2)}, v{vPY}
    ds_read2_b64 {vr(vEF, 4)}, v{vPE} offset0:1 offset1:1
    """)
    for i in range(D0, D):
        rowld(i)
    a(f"s_and_b32 s{sOFF}, s{sRING + D}, 0xfffffc00")
    a(f"s_and_b32 s{sOFF + 1}, s{sRING + D + 1}, 0xfffffc00")

    def mz(h, ef):
        a(f"v_mfma_f32_32x32x16_bf16 {vr(vU + 16 * h, 16)}, {vr(ef, 4)}, {vr(vWR + 4 * h, 4)}, 0")

    def dot(n):
        i, p = n & 3, n >> 2
        c = f"v{vAT + i}" if p else "0"
        a(f"v_dot2_f32_bf16 v{vAT + i}, v{vYN + p}, v{vCG + 2 * i + p}, {c}")

    a("s_waitcnt lgkmcnt(0)")
    mz(0, vEF0)
    mz(1, vEF0)
    for n in range(8):
        dot(n)
    a(f"v_add_u32 v{vEA}, v{vEINC}, v{vEA}")
    a(f"v_add_u32 v{vYA}, 128, v{vYA}")
    a(f"v_add_u32 v{vKA}, 128, v{vKA}")
    a(f"v_cvt_pk_bf16_f32 v{vA}, v{vAT}, v{vAT + 1}")
    a(f"v_cvt_pk_bf16_f32 v{vA + 1}, v{vAT + 2}, v{vAT + 3}")
    tmp = vTP + 8
    for r in range(8):
        a(f"v_exp_f32 v{tmp + r}, v{vU + 16 * (r >> 2) + (r & 3)}")
    a("s_nop 0")
    for r in range(0, 8, 2):
        a(f"v_pk_add_f32 {vr(tmp + r, 2)}, {vr(tmp + r, 2)}, 1.0 op_sel_hi:[1,0]")
    for r in range(8):
        a(f"v_rcp_f32 v{tmp + r}, v{tmp + r}")
    a("s_nop 0")
    for r in range(0, 8, 2):
        a(f"v_pk_mul_f32 {vr(vR + r, 2)}, {vr(vU + 16 * (r >> 2) + (r & 3), 2)}, {vr(tmp + r, 2)}")
    mz(0, vEF)
    a("s_nop 7")
    stamp(a, o, 10)
    a(".p2align 6")
    a("Lm_loop:")
    for P in range(8):
        g, hf = P >> 1, P & 1
        i0 = 2 * P
        sn = vU + 16 * hf + 4 * g
        dn = vR + 8 * ((g + 1) & 1) + 4 * hf
        cur = vR + 8 * (g & 1) + 2 * hf
        a(f"s_waitcnt vmcnt({D - 2})")
        for k in range(2):
            a(f"buffer_load_dwordx4 {vr(vXB + 4 * ((i0 + k + D) & 7), 4)}, v{vL16}, {sr(sX, 4)}, s{sOFF + k} offen")
        for k in range(2):
            xb = vXB + 4 * ((i0 + k) & 7)
            for h in range(2):
                a(f"v_mfma_f32_4x4x4_16b_bf16 {vr(vTP + 8 * k + 4 * h, 4)}, {vr(vA, 2)}, {vr(xb + 2 * h, 2)}, 0 cbsz:4 abid:{i0 + k}")
                a(f"v_exp_f32 v{vE + 2 * k + h}, v{sn + 2 * k + h}")
        if P == 0:
            a("s_waitcnt lgkmcnt(0)")
        for k in range(2):
            a(f"v_readlane_b32 s{sRING + ((i0 + k + D + 2) & 15)}, v{vKEY}, {i0 + k + 2}")
        for k in range(2):
            a(f"v_pk_add_f32 {vr(vE + 2 * k, 2)}, {vr(vE + 2 * k, 2)}, 1.0 op_sel_hi:[1,0]")
        if P == 0:
            mz(1, vEF)
        if P == 7:
            mz(0, vEF)
        for r in range(4):
            a(f"v_rcp_f32 v{vE + r}, v{vE + r}")
        if P == 0:
            a(f"ds_read_b32 v{vPY}, v{vYA} offset:4")
            a(f"ds_read_b32 v{vPE}, v{vEA} offset:{4 + 32}")
        if P == 1:
            a("s_waitcnt lgkmcnt(0)")
            a(f"ds_read_b64 {vr(vYN, 2)}, v{vPY}")
            a(f"ds_read2_b64 {vr(vEF, 4)}, v{vPE} offset0:1 offset1:1")
        if P == 7:
            a(f"ds_read_b32 v{vKEY}, v{vKA} offset:{8 * D}")
        for k in range(2):
            a(f"s_and_b32 s{sOFF + k}, s{sRING + ((i0 + k + D + 2) & 15)}, 0xfffffc00")
        for k in range(2):
            a(f"s_set_gpr_idx_on s{sRING + i0}, 0xc" if k == 0 else f"s_set_gpr_idx_idx s{sRING + i0 + 1}")
            for q in range(4):
                a(f"v_pk_fma_f32 {vr(vACC + 2 * q, 2)}, {vr(cur + 4 * (q >> 1), 2)}, {vr(vTP + 8 * k + 2 * q, 2)}, "
                  f"{vr(vACC + 2 * q, 2)} op_sel:[{k},0,0] op_sel_hi:[{k},1,1]")
        a("s_set_gpr_idx_off")
        for k in range(2):
            a(f"v_pk_mul_f32 {vr(dn + 2 * k, 2)}, {vr(sn + 2 * k, 2)}, {vr(vE + 2 * k, 2)}")
        if P == 1:
            a(f"v_add_u32 v{vEA}, v{vEINC}, v{vEA}")
            a(f"v_add_u32 v{vYA}, 128, v{vYA}")
        if P == 2:
            a("s_waitcnt lgkmcnt(0)")
        if 2 <= P < 6:
            dot(2 * (P - 2))
            dot(2 * (P - 2) + 1)
        if P == 7:
            a(f"""
            v_cvt_pk_bf16_f32 v{vA}, v{vAT}, v{vAT + 1}
            v_cvt_pk_bf16_f32 v{vA + 1}, v{vAT + 2}, v{vAT + 3}
            v_add_u32 v{vKA}, 128, v{vKA}
            """)
        if hf:
            a(f"s_sub_u32 s{sN}, s{sN}, 1")
            a("s_cbranch_scc1 Lm_done" if P < 7 else "s_cbranch_scc0 Lm_loop")
    a("Lm_done:")
    stamp(a, o, 11)
    vWM = vU
    a(f"""
    s_add_u32 s{sRND}, s{sRND}, {2 * SLOTS}
    s_cmp_ge_u32 s{sRND}, s{sMAX}
    s_cbranch_scc1 Lm_epi
    s_waitcnt vmcnt(0) lgkmcnt(0)
    s_barrier
    s_mov_b32 s{sBIG}, 0
    v_subrev_u32 v{vREM}, {2 * SLOTS}, v{vREM}
    v_add_u32 v{vREC1}, {32 * SLOTS}, v{vREC1}
    v_add_u32 v{vREC16}, {32 * SLOTS}, v{vREC16}
    s_branch Lm_round
    Lm_epi:
    s_cmp_le_u32 s{sBIG}, {ENT_OWN - 64}
    s_cbranch_scc1 Lm_small
    s_waitcnt lgkmcnt(0)
    s_barrier
    Lm_small:
    s_mul_i32 s{sT}, s{sW}, {20 * ROWB}
    s_add_u32 s{sT}, s{sT}, {L_AGG}
    v_lshl_add_u32 v{vT}, v{vLANE}, 2, s{sT}
    s_lshr_b32 s{sTMP}, s{sW}, 2
    s_mul_i32 s{sTMP + 1}, s{sTMP}, 80
    v_lshrrev_b32 v{vT + 1}, 4, v{vLANE}
    v_lshl_add_u32 v{vT + 2}, v{vT + 1}, 2, s{sTMP + 1}
    s_and_b32 s{sTMP + 2}, s{sW}, 3
    s_lshl_b32 s{sTMP + 3}, s{sTMP + 2}, 13
    v_add_u32 v{vT + 4}, s{sTMP + 3}, v{vL16}
    """)
    vINV = vAT
    for s in range(5):
        acc = vACC + 8 * s
        for r in range(0, 8, 2):
            a(f"v_pk_mul_f32 {vr(acc + r, 2)}, {vr(acc + r, 2)}, {sr(sLN2, 2)}")
        for r in range(4):
            a(f"v_cvt_pk_bf16_f32 v{acc + r}, v{acc + r}, v{acc + 4 + r}")
        a(f"ds_write2_b32 v{vT}, v{acc}, v{acc + 1} offset0:0 offset1:{ROWB // 4}")
        a(f"ds_write2_b32 v{vT}, v{acc + 2}, v{acc + 3} offset0:{2 * ROWB // 4} offset1:{3 * ROWB // 4}")
        if s < 4:
            a(f"v_add_u32 v{vT}, {4 * ROWB}, v{vT}")
    a("s_waitcnt lgkmcnt(0)")
    for mt in range(5):
        a(f"ds_read_b32 v{vINV + mt}, v{vT + 2} offset:{L_INV + 16 * mt}")
    for i in range(8):
        a(f"ds_read_b128 {vr(vWM + 4 * i, 4)}, v{vT + 4} offset:{L_WM + 1024 * i}")
    a(f"""
    v_and_b32 v{vT + 3}, 15, v{vLANE}
    v_mul_u32_u24 v{vT}, {ROWB}, v{vT + 3}
    v_lshl_add_u32 v{vT}, v{vT + 1}, 4, v{vT}
    s_mul_i32 s{sTMP + 1}, s{sTMP}, {80 * ROWB}
    s_add_u32 s{sTMP + 1}, s{sTMP + 1}, {L_AGG}
    v_add_u32 v{vT}, s{sTMP + 1}, v{vT}
    s_lshl_b32 s{sT}, s{sTMP + 2}, 8
    s_lshl_b32 s{sTMP + 1}, s{sQ}, 10
    s_add_u32 s{sT}, s{sT}, s{sTMP + 1}
    v_lshl_add_u32 v{vT + 3}, v{vT + 3}, 4, s{sT}
    s_waitcnt vmcnt(0)
    s_barrier
    """)
    a("s_waitcnt lgkmcnt(0)")
    stamp(a, o, 12)

    def frag(mt, s):
        return vWR + 16 * mt + 4 * s

    def rd(mt):
        for s in range(4):
            a(f"ds_read_b128 {vr(frag(mt, s), 4)}, v{vT} offset:{16 * ROWB * mt + 64 * s}")
    for mt in range(3):
        rd(mt)
    for mt in range(5):
        a(f"v_lshl_add_u32 v{vINV + mt}, v{vINV + mt}, 18, v{vT + 3}")
    vD = vACC

    def fin(mt):
        d = vD + 8 * mt
        for r in range(4):
            a(f"v_cvt_pk_bf16_f32 v{d + r}, v{d + 2 * r}, v{d + 2 * r + 1}")
        a(f"buffer_store_dwordx4 {vr(d, 4)}, v{vINV + mt}, {sr(sO, 4)}, 0 offen {o.st_out}")
    for mt in range(5):
        d = vD + 8 * mt
        pend = min(mt + 3, 5) - mt - 1
        for s in range(4):
            a(f"s_waitcnt lgkmcnt({4 * pend + 3 - s})")
            for t in range(2):
                c = vr(d + 4 * t, 4) if s else "0"
                a(f"v_mfma_f32_16x16x32_bf16 {vr(d + 4 * t, 4)}, {vr(frag(mt, s), 4)}, {vr(vWM + 8 * s + 4 * t, 4)}, {c}")
        if mt + 3 < 5:
            rd(mt + 3)
        if mt:
            fin(mt - 1)
    a("s_nop 7")
    fin(4)
    if fused:
        a(f"""
        s_or_b32 s{sT}, s2, s{sW}
        s_cmp_lg_u32 s{sT}, 0
        s_cbranch_scc1 Lm_noep
        v_mov_b32 v{vT}, {WS_EPOCH}
        v_mov_b32 v{vT + 1}, s{sTAG}
        s_mov_b64 exec, 1
        global_store_dword v{vT}, v{vT + 1}, {sr(sWS, 2)} sc1
        Lm_noep:
        """)
    if o.stamps:
        a("s_waitcnt vmcnt(0)")
    stamp(a, o, 13)
    stamp_flush(a, o, 14, 1)
    a(f"""
    Lm_end:
    s_endpgm
    Lm_re0:
    s_sub_u32 s{sSPIN}, s{sSPIN}, 1
    s_cbranch_scc0 Lm_g0
    s_endpgm
    Lm_re1:
    s_sub_u32 s{sSPIN}, s{sSPIN}, 1
    s_cbranch_scc1 Lm_end
    """)
    per_slot("Lm_rl1", lambda j: a(f"global_load_dwordx3 {vr(vG1 + 4 * j, 3)}, v{vREC1}, {sr(sREC, 2)} offset:{32 * j} sc1"))
    a("""
    s_waitcnt vmcnt(0)
    s_branch Lm_g1
    """)


def generate(o):
    a = Asm()
    ref = open(f"cdna_kernels/{NAME}.s.ref").read().split("\n")
    for ln in ref:
        if ln.startswith("; Override"):
            break
        a.lines.append(ln)
    kerns = []
    if not o.fused:
        a.lines.append(f"; @launch kernel=tfn_sort_kernel grid=(256,1,1) block=(512,1,1) lds={L_STAGE + CHB}")
        kerns.append(("tfn_sort_kernel", NV))
    if o.fused and o.stamps != 1:
        a.lines.append(f"; @launch grid=(256,1,1) block=(512,1,1) lds={L_END}")
    else:
        a.lines.append(f"; @launch kernel={NAME}_kernel grid=(256,1,1) block=(512,1,1) lds={L_END}")
    kerns.append((NAME + "_kernel", NV))
    if o.stamps == 1:
        a.lines.append("; @launch kernel=diag_end_kernel grid=(1,1,1) block=(64,1,1) lds=0")
    a('.amdgcn_target "amdgcn-amd-amdhsa--gfx950"')
    a(".text")
    gen_main(a, o)
    if o.stamps == 1:
        kerns.append(("diag_end_kernel", 8))
        a(f"""
        .p2align 8
        .globl diag_end_kernel
        .type diag_end_kernel,@function
        diag_end_kernel:
        s_memrealtime s[8:9]
        s_load_dwordx2 s[4:5], s[0:1], 80
        v_mov_b32 v1, {WS_STAMP + 2 * 0x80000}
        s_waitcnt lgkmcnt(0)
        v_mov_b32 v2, s8
        global_store_dword v1, v2, s[4:5]
        s_endpgm
        """)
    a('.section .rodata,"a"')
    for kn, v in kerns:
        a(f"""
        .p2align 6
        .amdhsa_kernel {kn}
        .amdhsa_next_free_vgpr {v}
        .amdhsa_next_free_sgpr 102
        .amdhsa_accum_offset {v}
        .amdhsa_group_segment_fixed_size 0
        .amdhsa_kernarg_size 88
        .amdhsa_user_sgpr_count 2
        .amdhsa_user_sgpr_kernarg_segment_ptr 1
        .amdhsa_system_sgpr_workgroup_id_x 1
        .amdhsa_float_denorm_mode_32 3
        .end_amdhsa_kernel
        """)
    return a.text()


if __name__ == "__main__":
    o = Opt()
    out = sys.argv[1]
    for kv in sys.argv[2:]:
        k, v = kv.split("=")
        assert hasattr(o, k), k
        setattr(o, k, int(v) if v.lstrip("-").isdigit() else v.replace("+", " "))
    open(out, "w").write(generate(o))
```

```python
import struct
import sys

NAME = "gather_scatter__tensor_product_equiv_tfn__graph"
N, E = 10000, 160000
NPROD, CH = 250, 640
XBYTES = N * 1024

WS_TAB = 0
WS_REC = 0x80000
CHB = CH * 32 + 128
WS_EPOCH = 0x700000
WS_STAMP = 0x800000

SLOTS = 8

L_DEG, L_BIN, L_MAX, L_ZERO, L_NULL, L_MAP, L_INV = 0, 256, 512, 528, 544, 768, 1024
L_HIST, L_START = 1280, 2304
L_CG, L_WR = 3328, 3584
L_WM = 5632
L_PAY = L_WM + 32768
L_ENT = L_PAY + SLOTS * 512 * 16
ENT_OWN = 1024
L_AGG = L_ENT + ENT_OWN * 8
ROWB = 288
L_END = L_AGG + 160 * ROWB
L_STAGE = L_AGG
assert (256 * 2 * SLOTS + 8 * 16 + 64) * 8 <= L_END - L_ENT
assert L_END <= 163840


def f32(x):
    return struct.unpack("<I", struct.pack("<f", x))[0]


class Opt:
    stamps = 0
    fused = 1
    D = 6
    st_out = "sc1"
    st_k1 = "sc1"
    g1at = 0
    g1st = 0
    drop = ''
    tlb = 0
    tlbst = 2097152
    nob5 = 1
    prio = 0
    pt = 5
    phsh = 14
    sp = 0
    sphi = 10000
    sphi2 = 10000
    rf = 3
    rfP = 6
    touch = 2
    wmat = 1
    D0 = 4
    pf2 = 4
    pf3 = 0
    spin = 1 << 16
    dbgwg = 0
    dbgidx = 0
    cyc = 0


class Asm:
    def __init__(self):
        self.lines = []

    def __call__(self, s=""):
        for ln in s.split("\n"):
            ln = ln.strip()
            if not ln:
                continue
            self.lines.append(ln if ln.endswith(":") or ln.startswith(".") or ln.startswith(";") else "    " + ln)

    def text(self):
        return "\n".join(self.lines) + "\n"


def vr(a, n=1):
    return "v%d" % a if n == 1 else "v[%d:%d]" % (a, a + n - 1)


def sr(a, n=1):
    return "s%d" % a if n == 1 else "s[%d:%d]" % (a, a + n - 1)


def wave_scan(a, v):
    for c in ("row_shr:1", "row_shr:2", "row_shr:4", "row_shr:8"):
        a("s_nop 1")
        a(f"v_add_u32_dpp v{v}, v{v}, v{v} {c} row_mask:0xf bank_mask:0xf bound_ctrl:1")
    a("s_nop 1")
    a(f"v_add_u32_dpp v{v}, v{v}, v{v} row_bcast:15 row_mask:0xa bank_mask:0xf")
    a("s_nop 1")
    a(f"v_add_u32_dpp v{v}, v{v}, v{v} row_bcast:31 row_mask:0xc bank_mask:0xf")


sX, sO = 20, 24
sWS, sREC = 28, 30
sQ, sW, sRND, sMAX, sSTART, sN, sOFF, sT = 32, 33, 34, 35, 36, 37, 38, 40
sTAG, sBIG, sPF = 41, 42, 43
sSPIN = 3
sROW, sIT = 0, 1
sWMD = 6
sRING = 44
sM = 60
sTMP = 76
sLN2 = 86
sST = 88

vL16, vLANE, vREC4, vREC16, vREM, vONE = 1, 2, 3, 4, 5, 6
vKA, vEA, vYA, vEINC = 7, 8, 9, 10
vKEY, vPE, vPY, vPFA = 11, 12, 13, 14
vPF = 15
vREC1 = 192
vTA = 194
vS1 = 196
vEF, vYN, vA = 16, 20, 22
vAT = 24
vE = 28
vT = 32
vWR = 40
vCG = 48
vTP = 56
vR = 72
vXB = 88
vU = 120
vACC = 152
NV = 240


def stamp(a, o, idx):
    if o.stamps and (o.stamps != 3 or idx in (0, o.dbgidx)):
        a(f"""
        {"s_memtime" if o.cyc else "s_memrealtime"} {sr(sTMP + 8, 2)}
        s_waitcnt lgkmcnt(0)
        s_mov_b32 s{sST + idx}, s{sTMP + 8}
        """)


def stamp_flush(a, o, n, kern):
    if not o.stamps:
        return
    if o.stamps == 3:
        a(f"""
        s_cmp_lg_u32 s2, {o.dbgwg}
        s_cbranch_scc1 Lm_end
        s_cmp_lg_u32 s{sW}, 0
        s_cbranch_scc1 Lm_end
        s_sub_u32 s4, s{sST + o.dbgidx}, s{sST}
        s_mul_i32 s4, s4, 4
        s_add_u32 s4, s4, 3000
        s_mov_b32 s5, 0
        Ldbg_spin:
        s_memrealtime s[6:7]
        s_waitcnt lgkmcnt(0)
        s_sub_u32 s6, s6, s{sST}
        s_add_u32 s5, s5, 1
        s_cmp_ge_u32 s5, 20000
        s_cbranch_scc1 Lm_end
        s_cmp_lt_u32 s6, s4
        s_cbranch_scc1 Ldbg_spin
        """)
        return
    if o.stamps == 2:
        a(f"""
        s_mov_b64 exec, -1
        s_cmp_lg_u32 s2, {o.dbgwg}
        s_cbranch_scc1 Lm_end
        s_cmp_lg_u32 s{sW}, 0
        s_cbranch_scc1 Lm_end
        s_load_dwordx2 s[4:5], s[0:1], 72
        v_mov_b32 v{vT}, 0
        s_waitcnt lgkmcnt(0)
        """)
        for i in range(n):
            a(f"s_sub_u32 s3, s{sST + i}, s{sST}")
            a(f"v_mov_b32 v{vT + 1}, s3")
            a(f"global_store_dword v{vT}, v{vT + 1}, s[4:5] offset:{4 * i}")
            a("s_nop 1")
        return
    a(f"""
    s_mov_b64 exec, -1
    s_lshl_b32 s3, s2, 4
    s_add_u32 s3, s3, s{sW}
    s_lshl_b32 s3, s3, 6
    s_add_u32 s3, s3, {WS_STAMP + kern * 0x80000}
    v_mov_b32 v{vT}, s3
    """)
    for i in range(n):
        a(f"v_mov_b32 v{vT + 1}, s{sST + i}")
        a(f"global_store_dword v{vT}, v{vT + 1}, {sr(sWS, 2)} offset:{4 * i}")
        a("s_nop 1")


PF = {"done": 0}


def prefetch(a, k):
    if not k:
        return
    a(f"""
    s_mul_i32 s{sTMP + 4}, s{sPF}, {k * 8192}
    s_add_u32 s{sTMP + 4}, s{sTMP + 4}, {PF["done"] * 262144}
    s_cmp_lt_u32 s{sW}, {k}
    s_cselect_b32 s{sTMP + 4}, s{sTMP + 4}, {XBYTES}
    buffer_load_dword v{vPF}, v{vPFA}, {sr(sX, 4)}, s{sTMP + 4} offen
    """)
    PF["done"] += k


def touch_setup(a, o):
    a(f"""
    s_mul_i32 s{sTMP + 4}, s{sPF}, 5
    s_add_u32 s{sTMP + 4}, s{sTMP + 4}, s{sW}
    s_lshl_b32 s{sROW}, s{sTMP + 4}, 6
    s_cmp_lt_u32 s{sW}, 5
    s_cselect_b32 s{sROW}, s{sROW}, {N}
    v_add_u32 v{vTA}, s{sROW}, v{vLANE}
    v_lshrrev_b32 v{vTA + 1}, 8, v{vTA}
    v_and_b32 v{vTA + 1}, 7, v{vTA + 1}
    v_lshlrev_b32 v{vTA}, 10, v{vTA}
    v_lshl_or_b32 v{vTA}, v{vTA + 1}, 7, v{vTA}
    v_xor_b32 v{vTA + 1}, 512, v{vTA}
    """)


def touch(a, j, lo=0, hi=N):
    a(f"""
    s_cmp_ge_u32 s{sROW}, {lo}
    s_cselect_b32 s{sTMP + 4}, 0, {XBYTES}
    s_cmp_lt_u32 s{sROW}, {hi}
    s_cselect_b32 s{sTMP + 4}, s{sTMP + 4}, {XBYTES}
    buffer_load_dword v{vPF}, v{vTA + j}, {sr(sX, 4)}, s{sTMP + 4} offen
    """)


def entry(a, o, kern):
    a(f"""
    s_cmp_ge_u32 s2, 256
    s_cbranch_scc1 L{kern}_end
    """)
    stamp(a, o, 0)
    a(f"""
    s_load_dwordx16 s[4:19], s[0:1], 0
    s_load_dwordx2 {sr(sWS, 2)}, s[0:1], 80
    s_load_dwordx2 {sr(sO, 2)}, s[0:1], 64
    v_lshrrev_b32 v{vT}, 6, v0
    v_and_b32 v{vLANE}, 63, v0
    v_readfirstlane_b32 s{sW}, v{vT}
    v_mov_b32 v{vT}, 0
    v_mov_b32 v{vT + 1}, 0
    v_lshlrev_b32 v{vT + 2}, 3, v0
    ds_write_b64 v{vT + 2}, {vr(vT, 2)}
    v_lshlrev_b32 v{vL16}, 4, v{vLANE}
    v_mov_b32 v{vONE}, 1
    """)


def side_loads(a, o):
    a(f"""
    s_cmp_lg_u32 s{sW}, 5
    s_cbranch_scc1 Lside_a
    v_lshlrev_b32 v{vT}, 2, v{vLANE}
    global_load_dword v{vTP}, v{vT}, s[14:15]
    global_load_dword v{vTP + 1}, v{vT}, s[14:15] offset:256
    global_load_dword v{vTP + 2}, v{vT}, s[14:15] offset:512
    global_load_dword v{vTP + 3}, v{vT}, s[14:15] offset:768
    Lside_a:
    s_cmp_lg_u32 s{sW}, 6
    s_cbranch_scc1 Lside_b
    v_bfe_u32 v{vT}, v{vLANE}, 3, 2
    v_and_b32 v{vT + 1}, 7, v{vLANE}
    v_lshl_add_u32 v{vT}, v{vT + 1}, 3, v{vT}
    v_lshlrev_b32 v{vT}, 1, v{vT}
    global_load_ushort v{vTP}, v{vT}, s[16:17]
    global_load_ushort v{vTP + 1}, v{vT}, s[16:17] offset:8
    Lside_b:
    """)
    if o.touch:
        a(f"""
        s_cmp_lg_u32 s{sW}, 7
        s_cbranch_scc1 Lside_t
        s_lshr_b32 s{sT}, s2, 3
        s_mov_b64 exec, 0xff
        s_lshl_b32 s{sTMP}, s{sT}, 10
        v_lshl_add_u32 v{vT}, v{vLANE}, 7, s{sTMP}
        global_load_dword v{vPF}, v{vT}, s[18:19]
        """)
        if o.touch > 1:
            a(f"""
            s_getpc_b64 {sr(sTMP + 2, 2)}
            Lside_pc:
            s_mul_i32 s{sTMP}, s{sT}, 384
            v_lshl_add_u32 v{vT}, v{vLANE}, 7, s{sTMP}
            v_min_u32 v{vT}, Lm_last-Lside_pc, v{vT}
            s_mov_b64 exec, 7
            global_load_dword v{vPF}, v{vT}, {sr(sTMP + 2, 2)}
            """)
        if o.tlb:
            st = o.tlbst
            nx = min(64, (XBYTES + st - 1) // st)
            step = (st + CHB - 1) // CHB
            nr = min(64, (NPROD + step - 1) // step)
            if o.tlb & 1:
                a(f"""
                s_mov_b64 exec, {(1 << nr) - 1 if nr < 32 else -1}
                v_mul_u32_u24 v{vT}, {step}, v{vLANE}
                v_min_u32 v{vT}, {NPROD - 1}, v{vT}
                v_mul_u32_u24 v{vT}, {CHB}, v{vT}
                v_add_u32 v{vT}, {WS_REC + CH * 32}, v{vT}
                global_load_dword v{vPF}, v{vT}, {sr(sWS, 2)}
                """)
            a(f"""
            s_mov_b64 exec, {(1 << nx) - 1 if nx < 32 else -1}
            v_mul_u32_u24 v{vT}, {st}, v{vLANE}
            v_min_u32 v{vT}, {XBYTES - 4}, v{vT}
            """)
            if o.tlb & 2:
                a(f"global_load_dword v{vPF}, v{vT}, s[4:5]")
            if o.tlb & 4:
                a(f"global_load_dword v{vPF}, v{vT}, {sr(sO, 2)}")
        a("""
        s_mov_b64 exec, -1
        Lside_t:
        """)


def side_finish(a):
    g = vTP + 4
    out = vR
    a(f"""
    s_cmp_lg_u32 s{sW}, 5
    s_cbranch_scc1 Lside_c
    s_mov_b32 s{sT}, {f32(-1.4426950408889634):#x}
    """)
    for k in range(4):
        a(f"v_lshlrev_b32 v{g + k}, 16, v{vTP + k}")
        a(f"v_and_b32 v{g + 4 + k}, 0xffff0000, v{vTP + k}")
    for k in range(8):
        a(f"v_mul_f32 v{g + k}, s{sT}, v{g + k}")
    for h in range(2):
        for p in range(2):
            g0 = g + 4 * h + 2 * p
            hi = out + 4 * h + p
            a(f"""
            v_cvt_pk_bf16_f32 v{hi}, v{g0}, v{g0 + 1}
            v_lshlrev_b32 v{vT}, 16, v{hi}
            v_and_b32 v{vT + 1}, 0xffff0000, v{hi}
            v_sub_f32 v{vT}, v{g0}, v{vT}
            v_sub_f32 v{vT + 1}, v{g0 + 1}, v{vT + 1}
            v_cvt_pk_bf16_f32 v{hi + 2}, v{vT}, v{vT + 1}
            """)
    a(f"""
    ds_write_b128 v{vL16}, {vr(out, 4)} offset:{L_WR}
    ds_write_b128 v{vL16}, {vr(out + 4, 4)} offset:{L_WR + 1024}
    Lside_c:
    s_cmp_lg_u32 s{sW}, 6
    s_cbranch_scc1 Lside_d
    v_lshl_or_b32 v{vTP}, v{vTP + 1}, 16, v{vTP}
    v_lshlrev_b32 v{vT}, 2, v{vLANE}
    ds_write_b32 v{vT}, v{vTP} offset:{L_CG}
    v_mov_b32 v{vT}, {XBYTES}
    v_mov_b32 v{vT + 1}, {L_ZERO}
    v_mov_b32 v{vT + 2}, 0
    ds_write_b64 v{vT + 2}, {vr(vT, 2)} offset:{L_NULL}
    Lside_d:
    """)


vW = 208
vWF = 224


def wmix_loads(a):
    a(f"""
    v_lshrrev_b32 v{vT}, 5, v0
    v_and_b32 v{vT + 1}, 31, v0
    v_lshlrev_b32 v{vT}, 11, v{vT}
    v_lshl_add_u32 v{vT}, v{vT + 1}, 3, v{vT}
    """)
    for j in range(8):
        a(f"global_load_dwordx2 {vr(vW + 2 * j, 2)}, v{vT}, s[18:19] offset:{256 * j}")


def wmix_finish(a):
    a(f"""
    s_mov_b32 s{sTMP}, 0x05040100
    s_mov_b32 s{sTMP + 1}, 0x07060302
    v_bfe_u32 v{vT}, v0, 3, 2
    v_lshrrev_b32 v{vT + 1}, 7, v0
    v_lshlrev_b32 v{vT}, 13, v{vT}
    v_lshl_add_u32 v{vT}, v{vT + 1}, 11, v{vT}
    v_bfe_u32 v{vT + 1}, v0, 5, 2
    v_lshl_add_u32 v{vT}, v{vT + 1}, 8, v{vT}
    v_and_b32 v{vT + 1}, 7, v0
    v_lshl_add_u32 v{vT}, v{vT + 1}, 5, v{vT}
    """)
    for nn in range(2):
        for t in range(2):
            f = vWF + 4 * (2 * nn + t)
            for jj in range(4):
                a(f"v_perm_b32 v{f + jj}, v{vW + 2 * (2 * jj + 1) + nn}, v{vW + 2 * (2 * jj) + nn}, s{sTMP + t}")
            a(f"ds_write_b128 v{vT}, {vr(f, 4)} offset:{L_WM + 1024 * t + 16 * nn}")


def phase_a(a, o):
    vD, vS, vY, vF = vXB, vXB + 2, vXB + 4, vXB + 8
    vQ, vRK, vKK, vC, vSC, vTG = vXB + 12, vXB + 14, vXB + 16, vXB + 20, vXB + 24, vXB + 28
    st = "sc1"
    a(f"""
    s_mul_i32 s3, s2, {CH * 4}
    v_lshl_add_u32 v{vT + 3}, v0, 3, s3
    v_lshlrev_b32 v{vT + 4}, 1, v{vT + 3}
    s_cmp_lt_u32 s2, {NPROD}
    s_cselect_b32 s{sT}, 5, 0
    s_cmp_lt_u32 s{sW}, s{sT}
    s_cselect_b32 s{sBIG}, 1, 0
    s_waitcnt lgkmcnt(0)
    s_cbranch_scc0 La_noload
    global_load_dwordx2 {vr(vD, 2)}, v{vT + 3}, s[8:9]
    La_noload:
    s_add_u32 s{sREC}, s{sWS}, {WS_EPOCH}
    s_addc_u32 s{sREC + 1}, s{sWS + 1}, 0
    s_load_dword s{sTAG}, {sr(sREC, 2)}, 0
    s_barrier
    s_cmp_eq_u32 s{sBIG}, 0
    s_cbranch_scc1 La_noload2
    global_load_dwordx2 {vr(vS, 2)}, v{vT + 3}, s[6:7]
    global_load_dwordx4 {vr(vY, 4)}, v{vT + 4}, s[10:11]
    global_load_dwordx4 {vr(vF, 4)}, v{vT + 4}, s[12:13]
    La_noload2:
    """)
    side_loads(a, o)
    nw = 8 if o.wmat == 0 else 0
    if nw:
        wmix_loads(a)
    setup_consumer(a, o)
    a(f"""
    s_lshl_b32 s{sT}, s2, 11
    v_lshl_add_u32 v{vT + 6}, v0, 4, s{sT}
    v_lshlrev_b32 v{vT + 7}, 3, v0
    s_waitcnt lgkmcnt(0)
    s_add_u32 s{sREC}, s{sWS}, {WS_REC}
    s_addc_u32 s{sREC + 1}, s{sWS + 1}, 0
    s_add_u32 s{sTAG}, s{sTAG}, 0x9e3779b9
    v_mov_b32 v{vTG}, s{sTAG}
    v_mov_b32 v{vTG + 1}, s{sTAG}
    v_mov_b32 v{vKK + 1}, s{sTAG}
    v_mov_b32 v{vKK + 3}, s{sTAG}
    s_cmp_eq_u32 s{sBIG}, 0
    s_cbranch_scc1 La_other
    s_waitcnt vmcnt({3 + nw})
    """)
    stamp(a, o, 1)
    for k in range(2):
        a(f"""
        v_and_b32 v{vQ + k}, 255, v{vD + k}
        v_lshlrev_b32 v{vQ + k}, 2, v{vQ + k}
        ds_add_rtn_u32 v{vRK + k}, v{vQ + k}, v{vONE} offset:{L_HIST}
        """)
    a(f"""
    s_waitcnt lgkmcnt(0)
    s_barrier
    ds_read_b128 {vr(vC, 4)}, v{vL16} offset:{L_HIST}
    ds_read_b64 {vr(vE, 2)}, v{vT + 7} offset:{L_HIST}
    s_waitcnt lgkmcnt(1)
    v_add_u32 v{vT}, v{vC}, v{vC + 1}
    v_add_u32 v{vT + 1}, v{vT}, v{vC + 2}
    v_add_u32 v{vT + 2}, v{vT + 1}, v{vC + 3}
    v_mov_b32 v{vT + 3}, v{vT + 2}
    """)
    wave_scan(a, vT + 3)
    a(f"""
    v_sub_u32 v{vSC}, v{vT + 3}, v{vT + 2}
    v_add_u32 v{vSC + 1}, v{vSC}, v{vC}
    v_add_u32 v{vSC + 2}, v{vSC}, v{vT}
    v_add_u32 v{vSC + 3}, v{vSC}, v{vT + 1}
    ds_write_b128 v{vL16}, {vr(vSC, 4)} offset:{L_START}
    ds_read_b64 {vr(vE + 2, 2)}, v{vT + 7} offset:{L_START}
    ds_read_b32 v{vT}, v{vQ} offset:{L_START}
    ds_read_b32 v{vT + 1}, v{vQ + 1} offset:{L_START}
    s_mov_b32 s{sT}, {L_STAGE}
    s_cmp_ge_u32 s{sW}, 2
    s_cbranch_scc1 La_notab
    s_waitcnt lgkmcnt(2)
    v_lshl_or_b32 v{vC}, v{vE}, 16, v{vE + 2}
    v_mov_b32 v{vC + 1}, s{sTAG}
    v_lshl_or_b32 v{vC + 2}, v{vE + 1}, 16, v{vE + 3}
    v_mov_b32 v{vC + 3}, s{sTAG}
    global_store_dwordx4 v{vT + 6}, {vr(vC, 4)}, {sr(sWS, 2)} {st}
    s_waitcnt vmcnt({1 + nw})
    s_branch La_tabdone
    La_notab:
    s_waitcnt vmcnt({nw})
    La_tabdone:
    """)
    for k in range(2):
        a(f"""
        v_mul_u32_u24 v{vT + 2}, 13, v{vS + k}
        v_lshrrev_b32 v{vT + 2}, {o.phsh}, v{vT + 2}
        v_min_u32 v{vT + 2}, 7, v{vT + 2}
        v_bfe_u32 v{vKK + 2 * k}, v{vD + k}, 8, 6
        v_lshl_or_b32 v{vKK + 2 * k}, v{vT + 2}, 6, v{vKK + 2 * k}
        v_lshl_or_b32 v{vKK + 2 * k}, v{vS + k}, 10, v{vKK + 2 * k}
        """)
    a("s_waitcnt lgkmcnt(0)")
    for k in range(2):
        a(f"""
        v_add_u32 v{vRK + k}, v{vRK + k}, v{vT + k}
        v_lshl_add_u32 v{vT + 2}, v{vRK + k}, 4, s{sT}
        v_add_u32 v{vT + 3}, {CH * 16}, v{vT + 2}
        ds_write2_b64 v{vT + 2}, {vr(vKK + 2 * k, 2)}, {vr(vY + 2 * k, 2)} offset0:0 offset1:1
        ds_write2_b64 v{vT + 3}, {vr(vF + 2 * k, 2)}, {vr(vTG, 2)} offset0:0 offset1:1
        """)
    a(f"""
    s_branch La_join
    La_other:
    s_cmp_ge_u32 s{sW}, 2
    s_cbranch_scc1 La_notab2
    v_mov_b32 v{vKK}, 0
    v_mov_b32 v{vKK + 2}, 0
    global_store_dwordx4 v{vT + 6}, {vr(vKK, 4)}, {sr(sWS, 2)} {st}
    La_notab2:
    s_barrier
    s_waitcnt vmcnt({nw})
    """)
    side_finish(a)
    a(f"""
    La_join:
    s_mov_b32 s{sT}, {L_STAGE}
    v_lshl_add_u32 v{vT + 4}, v0, 4, s{sT}
    s_mul_i32 s{sT}, s2, {CHB}
    v_lshl_add_u32 v{vT + 5}, v0, 4, s{sT}
    v_add_u32 v{vT + 6}, 8192, v{vT + 5}
    v_add_u32 v{vKA}, {CH * 16}, v{vT + 5}
    v_add_u32 v{vEA}, {CH * 16 + 8192}, v{vT + 5}
    s_cmp_lt_u32 s{sW}, 2
    s_cselect_b32 s{sBIG}, 2, 1
    s_cmp_lt_u32 s2, {NPROD}
    s_cselect_b32 s{sBIG}, s{sBIG}, 0
    s_waitcnt vmcnt(1) lgkmcnt(0)
    s_barrier
    """)
    stamp(a, o, 2)
    a(f"""
    ds_read_b128 {vr(vY, 4)}, v{vT + 4}
    ds_read_b128 {vr(vF, 4)}, v{vT + 4} offset:8192
    ds_read_b128 {vr(vS1, 4)}, v{vT + 4} offset:{CH * 16}
    ds_read_b128 {vr(vS1 + 4, 4)}, v{vT + 4} offset:{CH * 16 + 8192}
    s_cmp_lt_u32 s{sW}, 2
    s_cbranch_scc1 La_w0
    s_waitcnt vmcnt(0)
    La_w0:
    s_cmp_eq_u32 s{sBIG}, 0
    s_cbranch_scc1 La_nostore
    s_waitcnt lgkmcnt(3)
    global_store_dwordx4 v{vT + 5}, {vr(vY, 4)}, {sr(sREC, 2)} {st}
    s_cmp_eq_u32 s{sBIG}, 1
    s_cbranch_scc1 La_nostore
    s_waitcnt lgkmcnt(2)
    global_store_dwordx4 v{vT + 6}, {vr(vF, 4)}, {sr(sREC, 2)} {st}
    La_nostore:
    """)
    stamp(a, o, 3)


def setup_consumer(a, o):
    a(f"""
    s_and_b32 s{sQ}, s2, 7
    s_lshl_b32 s{sQ}, s{sQ}, 5
    s_lshr_b32 s{sT}, s2, 3
    s_or_b32 s{sQ}, s{sQ}, s{sT}
    s_mov_b32 s{sPF}, s{sT}
    v_lshlrev_b32 v{vPFA}, 7, v0
    s_mov_b32 s{sX}, s4
    s_and_b32 s{sX + 1}, s5, 0xffff
    s_mov_b32 s{sX + 2}, {XBYTES}
    s_mov_b32 s{sX + 3}, 0x20000
    s_and_b32 s{sO + 1}, s{sO + 1}, 0xffff
    s_mov_b32 s{sO + 2}, {XBYTES}
    s_mov_b32 s{sO + 3}, 0x20000
    s_mov_b32 s{sRND}, 0
    s_mov_b32 s{sWMD}, 0
    s_mov_b32 s{sLN2}, {f32(-0.6931471805599453):#x}
    s_mov_b32 s{sLN2 + 1}, {f32(-0.6931471805599453):#x}
    """)


def gen_main(a, o):
    kn = NAME + "_kernel"
    fused, D = o.fused, o.D
    ld = "sc1" if fused else ""
    a(".p2align 8")
    a(f".globl {kn}")
    a(f".type {kn},@function")
    a(f"{kn}:")
    vG0 = vXB
    vG1 = vTP
    vBA = vU + 8
    vRK = vU + 16
    vMP = vU + 24
    vEN = vE
    vK = [vG0 + 4 * j for j in range(SLOTS)]
    entry(a, o, "m")
    phase_a(a, o)

    def g1_stores(tag, wait=True):
        a(f"""
        s_cmp_eq_u32 s{sBIG}, 0
        s_cbranch_scc1 Lm_s0{tag}
        s_waitcnt lgkmcnt(0)
        global_store_dwordx4 v{vKA}, {vr(vS1, 4)}, {sr(sREC, 2)} sc1
        s_cmp_eq_u32 s{sBIG}, 1
        s_cbranch_scc1 Lm_s1{tag}
        global_store_dwordx4 v{vEA}, {vr(vS1 + 4, 4)}, {sr(sREC, 2)} sc1
        {"s_waitcnt vmcnt(2)" if wait else ""}
        s_branch Lm_s2{tag}
        Lm_s0{tag}:
        {"s_waitcnt vmcnt(0)" if wait else ""}
        Lm_s1{tag}:
        {"s_waitcnt vmcnt(1)" if wait else ""}
        Lm_s2{tag}:
        s_mov_b32 s{sBIG}, 0
        """)
    if o.g1st == 0:
        g1_stores("b", wait=False)
    a(f"""
    s_lshl_b32 s{sT}, s{sQ}, 3
    v_lshrrev_b32 v{vT + 2}, 1, v0
    v_lshl_add_u32 v{vT + 3}, v{vT + 2}, 11, s{sT}
    """)
    if o.wmat == 0:
        wmix_finish(a)
    if o.wmat == 1:
        wmix_loads(a)
    if o.wmat == 3:
        for i in range(40):
            a(f"v_mov_b32 v{vACC + i}, 0")
    a(f"global_load_dwordx2 {vr(vEN, 2)}, v{vT + 3}, {sr(sWS, 2)} sc1")
    if o.wmat in (2, 3):
        wmix_loads(a)
    if o.wmat != 3:
        for i in range(40):
            a(f"v_mov_b32 v{vACC + i}, 0")
    a(f"""
    v_mul_u32_u24 v{vREC16}, {CHB}, v{vT + 2}
    v_and_b32 v{vT + 4}, 1, v0
    v_mov_b32 v{vT + 5}, {L_MAX}
    v_lshlrev_b32 v{vREC4}, 4, v0
    v_add_u32 v{vREC4}, {L_PAY}, v{vREC4}
    s_mov_b32 s{sSPIN}, {o.spin}
    """)
    if o.wmat in (2, 3):
        a("""
        s_waitcnt vmcnt(8)
        s_branch Lm_poll2
        """)
    if o.g1st == 1:
        g1_stores("c")
        a("s_branch Lm_poll2")
    a(f"""
    Lm_poll:
    s_waitcnt vmcnt(0)
    Lm_poll2:
    v_cmp_ne_u32 vcc, s{sTAG}, v{vEN + 1}
    s_cbranch_vccz Lm_ready
    s_sub_u32 s{sSPIN}, s{sSPIN}, 1
    s_cbranch_scc1 Lm_end
    s_mov_b64 exec, vcc
    global_load_dwordx2 {vr(vEN, 2)}, v{vT + 3}, {sr(sWS, 2)} sc1
    s_branch Lm_poll
    Lm_ready:
    s_mov_b64 exec, -1
    """)
    stamp(a, o, 4)
    a(f"""
    v_and_b32 v{vT}, 0xffff, v{vEN}
    v_lshrrev_b32 v{vREM}, 16, v{vEN}
    v_add_u32 v{vT}, v{vT}, v{vT + 4}
    v_lshl_add_u32 v{vREC16}, v{vT}, 4, v{vREC16}
    v_add_u32 v{vREC1}, {CH * 16}, v{vREC16}
    v_cmp_lt_u32 vcc, {2 * SLOTS}, v{vREM}
    s_and_saveexec_b64 {sr(sTMP, 2)}, vcc
    ds_max_u32 v{vT + 5}, v{vREM}
    s_mov_b64 exec, -1
    v_sub_u32 v{vREM}, v{vREM}, v{vT + 4}
    Lm_round:
    """)
    for j in range(SLOTS):
        a(f"v_cmp_lt_i32 {sr(sM + 2 * j, 2)}, {2 * j}, v{vREM}")

    def per_slot(label, body):
        for j in range(SLOTS):
            a(f"s_mov_b64 exec, {sr(sM + 2 * j, 2)}")
            a(f"s_cbranch_execz {label}")
            body(j)
        a(f"{label}:")
        a("s_mov_b64 exec, -1")

    def check(j, v, retry):
        a(f"v_cmp_ne_u32 vcc, s{sTAG}, v{v}")
        a(f"s_cbranch_vccnz {retry}")

    def ldg1(j):
        a(f"global_load_dwordx3 {vr(vG1 + 4 * j, 3)}, v{vREC1}, {sr(sREC, 2)} offset:{32 * j} sc1")

    a("Lm_g0:")
    per_slot("Lm_ld", lambda j: a(f"global_load_dwordx4 {vr(vG0 + 4 * j, 4)}, v{vREC16}, {sr(sREC, 2)} offset:{32 * j} sc1"))
    if o.wmat == 1:
        a(f"""
        s_cmp_lg_u32 s{sRND}, 0
        s_cbranch_scc1 Lm_nowm
        """)
        wmix_finish(a)
        a("Lm_nowm:")
    if o.g1at == -1:
        per_slot("Lm_ld1", ldg1)
    if o.g1st == 2:
        g1_stores("a")
    elif o.wmat == 4:
        a(f"""
        s_cmp_lg_u32 s{sWMD}, 0
        s_cbranch_scc1 Lm_wm4
        s_mov_b32 s{sWMD}, 1
        """)
        wmix_loads(a)
        a("""
        s_waitcnt vmcnt(8)
        s_branch Lm_wm4b
        Lm_wm4:
        s_waitcnt vmcnt(0)
        Lm_wm4b:
        """)
    else:
        a("s_waitcnt vmcnt(0)")
    per_slot("Lm_ck0", lambda j: check(j, vG0 + 4 * j + 1, "Lm_re0"))
    stamp(a, o, 5)

    def hist1(j):
        a(f"v_and_b32 v{vBA + j}, 63, v{vK[j]}")
        a(f"v_lshlrev_b32 v{vBA + j}, 2, v{vBA + j}")
        a(f"ds_add_u32 v{vBA + j}, v{vONE} offset:{L_DEG}")
        if o.g1at == 0:
            ldg1(j)
        a(f"ds_write_b64 v{vREC4}, {vr(vG0 + 4 * j + 2, 2)} offset:{8192 * j}")
    per_slot("Lm_h1", hist1)
    a(f"""
    s_cmp_lg_u32 s{sRND}, 0
    s_cbranch_scc1 Lm_bins
    """)
    if o.wmat in (2, 3):
        wmix_finish(a)
    if o.wmat == 5:
        wmix_loads(a)
    a(f"""
    v_lshlrev_b32 v{vT + 1}, 2, v{vLANE}
    s_mul_i32 s{sT}, s{sW}, 5
    s_waitcnt lgkmcnt(0)
    s_barrier
    """)
    stamp(a, o, 6)
    a(f"""
    ds_read_b32 v{vT}, v{vT + 1} offset:{L_DEG}
    ds_read_b32 v{vT + 5}, v{vT + 5}
    """)
    prefetch(a, o.pf2)
    if o.sp:
        touch_setup(a, o)
        touch(a, 0, 0, o.sphi)
    a(f"""
    v_sub_u32 v{vT + 2}, 63, v{vLANE}
    s_add_u32 s{sTMP}, s{sT}, 1
    s_add_u32 s{sTMP + 1}, s{sT}, 2
    s_add_u32 s{sTMP + 2}, s{sT}, 3
    s_add_u32 s{sTMP + 3}, s{sT}, 4
    s_waitcnt lgkmcnt(0)
    v_lshl_or_b32 v{vT}, v{vT}, 6, v{vT + 2}
    v_readfirstlane_b32 s{sMAX}, v{vT + 5}
    v_readlane_b32 s{sRING}, v{vT}, s{sT}
    v_readlane_b32 s{sRING + 1}, v{vT}, s{sTMP}
    v_readlane_b32 s{sRING + 2}, v{vT}, s{sTMP + 1}
    v_readlane_b32 s{sRING + 3}, v{vT}, s{sTMP + 2}
    v_readlane_b32 s{sRING + 4}, v{vT}, s{sTMP + 3}
    """)
    for k in range(5):
        a(f"v_cmp_lt_u32 {sr(sTMP + 2 * k, 2)}, s{sRING + k}, v{vT}")
    for k in range(5):
        a(f"s_bcnt1_i32_b64 s{sRING + 8 + k}, {sr(sTMP + 2 * k, 2)}")
    for k in range(5):
        a(f"v_writelane_b32 v{vT + 2}, s{sRING + 8 + k}, {k}")
    a(f"""
    s_mov_b64 exec, 31
    v_lshrrev_b32 v{vT}, 3, v{vT + 2}
    v_and_b32 v{vT + 3}, 7, v{vT + 2}
    v_cmp_lt_u32 vcc, 15, v{vT + 2}
    v_xor_b32 v{vT + 4}, 7, v{vT + 3}
    v_add_u32 v{vT + 5}, s{sT}, v{vLANE}
    v_cndmask_b32 v{vT + 3}, v{vT + 3}, v{vT + 4}, vcc
    v_lshlrev_b32 v{vT + 2}, 5, v{vT + 3}
    v_lshl_or_b32 v{vT + 2}, v{vT}, 19, v{vT + 2}
    v_mad_u32_u24 v{vT + 3}, v{vT + 3}, 5, v{vT}
    v_lshlrev_b32 v{vT + 4}, 2, v{vT + 5}
    v_lshlrev_b32 v{vT + 3}, 2, v{vT + 3}
    ds_write_b32 v{vT + 4}, v{vT + 2} offset:{L_MAP}
    ds_write_b32 v{vT + 3}, v{vT + 5} offset:{L_INV}
    s_mov_b64 exec, -1
    """)
    a(f"""
    v_and_b32 v{vT}, 3, v0
    v_lshlrev_b32 v{vT}, 5, v{vT}
    ds_read_b128 {vr(vWR, 4)}, v{vL16} offset:{L_WR}
    ds_read_b128 {vr(vWR + 4, 4)}, v{vL16} offset:{L_WR + 1024}
    ds_read_b128 {vr(vCG, 4)}, v{vT} offset:{L_CG}
    ds_read_b128 {vr(vCG + 4, 4)}, v{vT} offset:{L_CG + 16}
    s_waitcnt lgkmcnt(4)
    s_barrier
    """)
    prefetch(a, o.pf3)
    if o.sp > 1:
        touch(a, 1, 0, o.sphi2)
    a("Lm_bins:")
    stamp(a, o, 7)

    def rdmap(j):
        a(f"ds_read_b32 v{vMP + j}, v{vBA + j} offset:{L_MAP}")
        a(f"v_bfe_u32 v{vBA + j}, v{vK[j]}, 6, 3")
        a(f"v_and_b32 v{vK[j]}, 0xfffffc00, v{vK[j]}")
    per_slot("Lm_mp", rdmap)
    a("s_waitcnt lgkmcnt(0)")

    def hist2(j):
        a(f"v_and_b32 v{vRK + j}, 0xffff, v{vMP + j}")
        a(f"v_lshl_add_u32 v{vBA + j}, v{vBA + j}, 2, v{vRK + j}")
        a(f"ds_add_rtn_u32 v{vRK + j}, v{vBA + j}, v{vONE} offset:{L_BIN}")
        a(f"v_lshrrev_b32 v{vMP + j}, 16, v{vMP + j}")
        a(f"v_or_b32 v{vK[j]}, v{vK[j]}, v{vMP + j}")
        if o.g1at == 1:
            ldg1(j)
    per_slot("Lm_h2", hist2)
    npf = (1 if o.pf2 else 0) + (1 if o.pf3 else 0) + o.sp

    def g1_finish(young):
        a(f"s_waitcnt vmcnt({young + npf})")
        if npf:
            a(f"""
            s_cmp_eq_u32 s{sRND}, 0
            s_cbranch_scc1 Lm_g1
            s_waitcnt vmcnt({young})
            """)
        a("Lm_g1:")

        def ckwp(j):
            check(j, vG1 + 4 * j + 2, "Lm_re1")
            a(f"ds_write_b64 v{vREC4}, {vr(vG1 + 4 * j, 2)} offset:{8192 * j + 8}")
        per_slot("Lm_ck1", ckwp)
    if o.nob5:
        g1_finish(0)
        if o.wmat in (4, 5):
            a(f"""
            s_cmp_lg_u32 s{sRND}, 0
            s_cbranch_scc1 Lm_nowm2
            """)
            wmix_finish(a)
            a("Lm_nowm2:")
    a(f"""
    v_lshlrev_b32 v{vT + 1}, 2, v{vLANE}
    s_lshl_b32 s{sT}, s{sW}, 3
    s_add_u32 s{sTMP}, s{sT}, 7
    v_lshrrev_b32 v{vT + 3}, 3, v{vLANE}
    s_waitcnt lgkmcnt(0)
    s_barrier
    """)
    stamp(a, o, 8)
    a(f"""
    ds_read_b32 v{vT}, v{vT + 1} offset:{L_BIN}
    s_waitcnt lgkmcnt(0)
    v_mov_b32 v{vT + 2}, v{vT}
    """)
    wave_scan(a, vT + 2)
    a(f"""
    v_lshl_add_u32 v{vT + 2}, v{vT + 3}, 4, v{vT + 2}
    v_sub_u32 v{vT}, v{vT + 2}, v{vT}
    """)
    for j in range(SLOTS):
        if j:
            a(f"s_cmp_eq_u64 {sr(sM + 2 * j, 2)}, 0")
            a("s_cbranch_scc1 Lm_bp")
        a(f"ds_bpermute_b32 v{vMP + j}, v{vBA + j}, v{vT}")
    a(f"""
    Lm_bp:
    v_readlane_b32 s{sSTART}, v{vT}, s{sT}
    v_readlane_b32 s{sN}, v{vT + 2}, s{sTMP}
    v_readlane_b32 s{sBIG}, v{vT + 2}, 63
    v_mov_b32 v{vT + 4}, {XBYTES}
    v_mov_b32 v{vT + 5}, {L_ZERO}
    s_mov_b32 s{sTMP + 2}, {L_ENT}
    v_add_u32 v{vT + 2}, s{sN}, v{vLANE}
    v_lshl_add_u32 v{vT + 2}, v{vT + 2}, 3, s{sTMP + 2}
    s_cmp_eq_u32 s{sW}, 7
    s_cselect_b64 exec, -1, 0xffff
    ds_write_b64 v{vT + 2}, {vr(vT + 4, 2)}
    s_mov_b64 exec, -1
    s_sub_u32 s{sN}, s{sN}, s{sSTART}
    s_lshl_b32 s{sSTART}, s{sSTART}, 3
    s_add_u32 s{sSTART}, s{sSTART}, {L_ENT}
    v_lshl_add_u32 v{vKA}, v{vLANE}, 3, s{sSTART}
    v_lshrrev_b32 v{vYA}, 2, v{vLANE}
    v_lshl_add_u32 v{vYA}, v{vYA}, 3, s{sSTART}
    v_bfe_u32 v{vT}, v{vLANE}, 3, 2
    v_and_b32 v{vT + 1}, 3, v{vLANE}
    v_lshl_add_u32 v{vT}, v{vT}, 2, v{vT + 1}
    v_lshl_add_u32 v{vEA}, v{vT}, 3, s{sSTART}
    s_waitcnt lgkmcnt(1)
    """)

    def wr(j):
        a(f"v_add_u32 v{vRK + j}, v{vRK + j}, v{vMP + j}")
        a(f"v_lshl_add_u32 v{vRK + j}, v{vRK + j}, 3, s{sTMP + 2}")
        a(f"v_add_u32 v{vMP + j}, {8192 * j}, v{vREC4}")
        a(f"ds_write2_b32 v{vRK + j}, v{vK[j]}, v{vMP + j} offset0:0 offset1:1")
        if o.g1at == 2:
            ldg1(j)
    per_slot("Lm_wr", wr)
    a(f"""
    s_mov_b32 s{sTMP}, 0x0f0f0f0f
    s_mov_b32 s{sTMP + 1}, 0xf0f0f0f0
    v_mov_b32 v{vT}, {L_NULL}
    v_mov_b32 v{vT + 1}, {L_NULL - 32}
    v_mov_b32 v{vT + 2}, 128
    v_cndmask_b32 v{vT}, v{vT}, v{vEA}, {sr(sTMP, 2)}
    v_cndmask_b32 v{vEA}, v{vT + 1}, v{vEA}, {sr(sTMP, 2)}
    v_cndmask_b32 v{vEINC}, 0, v{vT + 2}, {sr(sTMP, 2)}
    s_waitcnt lgkmcnt(0)
    s_barrier
    """)
    stamp(a, o, 9)
    vK0, vPE0, vEF0 = vT + 1, vT + 2, vTP
    a(f"""
    ds_read_b32 v{vK0}, v{vKA}
    ds_read_b32 v{vPE0}, v{vT} offset:4
    ds_read_b32 v{vPE}, v{vEA} offset:{4 + 32}
    ds_read_b32 v{vPY}, v{vYA} offset:4
    ds_read_b32 v{vKEY}, v{vKA} offset:{8 * D}
    v_lshlrev_b32 v{vT + 3}, 2, v{vLANE}
    v_mov_b32 v{vT + 4}, 0
    ds_write_b32 v{vT + 3}, v{vT + 4} offset:{L_BIN}
    s_add_u32 s{sN}, s{sN}, 3
    s_lshr_b32 s{sN}, s{sN}, 2
    s_waitcnt lgkmcnt(5)
    """)
    for i in range(D + 2):
        a(f"v_readlane_b32 s{sRING + i}, v{vK0}, {i}")
    D0 = min(D, o.D0)

    def rowld(i):
        a(f"s_and_b32 s{sOFF}, s{sRING + i}, 0xfffffc00")
        a(f"buffer_load_dwordx4 {vr(vXB + 4 * i, 4)}, v{vL16}, {sr(sX, 4)}, s{sOFF} offen")
    for i in range(D0):
        rowld(i)
    if not o.nob5:
        g1_finish(D0)
        a("""
        s_waitcnt lgkmcnt(0)
        s_barrier
        """)
    a(f"""
    s_waitcnt lgkmcnt(0)
    s_cmp_eq_u32 s{sN}, 0
    s_cbranch_scc1 Lm_done
    s_sub_u32 s{sN}, s{sN}, 1
    ds_read2_b64 {vr(vEF0, 4)}, v{vPE0} offset0:1 offset1:1
    ds_read_b64 {vr(vYN, 2)}, v{vPY}
    ds_read2_b64 {vr(vEF, 4)}, v{vPE} offset0:1 offset1:1
    """)
    for i in range(D0, D):
        rowld(i)
    a(f"s_and_b32 s{sOFF}, s{sRING + D}, 0xfffffc00")
    a(f"s_and_b32 s{sOFF + 1}, s{sRING + D + 1}, 0xfffffc00")

    def mz(h, ef):
        a(f"v_mfma_f32_32x32x16_bf16 {vr(vU + 16 * h, 16)}, {vr(ef, 4)}, {vr(vWR + 4 * h, 4)}, 0")

    def dot(n):
        i, p = n & 3, n >> 2
        c = f"v{vAT + i}" if p else "0"
        a(f"v_dot2_f32_bf16 v{vAT + i}, v{vYN + p}, v{vCG + 2 * i + p}, {c}")

    a("s_waitcnt lgkmcnt(0)")
    mz(0, vEF0)
    mz(1, vEF0)
    for n in range(8):
        dot(n)
    a(f"v_add_u32 v{vEA}, v{vEINC}, v{vEA}")
    a(f"v_add_u32 v{vYA}, 128, v{vYA}")
    a(f"v_add_u32 v{vKA}, 128, v{vKA}")
    a(f"v_cvt_pk_bf16_f32 v{vA}, v{vAT}, v{vAT + 1}")
    a(f"v_cvt_pk_bf16_f32 v{vA + 1}, v{vAT + 2}, v{vAT + 3}")
    tmp = vTP + 8
    for r in range(8):
        a(f"v_exp_f32 v{tmp + r}, v{vU + 16 * (r >> 2) + (r & 3)}")
    a("s_nop 0")
    for r in range(0, 8, 2):
        a(f"v_pk_add_f32 {vr(tmp + r, 2)}, {vr(tmp + r, 2)}, 1.0 op_sel_hi:[1,0]")
    for r in range(8):
        a(f"v_rcp_f32 v{tmp + r}, v{tmp + r}")
    a("s_nop 0")
    for r in range(0, 8, 2):
        a(f"v_pk_mul_f32 {vr(vR + r, 2)}, {vr(vU + 16 * (r >> 2) + (r & 3), 2)}, {vr(tmp + r, 2)}")
    mz(0, vEF)
    a("s_nop 7")
    stamp(a, o, 10)
    if o.prio:
        a("s_setprio 3")
    if o.sp:
        a(f"s_mov_b32 s{sIT}, 0")
    a(".p2align 6")
    a("Lm_loop:")
    for P in range(8):
        g, hf = P >> 1, P & 1
        i0 = 2 * P
        sn = vU + 16 * hf + 4 * g
        dn = vR + 8 * ((g + 1) & 1) + 4 * hf
        cur = vR + 8 * (g & 1) + 2 * hf
        a(f"s_waitcnt vmcnt({D - 2})")
        for k in range(2):
            a(f"buffer_load_dwordx4 {vr(vXB + 4 * ((i0 + k + D) & 7), 4)}, v{vL16}, {sr(sX, 4)}, s{sOFF + k} offen")
        for k in range(2):
            xb = vXB + 4 * ((i0 + k) & 7)
            for h in range(2):
                a(f"v_mfma_f32_4x4x4_16b_bf16 {vr(vTP + 8 * k + 4 * h, 4)}, {vr(vA, 2)}, {vr(xb + 2 * h, 2)}, 0 cbsz:4 abid:{i0 + k}")
                a(f"v_exp_f32 v{vE + 2 * k + h}, v{sn + 2 * k + h}")
        if P == 0:
            a("s_waitcnt lgkmcnt(0)")
        for k in range(2):
            a(f"v_readlane_b32 s{sRING + ((i0 + k + D + 2) & 15)}, v{vKEY}, {i0 + k + 2}")
        for k in range(2):
            a(f"v_pk_add_f32 {vr(vE + 2 * k, 2)}, {vr(vE + 2 * k, 2)}, 1.0 op_sel_hi:[1,0]")
        if P == 0:
            mz(1, vEF)
        if P == 7:
            mz(0, vEF)
        for r in range(4):
            a(f"v_rcp_f32 v{vE + r}, v{vE + r}")
        if P == 0:
            a(f"ds_read_b32 v{vPY}, v{vYA} offset:4")
            a(f"ds_read_b32 v{vPE}, v{vEA} offset:{4 + 32}")
        if P == 1:
            a("s_waitcnt lgkmcnt(0)")
            a(f"ds_read_b64 {vr(vYN, 2)}, v{vPY}")
            a(f"ds_read2_b64 {vr(vEF, 4)}, v{vPE} offset0:1 offset1:1")
        if P == 7:
            a(f"ds_read_b32 v{vKEY}, v{vKA} offset:{8 * D}")
        for k in range(2):
            a(f"s_and_b32 s{sOFF + k}, s{sRING + ((i0 + k + D + 2) & 15)}, 0xfffffc00")
        for k in range(2):
            a(f"s_set_gpr_idx_on s{sRING + i0}, 0xc" if k == 0 else f"s_set_gpr_idx_idx s{sRING + i0 + 1}")
            for q in range(4):
                a(f"v_pk_fma_f32 {vr(vACC + 2 * q, 2)}, {vr(cur + 4 * (q >> 1), 2)}, {vr(vTP + 8 * k + 2 * q, 2)}, "
                  f"{vr(vACC + 2 * q, 2)} op_sel:[{k},0,0] op_sel_hi:[{k},1,1]")
        a("s_set_gpr_idx_off")
        for k in range(2):
            a(f"v_pk_mul_f32 {vr(dn + 2 * k, 2)}, {vr(sn + 2 * k, 2)}, {vr(vE + 2 * k, 2)}")
        if P == 1:
            a(f"v_add_u32 v{vEA}, v{vEINC}, v{vEA}")
            a(f"v_add_u32 v{vYA}, 128, v{vYA}")
        if P == o.rfP and o.sp and o.rf:
            a(f"""
            s_add_u32 s{sIT}, s{sIT}, 2048
            s_cmp_ge_u32 s{sROW}, s{sIT}
            s_cselect_b32 s{sTMP + 4}, 0, {XBYTES}
            s_bitcmp1_b32 s{sIT}, 11
            s_cbranch_scc{0 if o.rf == 1 else 1} Lm_norf
            """ if o.rf < 3 else f"""
            s_add_u32 s{sIT}, s{sIT}, 2048
            s_cmp_ge_u32 s{sROW}, s{sIT}
            s_cselect_b32 s{sTMP + 4}, 0, {XBYTES}
            """)
            a(f"""
            s_cmp_lt_u32 s{sROW}, {o.sphi}
            s_cselect_b32 s{sTMP + 5}, s{sTMP + 4}, {XBYTES}
            buffer_load_dword v{vPF}, v{vTA}, {sr(sX, 4)}, s{sTMP + 5} offen
            """)
            if o.sp > 1:
                a(f"""
                s_cmp_lt_u32 s{sROW}, {o.sphi2}
                s_cselect_b32 s{sTMP + 5}, s{sTMP + 4}, {XBYTES}
                buffer_load_dword v{vPF}, v{vTA + 1}, {sr(sX, 4)}, s{sTMP + 5} offen
                """)
            a("Lm_norf:")
        if P == 2:
            a("s_waitcnt lgkmcnt(0)")
        if 2 <= P < 6:
            dot(2 * (P - 2))
            dot(2 * (P - 2) + 1)
        if P == 7:
            a(f"""
            v_cvt_pk_bf16_f32 v{vA}, v{vAT}, v{vAT + 1}
            v_cvt_pk_bf16_f32 v{vA + 1}, v{vAT + 2}, v{vAT + 3}
            v_add_u32 v{vKA}, 128, v{vKA}
            """)
        if hf and o.prio and (o.prio == 1 or P in (3, 7)):
            for lv, th in enumerate((o.pt, 2 * o.pt, 3 * o.pt)):
                a(f"""
                s_cmp_{"eq" if o.prio == 1 else "le"}_u32 s{sN}, {th}
                s_cbranch_scc0 Lm_pr{P}_{lv}
                s_setprio {lv}
                {f"s_branch Lm_pr{P}_2" if o.prio != 1 and lv < 2 else ""}
                Lm_pr{P}_{lv}:
                """)
        if hf:
            a(f"s_sub_u32 s{sN}, s{sN}, 1")
            a("s_cbranch_scc1 Lm_done" if P < 7 else "s_cbranch_scc0 Lm_loop")
    if o.drop:
        i0 = max(i for i, l in enumerate(a.lines) if l == "Lm_loop:")
        a.lines[i0:] = [l for l in a.lines[i0:] if not any(l.strip().startswith(d) for d in o.drop.split())]
    a("Lm_done:")
    stamp(a, o, 11)
    vWM = vU
    a(f"""
    s_add_u32 s{sRND}, s{sRND}, {2 * SLOTS}
    s_cmp_ge_u32 s{sRND}, s{sMAX}
    s_cbranch_scc1 Lm_epi
    s_waitcnt vmcnt(0) lgkmcnt(0)
    s_barrier
    s_mov_b32 s{sBIG}, 0
    v_subrev_u32 v{vREM}, {2 * SLOTS}, v{vREM}
    v_add_u32 v{vREC1}, {32 * SLOTS}, v{vREC1}
    v_add_u32 v{vREC16}, {32 * SLOTS}, v{vREC16}
    s_branch Lm_round
    Lm_epi:
    s_cmp_le_u32 s{sBIG}, {ENT_OWN - 64}
    s_cbranch_scc1 Lm_small
    s_waitcnt lgkmcnt(0)
    s_barrier
    Lm_small:
    s_mul_i32 s{sT}, s{sW}, {20 * ROWB}
    s_add_u32 s{sT}, s{sT}, {L_AGG}
    v_lshl_add_u32 v{vT}, v{vLANE}, 2, s{sT}
    s_lshr_b32 s{sTMP}, s{sW}, 2
    s_mul_i32 s{sTMP + 1}, s{sTMP}, 80
    v_lshrrev_b32 v{vT + 1}, 4, v{vLANE}
    v_lshl_add_u32 v{vT + 2}, v{vT + 1}, 2, s{sTMP + 1}
    s_and_b32 s{sTMP + 2}, s{sW}, 3
    s_lshl_b32 s{sTMP + 3}, s{sTMP + 2}, 13
    v_add_u32 v{vT + 4}, s{sTMP + 3}, v{vL16}
    """)
    vINV = vAT
    for s in range(5):
        acc = vACC + 8 * s
        for r in range(0, 8, 2):
            a(f"v_pk_mul_f32 {vr(acc + r, 2)}, {vr(acc + r, 2)}, {sr(sLN2, 2)}")
        for r in range(4):
            a(f"v_cvt_pk_bf16_f32 v{acc + r}, v{acc + r}, v{acc + 4 + r}")
        a(f"ds_write2_b32 v{vT}, v{acc}, v{acc + 1} offset0:0 offset1:{ROWB // 4}")
        a(f"ds_write2_b32 v{vT}, v{acc + 2}, v{acc + 3} offset0:{2 * ROWB // 4} offset1:{3 * ROWB // 4}")
        if s < 4:
            a(f"v_add_u32 v{vT}, {4 * ROWB}, v{vT}")
    a("s_waitcnt lgkmcnt(0)")
    for mt in range(5):
        a(f"ds_read_b32 v{vINV + mt}, v{vT + 2} offset:{L_INV + 16 * mt}")
    for i in range(8):
        a(f"ds_read_b128 {vr(vWM + 4 * i, 4)}, v{vT + 4} offset:{L_WM + 1024 * i}")
    a(f"""
    v_and_b32 v{vT + 3}, 15, v{vLANE}
    v_mul_u32_u24 v{vT}, {ROWB}, v{vT + 3}
    v_lshl_add_u32 v{vT}, v{vT + 1}, 4, v{vT}
    s_mul_i32 s{sTMP + 1}, s{sTMP}, {80 * ROWB}
    s_add_u32 s{sTMP + 1}, s{sTMP + 1}, {L_AGG}
    v_add_u32 v{vT}, s{sTMP + 1}, v{vT}
    s_lshl_b32 s{sT}, s{sTMP + 2}, 8
    s_lshl_b32 s{sTMP + 1}, s{sQ}, 10
    s_add_u32 s{sT}, s{sT}, s{sTMP + 1}
    v_lshl_add_u32 v{vT + 3}, v{vT + 3}, 4, s{sT}
    s_waitcnt vmcnt(0)
    s_barrier
    """)
    a("s_waitcnt lgkmcnt(0)")
    stamp(a, o, 12)

    def frag(mt, s):
        return vWR + 16 * mt + 4 * s

    def rd(mt):
        for s in range(4):
            a(f"ds_read_b128 {vr(frag(mt, s), 4)}, v{vT} offset:{16 * ROWB * mt + 64 * s}")
    for mt in range(3):
        rd(mt)
    for mt in range(5):
        a(f"v_lshl_add_u32 v{vINV + mt}, v{vINV + mt}, 18, v{vT + 3}")
    vD = vACC

    def fin(mt):
        d = vD + 8 * mt
        for r in range(4):
            a(f"v_cvt_pk_bf16_f32 v{d + r}, v{d + 2 * r}, v{d + 2 * r + 1}")
        a(f"buffer_store_dwordx4 {vr(d, 4)}, v{vINV + mt}, {sr(sO, 4)}, 0 offen {o.st_out}")
    for mt in range(5):
        d = vD + 8 * mt
        pend = min(mt + 3, 5) - mt - 1
        for s in range(4):
            a(f"s_waitcnt lgkmcnt({4 * pend + 3 - s})")
            for t in range(2):
                c = vr(d + 4 * t, 4) if s else "0"
                a(f"v_mfma_f32_16x16x32_bf16 {vr(d + 4 * t, 4)}, {vr(frag(mt, s), 4)}, {vr(vWM + 8 * s + 4 * t, 4)}, {c}")
        if mt + 3 < 5:
            rd(mt + 3)
        if mt:
            fin(mt - 1)
    a("s_nop 7")
    fin(4)
    if fused:
        a(f"""
        s_or_b32 s{sT}, s2, s{sW}
        s_cmp_lg_u32 s{sT}, 0
        s_cbranch_scc1 Lm_noep
        v_mov_b32 v{vT}, {WS_EPOCH}
        v_mov_b32 v{vT + 1}, s{sTAG}
        s_mov_b64 exec, 1
        global_store_dword v{vT}, v{vT + 1}, {sr(sWS, 2)} sc1
        Lm_noep:
        """)
    if o.stamps:
        a("s_waitcnt vmcnt(0)")
    stamp(a, o, 13)
    stamp_flush(a, o, 14, 1)
    a(f"""
    Lm_end:
    s_endpgm
    Lm_re0:
    s_sub_u32 s{sSPIN}, s{sSPIN}, 1
    s_cbranch_scc0 Lm_g0
    s_endpgm
    Lm_re1:
    s_sub_u32 s{sSPIN}, s{sSPIN}, 1
    s_cbranch_scc1 Lm_end
    """)
    per_slot("Lm_rl1", lambda j: a(f"global_load_dwordx3 {vr(vG1 + 4 * j, 3)}, v{vREC1}, {sr(sREC, 2)} offset:{32 * j} sc1"))
    a("""
    s_waitcnt vmcnt(0)
    Lm_last:
    s_branch Lm_g1
    """)


def generate(o):
    a = Asm()
    ref = open(f"cdna_kernels/{NAME}.s.ref").read().split("\n")
    for ln in ref:
        if ln.startswith("; Override"):
            break
        a.lines.append(ln)
    kerns = []
    if not o.fused:
        a.lines.append(f"; @launch kernel=tfn_sort_kernel grid=(256,1,1) block=(512,1,1) lds={L_STAGE + CHB}")
        kerns.append(("tfn_sort_kernel", NV))
    if o.fused and o.stamps != 1:
        a.lines.append(f"; @launch grid=(256,1,1) block=(512,1,1) lds={L_END}")
    else:
        a.lines.append(f"; @launch kernel={NAME}_kernel grid=(256,1,1) block=(512,1,1) lds={L_END}")
    kerns.append((NAME + "_kernel", NV))
    if o.stamps == 1:
        a.lines.append("; @launch kernel=diag_end_kernel grid=(1,1,1) block=(64,1,1) lds=0")
    a('.amdgcn_target "amdgcn-amd-amdhsa--gfx950"')
    a(".text")
    gen_main(a, o)
    if o.stamps == 1:
        kerns.append(("diag_end_kernel", 8))
        a(f"""
        .p2align 8
        .globl diag_end_kernel
        .type diag_end_kernel,@function
        diag_end_kernel:
        s_memrealtime s[8:9]
        s_load_dwordx2 s[4:5], s[0:1], 80
        v_mov_b32 v1, {WS_STAMP + 2 * 0x80000}
        s_waitcnt lgkmcnt(0)
        v_mov_b32 v2, s8
        global_store_dword v1, v2, s[4:5]
        s_endpgm
        """)
    a('.section .rodata,"a"')
    for kn, v in kerns:
        a(f"""
        .p2align 6
        .amdhsa_kernel {kn}
        .amdhsa_next_free_vgpr {v}
        .amdhsa_next_free_sgpr 102
        .amdhsa_accum_offset {v}
        .amdhsa_group_segment_fixed_size 0
        .amdhsa_kernarg_size 88
        .amdhsa_user_sgpr_count 2
        .amdhsa_user_sgpr_kernarg_segment_ptr 1
        .amdhsa_system_sgpr_workgroup_id_x 1
        .amdhsa_float_denorm_mode_32 3
        .end_amdhsa_kernel
        """)
    return a.text()


if __name__ == "__main__":
    o = Opt()
    out = sys.argv[1]
    for kv in sys.argv[2:]:
        k, v = kv.split("=")
        assert hasattr(o, k), k
        setattr(o, k, int(v) if v.lstrip("-").isdigit() else v.replace("+", " "))
    open(out, "w").write(generate(o))
```

```python
import struct
import sys

NAME = "gather_scatter__tensor_product_equiv_tfn__graph"
N, E = 10000, 160000
NPROD, CH = 250, 640
XBYTES = N * 1024

WS_TAB = 0
WS_REC = 0x80000
CHB = CH * 32 + 128
WS_EPOCH = 0x700000
WS_STAMP = 0x800000

SLOTS = 8

L_DEG, L_BIN, L_MAX, L_ZERO, L_NULL, L_MAP, L_INV = 0, 256, 512, 528, 544, 768, 1024
L_HIST, L_START = 1280, 2304
L_CG, L_WR = 3328, 3584
L_WM = 5632
L_PAY = L_WM + 32768
L_ENT = L_PAY + SLOTS * 512 * 16
ENT_OWN = 1024
L_AGG = L_ENT + ENT_OWN * 8
ROWB = 288
L_END = L_AGG + 160 * ROWB
L_STAGE = L_AGG
assert (256 * 2 * SLOTS + 8 * 16 + 64) * 8 <= L_END - L_ENT
assert L_END <= 163840


def f32(x):
    return struct.unpack("<I", struct.pack("<f", x))[0]


class Opt:
    stamps = 0
    fused = 1
    D = 6
    st_out = "sc1"
    st_k1 = "sc1"
    g1at = 0
    g1st = 0
    drop = ''
    tlb = 0
    tlbst = 2097152
    nob5 = 1
    prio = 0
    pt = 5
    phsh = 14
    sp = 0
    sphi = 10000
    sphi2 = 10000
    rf = 3
    rfP = 6
    touch = 2
    wmat = 1
    D0 = 4
    pf2 = 4
    pf3 = 0
    spin = 1 << 16
    dbgwg = 0
    dbgidx = 0
    cyc = 0


class Asm:
    def __init__(self):
        self.lines = []

    def __call__(self, s=""):
        for ln in s.split("\n"):
            ln = ln.strip()
            if not ln:
                continue
            self.lines.append(ln if ln.endswith(":") or ln.startswith(".") or ln.startswith(";") else "    " + ln)

    def text(self):
        return "\n".join(self.lines) + "\n"


def vr(a, n=1):
    return "v%d" % a if n == 1 else "v[%d:%d]" % (a, a + n - 1)


def sr(a, n=1):
    return "s%d" % a if n == 1 else "s[%d:%d]" % (a, a + n - 1)


def wave_scan(a, v):
    for c in ("row_shr:1", "row_shr:2", "row_shr:4", "row_shr:8"):
        a("s_nop 1")
        a(f"v_add_u32_dpp v{v}, v{v}, v{v} {c} row_mask:0xf bank_mask:0xf bound_ctrl:1")
    a("s_nop 1")
    a(f"v_add_u32_dpp v{v}, v{v}, v{v} row_bcast:15 row_mask:0xa bank_mask:0xf")
    a("s_nop 1")
    a(f"v_add_u32_dpp v{v}, v{v}, v{v} row_bcast:31 row_mask:0xc bank_mask:0xf")


sX, sO = 20, 24
sWS, sREC = 28, 30
sQ, sW, sRND, sMAX, sSTART, sN, sOFF, sT = 32, 33, 34, 35, 36, 37, 38, 40
sTAG, sBIG, sPF = 41, 42, 43
sSPIN = 3
sROW, sIT = 0, 1
sWMD = 6
sRING = 44
sM = 60
sTMP = 76
sLN2 = 86
sST = 88

vL16, vLANE, vREC4, vREC16, vREM, vONE = 1, 2, 3, 4, 5, 6
vKA, vEA, vYA, vEINC = 7, 8, 9, 10
vKEY, vPE, vPY, vPFA = 11, 12, 13, 14
vPF = 15
vREC1 = 192
vTA = 194
vS1 = 196
vEF, vYN, vA = 16, 20, 22
vAT = 24
vE = 28
vT = 32
vWR = 40
vCG = 48
vTP = 56
vR = 72
vXB = 88
vU = 120
vACC = 152
NV = 240


def stamp(a, o, idx):
    if o.stamps and (o.stamps < 3 or idx in (0, o.dbgidx)):
        a(f"""
        {"s_memtime" if o.cyc else "s_memrealtime"} {sr(sTMP + 8, 2)}
        s_waitcnt lgkmcnt(0)
        s_mov_b32 s{sST + idx}, s{sTMP + 8}
        """)


def stamp_flush(a, o, n, kern):
    if not o.stamps:
        return
    if o.stamps == 4:
        a(f"""
        s_sub_u32 s4, s{sST + o.dbgidx}, s{sST}
        s_min_u32 s4, s4, 4000
        s_mul_i32 s4, s4, 40
        s_mov_b32 s5, 0
        Ldbg_spin:
        s_sleep 8
        s_memrealtime s[6:7]
        s_waitcnt lgkmcnt(0)
        s_sub_u32 s6, s6, s{sST}
        s_add_u32 s5, s5, 1
        s_cmp_ge_u32 s5, 20000
        s_cbranch_scc1 Lm_end
        s_cmp_lt_u32 s6, s4
        s_cbranch_scc1 Ldbg_spin
        """)
        return
    if o.stamps == 3:
        a(f"""
        s_cmp_lg_u32 s2, {o.dbgwg}
        s_cbranch_scc1 Lm_end
        s_cmp_lg_u32 s{sW}, 0
        s_cbranch_scc1 Lm_end
        s_sub_u32 s4, s{sST + o.dbgidx}, s{sST}
        s_mul_i32 s4, s4, 4
        s_add_u32 s4, s4, 3000
        s_mov_b32 s5, 0
        Ldbg_spin:
        s_memrealtime s[6:7]
        s_waitcnt lgkmcnt(0)
        s_sub_u32 s6, s6, s{sST}
        s_add_u32 s5, s5, 1
        s_cmp_ge_u32 s5, 20000
        s_cbranch_scc1 Lm_end
        s_cmp_lt_u32 s6, s4
        s_cbranch_scc1 Ldbg_spin
        """)
        return
    if o.stamps == 2:
        a(f"""
        s_mov_b64 exec, -1
        s_cmp_lg_u32 s2, {o.dbgwg}
        s_cbranch_scc1 Lm_end
        s_cmp_lg_u32 s{sW}, 0
        s_cbranch_scc1 Lm_end
        s_load_dwordx2 s[4:5], s[0:1], 72
        v_mov_b32 v{vT}, 0
        s_waitcnt lgkmcnt(0)
        """)
        for i in range(n):
            a(f"s_sub_u32 s3, s{sST + i}, s{sST}")
            a(f"v_mov_b32 v{vT + 1}, s3")
            a(f"global_store_dword v{vT}, v{vT + 1}, s[4:5] offset:{4 * i}")
            a("s_nop 1")
        return
    a(f"""
    s_mov_b64 exec, -1
    s_lshl_b32 s3, s2, 4
    s_add_u32 s3, s3, s{sW}
    s_lshl_b32 s3, s3, 6
    s_add_u32 s3, s3, {WS_STAMP + kern * 0x80000}
    v_mov_b32 v{vT}, s3
    """)
    for i in range(n):
        a(f"v_mov_b32 v{vT + 1}, s{sST + i}")
        a(f"global_store_dword v{vT}, v{vT + 1}, {sr(sWS, 2)} offset:{4 * i}")
        a("s_nop 1")


PF = {"done": 0}


def prefetch(a, k):
    if not k:
        return
    a(f"""
    s_mul_i32 s{sTMP + 4}, s{sPF}, {k * 8192}
    s_add_u32 s{sTMP + 4}, s{sTMP + 4}, {PF["done"] * 262144}
    s_cmp_lt_u32 s{sW}, {k}
    s_cselect_b32 s{sTMP + 4}, s{sTMP + 4}, {XBYTES}
    buffer_load_dword v{vPF}, v{vPFA}, {sr(sX, 4)}, s{sTMP + 4} offen
    """)
    PF["done"] += k


def touch_setup(a, o):
    a(f"""
    s_mul_i32 s{sTMP + 4}, s{sPF}, 5
    s_add_u32 s{sTMP + 4}, s{sTMP + 4}, s{sW}
    s_lshl_b32 s{sROW}, s{sTMP + 4}, 6
    s_cmp_lt_u32 s{sW}, 5
    s_cselect_b32 s{sROW}, s{sROW}, {N}
    v_add_u32 v{vTA}, s{sROW}, v{vLANE}
    v_lshrrev_b32 v{vTA + 1}, 8, v{vTA}
    v_and_b32 v{vTA + 1}, 7, v{vTA + 1}
    v_lshlrev_b32 v{vTA}, 10, v{vTA}
    v_lshl_or_b32 v{vTA}, v{vTA + 1}, 7, v{vTA}
    v_xor_b32 v{vTA + 1}, 512, v{vTA}
    """)


def touch(a, j, lo=0, hi=N):
    a(f"""
    s_cmp_ge_u32 s{sROW}, {lo}
    s_cselect_b32 s{sTMP + 4}, 0, {XBYTES}
    s_cmp_lt_u32 s{sROW}, {hi}
    s_cselect_b32 s{sTMP + 4}, s{sTMP + 4}, {XBYTES}
    buffer_load_dword v{vPF}, v{vTA + j}, {sr(sX, 4)}, s{sTMP + 4} offen
    """)


def entry(a, o, kern):
    a(f"""
    s_cmp_ge_u32 s2, 256
    s_cbranch_scc1 L{kern}_end
    """)
    stamp(a, o, 0)
    a(f"""
    s_load_dwordx16 s[4:19], s[0:1], 0
    s_load_dwordx2 {sr(sWS, 2)}, s[0:1], 80
    s_load_dwordx2 {sr(sO, 2)}, s[0:1], 64
    v_lshrrev_b32 v{vT}, 6, v0
    v_and_b32 v{vLANE}, 63, v0
    v_readfirstlane_b32 s{sW}, v{vT}
    v_mov_b32 v{vT}, 0
    v_mov_b32 v{vT + 1}, 0
    v_lshlrev_b32 v{vT + 2}, 3, v0
    ds_write_b64 v{vT + 2}, {vr(vT, 2)}
    v_lshlrev_b32 v{vL16}, 4, v{vLANE}
    v_mov_b32 v{vONE}, 1
    """)


def side_loads(a, o):
    a(f"""
    s_cmp_lg_u32 s{sW}, 5
    s_cbranch_scc1 Lside_a
    v_lshlrev_b32 v{vT}, 2, v{vLANE}
    global_load_dword v{vTP}, v{vT}, s[14:15]
    global_load_dword v{vTP + 1}, v{vT}, s[14:15] offset:256
    global_load_dword v{vTP + 2}, v{vT}, s[14:15] offset:512
    global_load_dword v{vTP + 3}, v{vT}, s[14:15] offset:768
    Lside_a:
    s_cmp_lg_u32 s{sW}, 6
    s_cbranch_scc1 Lside_b
    v_bfe_u32 v{vT}, v{vLANE}, 3, 2
    v_and_b32 v{vT + 1}, 7, v{vLANE}
    v_lshl_add_u32 v{vT}, v{vT + 1}, 3, v{vT}
    v_lshlrev_b32 v{vT}, 1, v{vT}
    global_load_ushort v{vTP}, v{vT}, s[16:17]
    global_load_ushort v{vTP + 1}, v{vT}, s[16:17] offset:8
    Lside_b:
    """)
    if o.touch:
        a(f"""
        s_cmp_lg_u32 s{sW}, 7
        s_cbranch_scc1 Lside_t
        s_lshr_b32 s{sT}, s2, 3
        s_mov_b64 exec, 0xff
        s_lshl_b32 s{sTMP}, s{sT}, 10
        v_lshl_add_u32 v{vT}, v{vLANE}, 7, s{sTMP}
        global_load_dword v{vPF}, v{vT}, s[18:19]
        """)
        if o.touch > 1:
            a(f"""
            s_getpc_b64 {sr(sTMP + 2, 2)}
            Lside_pc:
            s_mul_i32 s{sTMP}, s{sT}, 384
            v_lshl_add_u32 v{vT}, v{vLANE}, 7, s{sTMP}
            v_min_u32 v{vT}, Lm_last-Lside_pc, v{vT}
            s_mov_b64 exec, 7
            global_load_dword v{vPF}, v{vT}, {sr(sTMP + 2, 2)}
            """)
        if o.tlb:
            st = o.tlbst
            nx = min(64, (XBYTES + st - 1) // st)
            step = (st + CHB - 1) // CHB
            nr = min(64, (NPROD + step - 1) // step)
            if o.tlb & 1:
                a(f"""
                s_mov_b64 exec, {(1 << nr) - 1 if nr < 32 else -1}
                v_mul_u32_u24 v{vT}, {step}, v{vLANE}
                v_min_u32 v{vT}, {NPROD - 1}, v{vT}
                v_mul_u32_u24 v{vT}, {CHB}, v{vT}
                v_add_u32 v{vT}, {WS_REC + CH * 32}, v{vT}
                global_load_dword v{vPF}, v{vT}, {sr(sWS, 2)}
                """)
            a(f"""
            s_mov_b64 exec, {(1 << nx) - 1 if nx < 32 else -1}
            v_mul_u32_u24 v{vT}, {st}, v{vLANE}
            v_min_u32 v{vT}, {XBYTES - 4}, v{vT}
            """)
            if o.tlb & 2:
                a(f"global_load_dword v{vPF}, v{vT}, s[4:5]")
            if o.tlb & 4:
                a(f"global_load_dword v{vPF}, v{vT}, {sr(sO, 2)}")
        a("""
        s_mov_b64 exec, -1
        Lside_t:
        """)


def side_finish(a):
    g = vTP + 4
    out = vR
    a(f"""
    s_cmp_lg_u32 s{sW}, 5
    s_cbranch_scc1 Lside_c
    s_mov_b32 s{sT}, {f32(-1.4426950408889634):#x}
    """)
    for k in range(4):
        a(f"v_lshlrev_b32 v{g + k}, 16, v{vTP + k}")
        a(f"v_and_b32 v{g + 4 + k}, 0xffff0000, v{vTP + k}")
    for k in range(8):
        a(f"v_mul_f32 v{g + k}, s{sT}, v{g + k}")
    for h in range(2):
        for p in range(2):
            g0 = g + 4 * h + 2 * p
            hi = out + 4 * h + p
            a(f"""
            v_cvt_pk_bf16_f32 v{hi}, v{g0}, v{g0 + 1}
            v_lshlrev_b32 v{vT}, 16, v{hi}
            v_and_b32 v{vT + 1}, 0xffff0000, v{hi}
            v_sub_f32 v{vT}, v{g0}, v{vT}
            v_sub_f32 v{vT + 1}, v{g0 + 1}, v{vT + 1}
            v_cvt_pk_bf16_f32 v{hi + 2}, v{vT}, v{vT + 1}
            """)
    a(f"""
    ds_write_b128 v{vL16}, {vr(out, 4)} offset:{L_WR}
    ds_write_b128 v{vL16}, {vr(out + 4, 4)} offset:{L_WR + 1024}
    Lside_c:
    s_cmp_lg_u32 s{sW}, 6
    s_cbranch_scc1 Lside_d
    v_lshl_or_b32 v{vTP}, v{vTP + 1}, 16, v{vTP}
    v_lshlrev_b32 v{vT}, 2, v{vLANE}
    ds_write_b32 v{vT}, v{vTP} offset:{L_CG}
    v_mov_b32 v{vT}, {XBYTES}
    v_mov_b32 v{vT + 1}, {L_ZERO}
    v_mov_b32 v{vT + 2}, 0
    ds_write_b64 v{vT + 2}, {vr(vT, 2)} offset:{L_NULL}
    Lside_d:
    """)


vW = 208
vWF = 224


def wmix_loads(a):
    a(f"""
    v_lshrrev_b32 v{vT}, 5, v0
    v_and_b32 v{vT + 1}, 31, v0
    v_lshlrev_b32 v{vT}, 11, v{vT}
    v_lshl_add_u32 v{vT}, v{vT + 1}, 3, v{vT}
    """)
    for j in range(8):
        a(f"global_load_dwordx2 {vr(vW + 2 * j, 2)}, v{vT}, s[18:19] offset:{256 * j}")


def wmix_finish(a):
    a(f"""
    s_mov_b32 s{sTMP}, 0x05040100
    s_mov_b32 s{sTMP + 1}, 0x07060302
    v_bfe_u32 v{vT}, v0, 3, 2
    v_lshrrev_b32 v{vT + 1}, 7, v0
    v_lshlrev_b32 v{vT}, 13, v{vT}
    v_lshl_add_u32 v{vT}, v{vT + 1}, 11, v{vT}
    v_bfe_u32 v{vT + 1}, v0, 5, 2
    v_lshl_add_u32 v{vT}, v{vT + 1}, 8, v{vT}
    v_and_b32 v{vT + 1}, 7, v0
    v_lshl_add_u32 v{vT}, v{vT + 1}, 5, v{vT}
    """)
    for nn in range(2):
        for t in range(2):
            f = vWF + 4 * (2 * nn + t)
            for jj in range(4):
                a(f"v_perm_b32 v{f + jj}, v{vW + 2 * (2 * jj + 1) + nn}, v{vW + 2 * (2 * jj) + nn}, s{sTMP + t}")
            a(f"ds_write_b128 v{vT}, {vr(f, 4)} offset:{L_WM + 1024 * t + 16 * nn}")


def phase_a(a, o):
    vD, vS, vY, vF = vXB, vXB + 2, vXB + 4, vXB + 8
    vQ, vRK, vKK, vC, vSC, vTG = vXB + 12, vXB + 14, vXB + 16, vXB + 20, vXB + 24, vXB + 28
    st = "sc1"
    a(f"""
    s_mul_i32 s3, s2, {CH * 4}
    v_lshl_add_u32 v{vT + 3}, v0, 3, s3
    v_lshlrev_b32 v{vT + 4}, 1, v{vT + 3}
    s_cmp_lt_u32 s2, {NPROD}
    s_cselect_b32 s{sT}, 5, 0
    s_cmp_lt_u32 s{sW}, s{sT}
    s_cselect_b32 s{sBIG}, 1, 0
    s_waitcnt lgkmcnt(0)
    s_cbranch_scc0 La_noload
    global_load_dwordx2 {vr(vD, 2)}, v{vT + 3}, s[8:9]
    La_noload:
    s_add_u32 s{sREC}, s{sWS}, {WS_EPOCH}
    s_addc_u32 s{sREC + 1}, s{sWS + 1}, 0
    s_load_dword s{sTAG}, {sr(sREC, 2)}, 0
    s_barrier
    s_cmp_eq_u32 s{sBIG}, 0
    s_cbranch_scc1 La_noload2
    global_load_dwordx2 {vr(vS, 2)}, v{vT + 3}, s[6:7]
    global_load_dwordx4 {vr(vY, 4)}, v{vT + 4}, s[10:11]
    global_load_dwordx4 {vr(vF, 4)}, v{vT + 4}, s[12:13]
    La_noload2:
    """)
    side_loads(a, o)
    nw = 8 if o.wmat == 0 else 0
    if nw:
        wmix_loads(a)
    setup_consumer(a, o)
    a(f"""
    s_lshl_b32 s{sT}, s2, 11
    v_lshl_add_u32 v{vT + 6}, v0, 4, s{sT}
    v_lshlrev_b32 v{vT + 7}, 3, v0
    s_waitcnt lgkmcnt(0)
    s_add_u32 s{sREC}, s{sWS}, {WS_REC}
    s_addc_u32 s{sREC + 1}, s{sWS + 1}, 0
    s_add_u32 s{sTAG}, s{sTAG}, 0x9e3779b9
    v_mov_b32 v{vTG}, s{sTAG}
    v_mov_b32 v{vTG + 1}, s{sTAG}
    v_mov_b32 v{vKK + 1}, s{sTAG}
    v_mov_b32 v{vKK + 3}, s{sTAG}
    s_cmp_eq_u32 s{sBIG}, 0
    s_cbranch_scc1 La_other
    s_waitcnt vmcnt({3 + nw})
    """)
    stamp(a, o, 1)
    for k in range(2):
        a(f"""
        v_and_b32 v{vQ + k}, 255, v{vD + k}
        v_lshlrev_b32 v{vQ + k}, 2, v{vQ + k}
        ds_add_rtn_u32 v{vRK + k}, v{vQ + k}, v{vONE} offset:{L_HIST}
        """)
    a(f"""
    s_waitcnt lgkmcnt(0)
    s_barrier
    ds_read_b128 {vr(vC, 4)}, v{vL16} offset:{L_HIST}
    ds_read_b64 {vr(vE, 2)}, v{vT + 7} offset:{L_HIST}
    s_waitcnt lgkmcnt(1)
    v_add_u32 v{vT}, v{vC}, v{vC + 1}
    v_add_u32 v{vT + 1}, v{vT}, v{vC + 2}
    v_add_u32 v{vT + 2}, v{vT + 1}, v{vC + 3}
    v_mov_b32 v{vT + 3}, v{vT + 2}
    """)
    wave_scan(a, vT + 3)
    a(f"""
    v_sub_u32 v{vSC}, v{vT + 3}, v{vT + 2}
    v_add_u32 v{vSC + 1}, v{vSC}, v{vC}
    v_add_u32 v{vSC + 2}, v{vSC}, v{vT}
    v_add_u32 v{vSC + 3}, v{vSC}, v{vT + 1}
    ds_write_b128 v{vL16}, {vr(vSC, 4)} offset:{L_START}
    ds_read_b64 {vr(vE + 2, 2)}, v{vT + 7} offset:{L_START}
    ds_read_b32 v{vT}, v{vQ} offset:{L_START}
    ds_read_b32 v{vT + 1}, v{vQ + 1} offset:{L_START}
    s_mov_b32 s{sT}, {L_STAGE}
    s_cmp_ge_u32 s{sW}, 2
    s_cbranch_scc1 La_notab
    s_waitcnt lgkmcnt(2)
    v_lshl_or_b32 v{vC}, v{vE}, 16, v{vE + 2}
    v_mov_b32 v{vC + 1}, s{sTAG}
    v_lshl_or_b32 v{vC + 2}, v{vE + 1}, 16, v{vE + 3}
    v_mov_b32 v{vC + 3}, s{sTAG}
    global_store_dwordx4 v{vT + 6}, {vr(vC, 4)}, {sr(sWS, 2)} {st}
    s_waitcnt vmcnt({1 + nw})
    s_branch La_tabdone
    La_notab:
    s_waitcnt vmcnt({nw})
    La_tabdone:
    """)
    for k in range(2):
        a(f"""
        v_mul_u32_u24 v{vT + 2}, 13, v{vS + k}
        v_lshrrev_b32 v{vT + 2}, {o.phsh}, v{vT + 2}
        v_min_u32 v{vT + 2}, 7, v{vT + 2}
        v_bfe_u32 v{vKK + 2 * k}, v{vD + k}, 8, 6
        v_lshl_or_b32 v{vKK + 2 * k}, v{vT + 2}, 6, v{vKK + 2 * k}
        v_lshl_or_b32 v{vKK + 2 * k}, v{vS + k}, 10, v{vKK + 2 * k}
        """)
    a("s_waitcnt lgkmcnt(0)")
    for k in range(2):
        a(f"""
        v_add_u32 v{vRK + k}, v{vRK + k}, v{vT + k}
        v_lshl_add_u32 v{vT + 2}, v{vRK + k}, 4, s{sT}
        v_add_u32 v{vT + 3}, {CH * 16}, v{vT + 2}
        ds_write2_b64 v{vT + 2}, {vr(vKK + 2 * k, 2)}, {vr(vY + 2 * k, 2)} offset0:0 offset1:1
        ds_write2_b64 v{vT + 3}, {vr(vF + 2 * k, 2)}, {vr(vTG, 2)} offset0:0 offset1:1
        """)
    a(f"""
    s_branch La_join
    La_other:
    s_cmp_ge_u32 s{sW}, 2
    s_cbranch_scc1 La_notab2
    v_mov_b32 v{vKK}, 0
    v_mov_b32 v{vKK + 2}, 0
    global_store_dwordx4 v{vT + 6}, {vr(vKK, 4)}, {sr(sWS, 2)} {st}
    La_notab2:
    s_barrier
    s_waitcnt vmcnt({nw})
    """)
    side_finish(a)
    a(f"""
    La_join:
    s_mov_b32 s{sT}, {L_STAGE}
    v_lshl_add_u32 v{vT + 4}, v0, 4, s{sT}
    s_mul_i32 s{sT}, s2, {CHB}
    v_lshl_add_u32 v{vT + 5}, v0, 4, s{sT}
    v_add_u32 v{vT + 6}, 8192, v{vT + 5}
    v_add_u32 v{vKA}, {CH * 16}, v{vT + 5}
    v_add_u32 v{vEA}, {CH * 16 + 8192}, v{vT + 5}
    s_cmp_lt_u32 s{sW}, 2
    s_cselect_b32 s{sBIG}, 2, 1
    s_cmp_lt_u32 s2, {NPROD}
    s_cselect_b32 s{sBIG}, s{sBIG}, 0
    s_waitcnt vmcnt(1) lgkmcnt(0)
    s_barrier
    """)
    stamp(a, o, 2)
    a(f"""
    ds_read_b128 {vr(vY, 4)}, v{vT + 4}
    ds_read_b128 {vr(vF, 4)}, v{vT + 4} offset:8192
    ds_read_b128 {vr(vS1, 4)}, v{vT + 4} offset:{CH * 16}
    ds_read_b128 {vr(vS1 + 4, 4)}, v{vT + 4} offset:{CH * 16 + 8192}
    s_cmp_lt_u32 s{sW}, 2
    s_cbranch_scc1 La_w0
    s_waitcnt vmcnt(0)
    La_w0:
    s_cmp_eq_u32 s{sBIG}, 0
    s_cbranch_scc1 La_nostore
    s_waitcnt lgkmcnt(3)
    global_store_dwordx4 v{vT + 5}, {vr(vY, 4)}, {sr(sREC, 2)} {st}
    s_cmp_eq_u32 s{sBIG}, 1
    s_cbranch_scc1 La_nostore
    s_waitcnt lgkmcnt(2)
    global_store_dwordx4 v{vT + 6}, {vr(vF, 4)}, {sr(sREC, 2)} {st}
    La_nostore:
    """)
    stamp(a, o, 3)


def setup_consumer(a, o):
    a(f"""
    s_and_b32 s{sQ}, s2, 7
    s_lshl_b32 s{sQ}, s{sQ}, 5
    s_lshr_b32 s{sT}, s2, 3
    s_or_b32 s{sQ}, s{sQ}, s{sT}
    s_mov_b32 s{sPF}, s{sT}
    v_lshlrev_b32 v{vPFA}, 7, v0
    s_mov_b32 s{sX}, s4
    s_and_b32 s{sX + 1}, s5, 0xffff
    s_mov_b32 s{sX + 2}, {XBYTES}
    s_mov_b32 s{sX + 3}, 0x20000
    s_and_b32 s{sO + 1}, s{sO + 1}, 0xffff
    s_mov_b32 s{sO + 2}, {XBYTES}
    s_mov_b32 s{sO + 3}, 0x20000
    s_mov_b32 s{sRND}, 0
    s_mov_b32 s{sWMD}, 0
    s_mov_b32 s{sLN2}, {f32(-0.6931471805599453):#x}
    s_mov_b32 s{sLN2 + 1}, {f32(-0.6931471805599453):#x}
    """)


def gen_main(a, o):
    kn = NAME + "_kernel"
    fused, D = o.fused, o.D
    ld = "sc1" if fused else ""
    a(".p2align 8")
    a(f".globl {kn}")
    a(f".type {kn},@function")
    a(f"{kn}:")
    vG0 = vXB
    vG1 = vTP
    vBA = vU + 8
    vRK = vU + 16
    vMP = vU + 24
    vEN = vE
    vK = [vG0 + 4 * j for j in range(SLOTS)]
    entry(a, o, "m")
    phase_a(a, o)

    def g1_stores(tag, wait=True):
        a(f"""
        s_cmp_eq_u32 s{sBIG}, 0
        s_cbranch_scc1 Lm_s0{tag}
        s_waitcnt lgkmcnt(0)
        global_store_dwordx4 v{vKA}, {vr(vS1, 4)}, {sr(sREC, 2)} sc1
        s_cmp_eq_u32 s{sBIG}, 1
        s_cbranch_scc1 Lm_s1{tag}
        global_store_dwordx4 v{vEA}, {vr(vS1 + 4, 4)}, {sr(sREC, 2)} sc1
        {"s_waitcnt vmcnt(2)" if wait else ""}
        s_branch Lm_s2{tag}
        Lm_s0{tag}:
        {"s_waitcnt vmcnt(0)" if wait else ""}
        Lm_s1{tag}:
        {"s_waitcnt vmcnt(1)" if wait else ""}
        Lm_s2{tag}:
        s_mov_b32 s{sBIG}, 0
        """)
    if o.g1st == 0:
        g1_stores("b", wait=False)
    a(f"""
    s_lshl_b32 s{sT}, s{sQ}, 3
    v_lshrrev_b32 v{vT + 2}, 1, v0
    v_lshl_add_u32 v{vT + 3}, v{vT + 2}, 11, s{sT}
    """)
    if o.wmat == 0:
        wmix_finish(a)
    if o.wmat == 1:
        wmix_loads(a)
    if o.wmat == 3:
        for i in range(40):
            a(f"v_mov_b32 v{vACC + i}, 0")
    a(f"global_load_dwordx2 {vr(vEN, 2)}, v{vT + 3}, {sr(sWS, 2)} sc1")
    if o.wmat in (2, 3):
        wmix_loads(a)
    if o.wmat != 3:
        for i in range(40):
            a(f"v_mov_b32 v{vACC + i}, 0")
    a(f"""
    v_mul_u32_u24 v{vREC16}, {CHB}, v{vT + 2}
    v_and_b32 v{vT + 4}, 1, v0
    v_mov_b32 v{vT + 5}, {L_MAX}
    v_lshlrev_b32 v{vREC4}, 4, v0
    v_add_u32 v{vREC4}, {L_PAY}, v{vREC4}
    s_mov_b32 s{sSPIN}, {o.spin}
    """)
    if o.wmat in (2, 3):
        a("""
        s_waitcnt vmcnt(8)
        s_branch Lm_poll2
        """)
    if o.g1st == 1:
        g1_stores("c")
        a("s_branch Lm_poll2")
    a(f"""
    Lm_poll:
    s_waitcnt vmcnt(0)
    Lm_poll2:
    v_cmp_ne_u32 vcc, s{sTAG}, v{vEN + 1}
    s_cbranch_vccz Lm_ready
    s_sub_u32 s{sSPIN}, s{sSPIN}, 1
    s_cbranch_scc1 Lm_end
    s_mov_b64 exec, vcc
    global_load_dwordx2 {vr(vEN, 2)}, v{vT + 3}, {sr(sWS, 2)} sc1
    s_branch Lm_poll
    Lm_ready:
    s_mov_b64 exec, -1
    """)
    stamp(a, o, 4)
    a(f"""
    v_and_b32 v{vT}, 0xffff, v{vEN}
    v_lshrrev_b32 v{vREM}, 16, v{vEN}
    v_add_u32 v{vT}, v{vT}, v{vT + 4}
    v_lshl_add_u32 v{vREC16}, v{vT}, 4, v{vREC16}
    v_add_u32 v{vREC1}, {CH * 16}, v{vREC16}
    v_cmp_lt_u32 vcc, {2 * SLOTS}, v{vREM}
    s_and_saveexec_b64 {sr(sTMP, 2)}, vcc
    ds_max_u32 v{vT + 5}, v{vREM}
    s_mov_b64 exec, -1
    v_sub_u32 v{vREM}, v{vREM}, v{vT + 4}
    Lm_round:
    """)
    for j in range(SLOTS):
        a(f"v_cmp_lt_i32 {sr(sM + 2 * j, 2)}, {2 * j}, v{vREM}")

    def per_slot(label, body):
        for j in range(SLOTS):
            a(f"s_mov_b64 exec, {sr(sM + 2 * j, 2)}")
            a(f"s_cbranch_execz {label}")
            body(j)
        a(f"{label}:")
        a("s_mov_b64 exec, -1")

    def check(j, v, retry):
        a(f"v_cmp_ne_u32 vcc, s{sTAG}, v{v}")
        a(f"s_cbranch_vccnz {retry}")

    def ldg1(j):
        a(f"global_load_dwordx3 {vr(vG1 + 4 * j, 3)}, v{vREC1}, {sr(sREC, 2)} offset:{32 * j} sc1")

    a("Lm_g0:")
    per_slot("Lm_ld", lambda j: a(f"global_load_dwordx4 {vr(vG0 + 4 * j, 4)}, v{vREC16}, {sr(sREC, 2)} offset:{32 * j} sc1"))
    if o.wmat == 1:
        a(f"""
        s_cmp_lg_u32 s{sRND}, 0
        s_cbranch_scc1 Lm_nowm
        """)
        wmix_finish(a)
        a("Lm_nowm:")
    if o.g1at == -1:
        per_slot("Lm_ld1", ldg1)
    if o.g1st == 2:
        g1_stores("a")
    elif o.wmat == 4:
        a(f"""
        s_cmp_lg_u32 s{sWMD}, 0
        s_cbranch_scc1 Lm_wm4
        s_mov_b32 s{sWMD}, 1
        """)
        wmix_loads(a)
        a("""
        s_waitcnt vmcnt(8)
        s_branch Lm_wm4b
        Lm_wm4:
        s_waitcnt vmcnt(0)
        Lm_wm4b:
        """)
    else:
        a("s_waitcnt vmcnt(0)")
    per_slot("Lm_ck0", lambda j: check(j, vG0 + 4 * j + 1, "Lm_re0"))
    stamp(a, o, 5)

    def hist1(j):
        a(f"v_and_b32 v{vBA + j}, 63, v{vK[j]}")
        a(f"v_lshlrev_b32 v{vBA + j}, 2, v{vBA + j}")
        a(f"ds_add_u32 v{vBA + j}, v{vONE} offset:{L_DEG}")
        if o.g1at == 0:
            ldg1(j)
        a(f"ds_write_b64 v{vREC4}, {vr(vG0 + 4 * j + 2, 2)} offset:{8192 * j}")
    per_slot("Lm_h1", hist1)
    a(f"""
    s_cmp_lg_u32 s{sRND}, 0
    s_cbranch_scc1 Lm_bins
    """)
    if o.wmat in (2, 3):
        wmix_finish(a)
    if o.wmat == 5:
        wmix_loads(a)
    a(f"""
    v_lshlrev_b32 v{vT + 1}, 2, v{vLANE}
    s_mul_i32 s{sT}, s{sW}, 5
    s_waitcnt lgkmcnt(0)
    s_barrier
    """)
    stamp(a, o, 6)
    a(f"""
    ds_read_b32 v{vT}, v{vT + 1} offset:{L_DEG}
    ds_read_b32 v{vT + 5}, v{vT + 5}
    """)
    prefetch(a, o.pf2)
    if o.sp:
        touch_setup(a, o)
        touch(a, 0, 0, o.sphi)
    a(f"""
    v_sub_u32 v{vT + 2}, 63, v{vLANE}
    s_add_u32 s{sTMP}, s{sT}, 1
    s_add_u32 s{sTMP + 1}, s{sT}, 2
    s_add_u32 s{sTMP + 2}, s{sT}, 3
    s_add_u32 s{sTMP + 3}, s{sT}, 4
    s_waitcnt lgkmcnt(0)
    v_lshl_or_b32 v{vT}, v{vT}, 6, v{vT + 2}
    v_readfirstlane_b32 s{sMAX}, v{vT + 5}
    v_readlane_b32 s{sRING}, v{vT}, s{sT}
    v_readlane_b32 s{sRING + 1}, v{vT}, s{sTMP}
    v_readlane_b32 s{sRING + 2}, v{vT}, s{sTMP + 1}
    v_readlane_b32 s{sRING + 3}, v{vT}, s{sTMP + 2}
    v_readlane_b32 s{sRING + 4}, v{vT}, s{sTMP + 3}
    """)
    for k in range(5):
        a(f"v_cmp_lt_u32 {sr(sTMP + 2 * k, 2)}, s{sRING + k}, v{vT}")
    for k in range(5):
        a(f"s_bcnt1_i32_b64 s{sRING + 8 + k}, {sr(sTMP + 2 * k, 2)}")
    for k in range(5):
        a(f"v_writelane_b32 v{vT + 2}, s{sRING + 8 + k}, {k}")
    a(f"""
    s_mov_b64 exec, 31
    v_lshrrev_b32 v{vT}, 3, v{vT + 2}
    v_and_b32 v{vT + 3}, 7, v{vT + 2}
    v_cmp_lt_u32 vcc, 15, v{vT + 2}
    v_xor_b32 v{vT + 4}, 7, v{vT + 3}
    v_add_u32 v{vT + 5}, s{sT}, v{vLANE}
    v_cndmask_b32 v{vT + 3}, v{vT + 3}, v{vT + 4}, vcc
    v_lshlrev_b32 v{vT + 2}, 5, v{vT + 3}
    v_lshl_or_b32 v{vT + 2}, v{vT}, 19, v{vT + 2}
    v_mad_u32_u24 v{vT + 3}, v{vT + 3}, 5, v{vT}
    v_lshlrev_b32 v{vT + 4}, 2, v{vT + 5}
    v_lshlrev_b32 v{vT + 3}, 2, v{vT + 3}
    ds_write_b32 v{vT + 4}, v{vT + 2} offset:{L_MAP}
    ds_write_b32 v{vT + 3}, v{vT + 5} offset:{L_INV}
    s_mov_b64 exec, -1
    """)
    a(f"""
    v_and_b32 v{vT}, 3, v0
    v_lshlrev_b32 v{vT}, 5, v{vT}
    ds_read_b128 {vr(vWR, 4)}, v{vL16} offset:{L_WR}
    ds_read_b128 {vr(vWR + 4, 4)}, v{vL16} offset:{L_WR + 1024}
    ds_read_b128 {vr(vCG, 4)}, v{vT} offset:{L_CG}
    ds_read_b128 {vr(vCG + 4, 4)}, v{vT} offset:{L_CG + 16}
    s_waitcnt lgkmcnt(4)
    s_barrier
    """)
    prefetch(a, o.pf3)
    if o.sp > 1:
        touch(a, 1, 0, o.sphi2)
    a("Lm_bins:")
    stamp(a, o, 7)

    def rdmap(j):
        a(f"ds_read_b32 v{vMP + j}, v{vBA + j} offset:{L_MAP}")
        a(f"v_bfe_u32 v{vBA + j}, v{vK[j]}, 6, 3")
        a(f"v_and_b32 v{vK[j]}, 0xfffffc00, v{vK[j]}")
    per_slot("Lm_mp", rdmap)
    a("s_waitcnt lgkmcnt(0)")

    def hist2(j):
        a(f"v_and_b32 v{vRK + j}, 0xffff, v{vMP + j}")
        a(f"v_lshl_add_u32 v{vBA + j}, v{vBA + j}, 2, v{vRK + j}")
        a(f"ds_add_rtn_u32 v{vRK + j}, v{vBA + j}, v{vONE} offset:{L_BIN}")
        a(f"v_lshrrev_b32 v{vMP + j}, 16, v{vMP + j}")
        a(f"v_or_b32 v{vK[j]}, v{vK[j]}, v{vMP + j}")
        if o.g1at == 1:
            ldg1(j)
    per_slot("Lm_h2", hist2)
    npf = (1 if o.pf2 else 0) + (1 if o.pf3 else 0) + o.sp

    def g1_finish(young):
        a(f"s_waitcnt vmcnt({young + npf})")
        if npf:
            a(f"""
            s_cmp_eq_u32 s{sRND}, 0
            s_cbranch_scc1 Lm_g1
            s_waitcnt vmcnt({young})
            """)
        a("Lm_g1:")

        def ckwp(j):
            check(j, vG1 + 4 * j + 2, "Lm_re1")
            a(f"ds_write_b64 v{vREC4}, {vr(vG1 + 4 * j, 2)} offset:{8192 * j + 8}")
        per_slot("Lm_ck1", ckwp)
    if o.nob5:
        g1_finish(0)
        if o.wmat in (4, 5):
            a(f"""
            s_cmp_lg_u32 s{sRND}, 0
            s_cbranch_scc1 Lm_nowm2
            """)
            wmix_finish(a)
            a("Lm_nowm2:")
    a(f"""
    v_lshlrev_b32 v{vT + 1}, 2, v{vLANE}
    s_lshl_b32 s{sT}, s{sW}, 3
    s_add_u32 s{sTMP}, s{sT}, 7
    v_lshrrev_b32 v{vT + 3}, 3, v{vLANE}
    s_waitcnt lgkmcnt(0)
    s_barrier
    """)
    stamp(a, o, 8)
    a(f"""
    ds_read_b32 v{vT}, v{vT + 1} offset:{L_BIN}
    s_waitcnt lgkmcnt(0)
    v_mov_b32 v{vT + 2}, v{vT}
    """)
    wave_scan(a, vT + 2)
    a(f"""
    v_lshl_add_u32 v{vT + 2}, v{vT + 3}, 4, v{vT + 2}
    v_sub_u32 v{vT}, v{vT + 2}, v{vT}
    """)
    for j in range(SLOTS):
        if j:
            a(f"s_cmp_eq_u64 {sr(sM + 2 * j, 2)}, 0")
            a("s_cbranch_scc1 Lm_bp")
        a(f"ds_bpermute_b32 v{vMP + j}, v{vBA + j}, v{vT}")
    a(f"""
    Lm_bp:
    v_readlane_b32 s{sSTART}, v{vT}, s{sT}
    v_readlane_b32 s{sN}, v{vT + 2}, s{sTMP}
    v_readlane_b32 s{sBIG}, v{vT + 2}, 63
    v_mov_b32 v{vT + 4}, {XBYTES}
    v_mov_b32 v{vT + 5}, {L_ZERO}
    s_mov_b32 s{sTMP + 2}, {L_ENT}
    v_add_u32 v{vT + 2}, s{sN}, v{vLANE}
    v_lshl_add_u32 v{vT + 2}, v{vT + 2}, 3, s{sTMP + 2}
    s_cmp_eq_u32 s{sW}, 7
    s_cselect_b64 exec, -1, 0xffff
    ds_write_b64 v{vT + 2}, {vr(vT + 4, 2)}
    s_mov_b64 exec, -1
    s_sub_u32 s{sN}, s{sN}, s{sSTART}
    s_lshl_b32 s{sSTART}, s{sSTART}, 3
    s_add_u32 s{sSTART}, s{sSTART}, {L_ENT}
    v_lshl_add_u32 v{vKA}, v{vLANE}, 3, s{sSTART}
    v_lshrrev_b32 v{vYA}, 2, v{vLANE}
    v_lshl_add_u32 v{vYA}, v{vYA}, 3, s{sSTART}
    v_bfe_u32 v{vT}, v{vLANE}, 3, 2
    v_and_b32 v{vT + 1}, 3, v{vLANE}
    v_lshl_add_u32 v{vT}, v{vT}, 2, v{vT + 1}
    v_lshl_add_u32 v{vEA}, v{vT}, 3, s{sSTART}
    s_waitcnt lgkmcnt(1)
    """)

    def wr(j):
        a(f"v_add_u32 v{vRK + j}, v{vRK + j}, v{vMP + j}")
        a(f"v_lshl_add_u32 v{vRK + j}, v{vRK + j}, 3, s{sTMP + 2}")
        a(f"v_add_u32 v{vMP + j}, {8192 * j}, v{vREC4}")
        a(f"ds_write2_b32 v{vRK + j}, v{vK[j]}, v{vMP + j} offset0:0 offset1:1")
        if o.g1at == 2:
            ldg1(j)
    per_slot("Lm_wr", wr)
    a(f"""
    s_mov_b32 s{sTMP}, 0x0f0f0f0f
    s_mov_b32 s{sTMP + 1}, 0xf0f0f0f0
    v_mov_b32 v{vT}, {L_NULL}
    v_mov_b32 v{vT + 1}, {L_NULL - 32}
    v_mov_b32 v{vT + 2}, 128
    v_cndmask_b32 v{vT}, v{vT}, v{vEA}, {sr(sTMP, 2)}
    v_cndmask_b32 v{vEA}, v{vT + 1}, v{vEA}, {sr(sTMP, 2)}
    v_cndmask_b32 v{vEINC}, 0, v{vT + 2}, {sr(sTMP, 2)}
    s_waitcnt lgkmcnt(0)
    s_barrier
    """)
    stamp(a, o, 9)
    vK0, vPE0, vEF0 = vT + 1, vT + 2, vTP
    a(f"""
    ds_read_b32 v{vK0}, v{vKA}
    ds_read_b32 v{vPE0}, v{vT} offset:4
    ds_read_b32 v{vPE}, v{vEA} offset:{4 + 32}
    ds_read_b32 v{vPY}, v{vYA} offset:4
    ds_read_b32 v{vKEY}, v{vKA} offset:{8 * D}
    v_lshlrev_b32 v{vT + 3}, 2, v{vLANE}
    v_mov_b32 v{vT + 4}, 0
    ds_write_b32 v{vT + 3}, v{vT + 4} offset:{L_BIN}
    s_add_u32 s{sN}, s{sN}, 3
    s_lshr_b32 s{sN}, s{sN}, 2
    s_waitcnt lgkmcnt(5)
    """)
    for i in range(D + 2):
        a(f"v_readlane_b32 s{sRING + i}, v{vK0}, {i}")
    D0 = min(D, o.D0)

    def rowld(i):
        a(f"s_and_b32 s{sOFF}, s{sRING + i}, 0xfffffc00")
        a(f"buffer_load_dwordx4 {vr(vXB + 4 * i, 4)}, v{vL16}, {sr(sX, 4)}, s{sOFF} offen")
    for i in range(D0):
        rowld(i)
    if not o.nob5:
        g1_finish(D0)
        a("""
        s_waitcnt lgkmcnt(0)
        s_barrier
        """)
    a(f"""
    s_waitcnt lgkmcnt(0)
    s_cmp_eq_u32 s{sN}, 0
    s_cbranch_scc1 Lm_done
    s_sub_u32 s{sN}, s{sN}, 1
    ds_read2_b64 {vr(vEF0, 4)}, v{vPE0} offset0:1 offset1:1
    ds_read_b64 {vr(vYN, 2)}, v{vPY}
    ds_read2_b64 {vr(vEF, 4)}, v{vPE} offset0:1 offset1:1
    """)
    for i in range(D0, D):
        rowld(i)
    a(f"s_and_b32 s{sOFF}, s{sRING + D}, 0xfffffc00")
    a(f"s_and_b32 s{sOFF + 1}, s{sRING + D + 1}, 0xfffffc00")

    def mz(h, ef):
        a(f"v_mfma_f32_32x32x16_bf16 {vr(vU + 16 * h, 16)}, {vr(ef, 4)}, {vr(vWR + 4 * h, 4)}, 0")

    def dot(n):
        i, p = n & 3, n >> 2
        c = f"v{vAT + i}" if p else "0"
        a(f"v_dot2_f32_bf16 v{vAT + i}, v{vYN + p}, v{vCG + 2 * i + p}, {c}")

    a("s_waitcnt lgkmcnt(0)")
    mz(0, vEF0)
    mz(1, vEF0)
    for n in range(8):
        dot(n)
    a(f"v_add_u32 v{vEA}, v{vEINC}, v{vEA}")
    a(f"v_add_u32 v{vYA}, 128, v{vYA}")
    a(f"v_add_u32 v{vKA}, 128, v{vKA}")
    a(f"v_cvt_pk_bf16_f32 v{vA}, v{vAT}, v{vAT + 1}")
    a(f"v_cvt_pk_bf16_f32 v{vA + 1}, v{vAT + 2}, v{vAT + 3}")
    tmp = vTP + 8
    for r in range(8):
        a(f"v_exp_f32 v{tmp + r}, v{vU + 16 * (r >> 2) + (r & 3)}")
    a("s_nop 0")
    for r in range(0, 8, 2):
        a(f"v_pk_add_f32 {vr(tmp + r, 2)}, {vr(tmp + r, 2)}, 1.0 op_sel_hi:[1,0]")
    for r in range(8):
        a(f"v_rcp_f32 v{tmp + r}, v{tmp + r}")
    a("s_nop 0")
    for r in range(0, 8, 2):
        a(f"v_pk_mul_f32 {vr(vR + r, 2)}, {vr(vU + 16 * (r >> 2) + (r & 3), 2)}, {vr(tmp + r, 2)}")
    mz(0, vEF)
    a("s_nop 7")
    stamp(a, o, 10)
    if o.prio:
        a("s_setprio 3")
    if o.sp:
        a(f"s_mov_b32 s{sIT}, 0")
    a(".p2align 6")
    a("Lm_loop:")
    for P in range(8):
        g, hf = P >> 1, P & 1
        i0 = 2 * P
        sn = vU + 16 * hf + 4 * g
        dn = vR + 8 * ((g + 1) & 1) + 4 * hf
        cur = vR + 8 * (g & 1) + 2 * hf
        a(f"s_waitcnt vmcnt({D - 2})")
        for k in range(2):
            a(f"buffer_load_dwordx4 {vr(vXB + 4 * ((i0 + k + D) & 7), 4)}, v{vL16}, {sr(sX, 4)}, s{sOFF + k} offen")
        for k in range(2):
            xb = vXB + 4 * ((i0 + k) & 7)
            for h in range(2):
                a(f"v_mfma_f32_4x4x4_16b_bf16 {vr(vTP + 8 * k + 4 * h, 4)}, {vr(vA, 2)}, {vr(xb + 2 * h, 2)}, 0 cbsz:4 abid:{i0 + k}")
                a(f"v_exp_f32 v{vE + 2 * k + h}, v{sn + 2 * k + h}")
        if P == 0:
            a("s_waitcnt lgkmcnt(0)")
        for k in range(2):
            a(f"v_readlane_b32 s{sRING + ((i0 + k + D + 2) & 15)}, v{vKEY}, {i0 + k + 2}")
        for k in range(2):
            a(f"v_pk_add_f32 {vr(vE + 2 * k, 2)}, {vr(vE + 2 * k, 2)}, 1.0 op_sel_hi:[1,0]")
        if P == 0:
            mz(1, vEF)
        if P == 7:
            mz(0, vEF)
        for r in range(4):
            a(f"v_rcp_f32 v{vE + r}, v{vE + r}")
        if P == 0:
            a(f"ds_read_b32 v{vPY}, v{vYA} offset:4")
            a(f"ds_read_b32 v{vPE}, v{vEA} offset:{4 + 32}")
        if P == 1:
            a("s_waitcnt lgkmcnt(0)")
            a(f"ds_read_b64 {vr(vYN, 2)}, v{vPY}")
            a(f"ds_read2_b64 {vr(vEF, 4)}, v{vPE} offset0:1 offset1:1")
        if P == 7:
            a(f"ds_read_b32 v{vKEY}, v{vKA} offset:{8 * D}")
        for k in range(2):
            a(f"s_and_b32 s{sOFF + k}, s{sRING + ((i0 + k + D + 2) & 15)}, 0xfffffc00")
        for k in range(2):
            a(f"s_set_gpr_idx_on s{sRING + i0}, 0xc" if k == 0 else f"s_set_gpr_idx_idx s{sRING + i0 + 1}")
            for q in range(4):
                a(f"v_pk_fma_f32 {vr(vACC + 2 * q, 2)}, {vr(cur + 4 * (q >> 1), 2)}, {vr(vTP + 8 * k + 2 * q, 2)}, "
                  f"{vr(vACC + 2 * q, 2)} op_sel:[{k},0,0] op_sel_hi:[{k},1,1]")
        a("s_set_gpr_idx_off")
        for k in range(2):
            a(f"v_pk_mul_f32 {vr(dn + 2 * k, 2)}, {vr(sn + 2 * k, 2)}, {vr(vE + 2 * k, 2)}")
        if P == 1:
            a(f"v_add_u32 v{vEA}, v{vEINC}, v{vEA}")
            a(f"v_add_u32 v{vYA}, 128, v{vYA}")
        if P == o.rfP and o.sp and o.rf:
            a(f"""
            s_add_u32 s{sIT}, s{sIT}, 2048
            s_cmp_ge_u32 s{sROW}, s{sIT}
            s_cselect_b32 s{sTMP + 4}, 0, {XBYTES}
            s_bitcmp1_b32 s{sIT}, 11
            s_cbranch_scc{0 if o.rf == 1 else 1} Lm_norf
            """ if o.rf < 3 else f"""
            s_add_u32 s{sIT}, s{sIT}, 2048
            s_cmp_ge_u32 s{sROW}, s{sIT}
            s_cselect_b32 s{sTMP + 4}, 0, {XBYTES}
            """)
            a(f"""
            s_cmp_lt_u32 s{sROW}, {o.sphi}
            s_cselect_b32 s{sTMP + 5}, s{sTMP + 4}, {XBYTES}
            buffer_load_dword v{vPF}, v{vTA}, {sr(sX, 4)}, s{sTMP + 5} offen
            """)
            if o.sp > 1:
                a(f"""
                s_cmp_lt_u32 s{sROW}, {o.sphi2}
                s_cselect_b32 s{sTMP + 5}, s{sTMP + 4}, {XBYTES}
                buffer_load_dword v{vPF}, v{vTA + 1}, {sr(sX, 4)}, s{sTMP + 5} offen
                """)
            a("Lm_norf:")
        if P == 2:
            a("s_waitcnt lgkmcnt(0)")
        if 2 <= P < 6:
            dot(2 * (P - 2))
            dot(2 * (P - 2) + 1)
        if P == 7:
            a(f"""
            v_cvt_pk_bf16_f32 v{vA}, v{vAT}, v{vAT + 1}
            v_cvt_pk_bf16_f32 v{vA + 1}, v{vAT + 2}, v{vAT + 3}
            v_add_u32 v{vKA}, 128, v{vKA}
            """)
        if hf and o.prio and (o.prio == 1 or P in (3, 7)):
            for lv, th in enumerate((o.pt, 2 * o.pt, 3 * o.pt)):
                a(f"""
                s_cmp_{"eq" if o.prio == 1 else "le"}_u32 s{sN}, {th}
                s_cbranch_scc0 Lm_pr{P}_{lv}
                s_setprio {lv}
                {f"s_branch Lm_pr{P}_2" if o.prio != 1 and lv < 2 else ""}
                Lm_pr{P}_{lv}:
                """)
        if hf:
            a(f"s_sub_u32 s{sN}, s{sN}, 1")
            a("s_cbranch_scc1 Lm_done" if P < 7 else "s_cbranch_scc0 Lm_loop")
    if o.drop:
        i0 = max(i for i, l in enumerate(a.lines) if l == "Lm_loop:")
        a.lines[i0:] = [l for l in a.lines[i0:] if not any(l.strip().startswith(d) for d in o.drop.split())]
    a("Lm_done:")
    stamp(a, o, 11)
    vWM = vU
    a(f"""
    s_add_u32 s{sRND}, s{sRND}, {2 * SLOTS}
    s_cmp_ge_u32 s{sRND}, s{sMAX}
    s_cbranch_scc1 Lm_epi
    s_waitcnt vmcnt(0) lgkmcnt(0)
    s_barrier
    s_mov_b32 s{sBIG}, 0
    v_subrev_u32 v{vREM}, {2 * SLOTS}, v{vREM}
    v_add_u32 v{vREC1}, {32 * SLOTS}, v{vREC1}
    v_add_u32 v{vREC16}, {32 * SLOTS}, v{vREC16}
    s_branch Lm_round
    Lm_epi:
    s_cmp_le_u32 s{sBIG}, {ENT_OWN - 64}
    s_cbranch_scc1 Lm_small
    s_waitcnt lgkmcnt(0)
    s_barrier
    Lm_small:
    s_mul_i32 s{sT}, s{sW}, {20 * ROWB}
    s_add_u32 s{sT}, s{sT}, {L_AGG}
    v_lshl_add_u32 v{vT}, v{vLANE}, 2, s{sT}
    s_lshr_b32 s{sTMP}, s{sW}, 2
    s_mul_i32 s{sTMP + 1}, s{sTMP}, 80
    v_lshrrev_b32 v{vT + 1}, 4, v{vLANE}
    v_lshl_add_u32 v{vT + 2}, v{vT + 1}, 2, s{sTMP + 1}
    s_and_b32 s{sTMP + 2}, s{sW}, 3
    s_lshl_b32 s{sTMP + 3}, s{sTMP + 2}, 13
    v_add_u32 v{vT + 4}, s{sTMP + 3}, v{vL16}
    """)
    vINV = vAT
    for s in range(5):
        acc = vACC + 8 * s
        for r in range(0, 8, 2):
            a(f"v_pk_mul_f32 {vr(acc + r, 2)}, {vr(acc + r, 2)}, {sr(sLN2, 2)}")
        for r in range(4):
            a(f"v_cvt_pk_bf16_f32 v{acc + r}, v{acc + r}, v{acc + 4 + r}")
        a(f"ds_write2_b32 v{vT}, v{acc}, v{acc + 1} offset0:0 offset1:{ROWB // 4}")
        a(f"ds_write2_b32 v{vT}, v{acc + 2}, v{acc + 3} offset0:{2 * ROWB // 4} offset1:{3 * ROWB // 4}")
        if s < 4:
            a(f"v_add_u32 v{vT}, {4 * ROWB}, v{vT}")
    a("s_waitcnt lgkmcnt(0)")
    for mt in range(5):
        a(f"ds_read_b32 v{vINV + mt}, v{vT + 2} offset:{L_INV + 16 * mt}")
    for i in range(8):
        a(f"ds_read_b128 {vr(vWM + 4 * i, 4)}, v{vT + 4} offset:{L_WM + 1024 * i}")
    a(f"""
    v_and_b32 v{vT + 3}, 15, v{vLANE}
    v_mul_u32_u24 v{vT}, {ROWB}, v{vT + 3}
    v_lshl_add_u32 v{vT}, v{vT + 1}, 4, v{vT}
    s_mul_i32 s{sTMP + 1}, s{sTMP}, {80 * ROWB}
    s_add_u32 s{sTMP + 1}, s{sTMP + 1}, {L_AGG}
    v_add_u32 v{vT}, s{sTMP + 1}, v{vT}
    s_lshl_b32 s{sT}, s{sTMP + 2}, 8
    s_lshl_b32 s{sTMP + 1}, s{sQ}, 10
    s_add_u32 s{sT}, s{sT}, s{sTMP + 1}
    v_lshl_add_u32 v{vT + 3}, v{vT + 3}, 4, s{sT}
    s_waitcnt vmcnt(0)
    s_barrier
    """)
    a("s_waitcnt lgkmcnt(0)")
    stamp(a, o, 12)

    def frag(mt, s):
        return vWR + 16 * mt + 4 * s

    def rd(mt):
        for s in range(4):
            a(f"ds_read_b128 {vr(frag(mt, s), 4)}, v{vT} offset:{16 * ROWB * mt + 64 * s}")
    for mt in range(3):
        rd(mt)
    for mt in range(5):
        a(f"v_lshl_add_u32 v{vINV + mt}, v{vINV + mt}, 18, v{vT + 3}")
    vD = vACC

    def fin(mt):
        d = vD + 8 * mt
        for r in range(4):
            a(f"v_cvt_pk_bf16_f32 v{d + r}, v{d + 2 * r}, v{d + 2 * r + 1}")
        a(f"buffer_store_dwordx4 {vr(d, 4)}, v{vINV + mt}, {sr(sO, 4)}, 0 offen {o.st_out}")
    for mt in range(5):
        d = vD + 8 * mt
        pend = min(mt + 3, 5) - mt - 1
        for s in range(4):
            a(f"s_waitcnt lgkmcnt({4 * pend + 3 - s})")
            for t in range(2):
                c = vr(d + 4 * t, 4) if s else "0"
                a(f"v_mfma_f32_16x16x32_bf16 {vr(d + 4 * t, 4)}, {vr(frag(mt, s), 4)}, {vr(vWM + 8 * s + 4 * t, 4)}, {c}")
        if mt + 3 < 5:
            rd(mt + 3)
        if mt:
            fin(mt - 1)
    a("s_nop 7")
    fin(4)
    if fused:
        a(f"""
        s_or_b32 s{sT}, s2, s{sW}
        s_cmp_lg_u32 s{sT}, 0
        s_cbranch_scc1 Lm_noep
        v_mov_b32 v{vT}, {WS_EPOCH}
        v_mov_b32 v{vT + 1}, s{sTAG}
        s_mov_b64 exec, 1
        global_store_dword v{vT}, v{vT + 1}, {sr(sWS, 2)} sc1
        Lm_noep:
        """)
    if o.stamps:
        a("s_waitcnt vmcnt(0)")
    stamp(a, o, 13)
    stamp_flush(a, o, 14, 1)
    a(f"""
    Lm_end:
    s_endpgm
    Lm_re0:
    s_sub_u32 s{sSPIN}, s{sSPIN}, 1
    s_cbranch_scc0 Lm_g0
    s_endpgm
    Lm_re1:
    s_sub_u32 s{sSPIN}, s{sSPIN}, 1
    s_cbranch_scc1 Lm_end
    """)
    per_slot("Lm_rl1", lambda j: a(f"global_load_dwordx3 {vr(vG1 + 4 * j, 3)}, v{vREC1}, {sr(sREC, 2)} offset:{32 * j} sc1"))
    a("""
    s_waitcnt vmcnt(0)
    Lm_last:
    s_branch Lm_g1
    """)


def generate(o):
    a = Asm()
    ref = open(f"cdna_kernels/{NAME}.s.ref").read().split("\n")
    for ln in ref:
        if ln.startswith("; Override"):
            break
        a.lines.append(ln)
    kerns = []
    if not o.fused:
        a.lines.append(f"; @launch kernel=tfn_sort_kernel grid=(256,1,1) block=(512,1,1) lds={L_STAGE + CHB}")
        kerns.append(("tfn_sort_kernel", NV))
    if o.fused and o.stamps != 1:
        a.lines.append(f"; @launch grid=(256,1,1) block=(512,1,1) lds={L_END}")
    else:
        a.lines.append(f"; @launch kernel={NAME}_kernel grid=(256,1,1) block=(512,1,1) lds={L_END}")
    kerns.append((NAME + "_kernel", NV))
    if o.stamps == 1:
        a.lines.append("; @launch kernel=diag_end_kernel grid=(1,1,1) block=(64,1,1) lds=0")
    a('.amdgcn_target "amdgcn-amd-amdhsa--gfx950"')
    a(".text")
    gen_main(a, o)
    if o.stamps == 1:
        kerns.append(("diag_end_kernel", 8))
        a(f"""
        .p2align 8
        .globl diag_end_kernel
        .type diag_end_kernel,@function
        diag_end_kernel:
        s_memrealtime s[8:9]
        s_load_dwordx2 s[4:5], s[0:1], 80
        v_mov_b32 v1, {WS_STAMP + 2 * 0x80000}
        s_waitcnt lgkmcnt(0)
        v_mov_b32 v2, s8
        global_store_dword v1, v2, s[4:5]
        s_endpgm
        """)
    a('.section .rodata,"a"')
    for kn, v in kerns:
        a(f"""
        .p2align 6
        .amdhsa_kernel {kn}
        .amdhsa_next_free_vgpr {v}
        .amdhsa_next_free_sgpr 102
        .amdhsa_accum_offset {v}
        .amdhsa_group_segment_fixed_size 0
        .amdhsa_kernarg_size 88
        .amdhsa_user_sgpr_count 2
        .amdhsa_user_sgpr_kernarg_segment_ptr 1
        .amdhsa_system_sgpr_workgroup_id_x 1
        .amdhsa_float_denorm_mode_32 3
        .end_amdhsa_kernel
        """)
    return a.text()


if __name__ == "__main__":
    o = Opt()
    out = sys.argv[1]
    for kv in sys.argv[2:]:
        k, v = kv.split("=")
        assert hasattr(o, k), k
        setattr(o, k, int(v) if v.lstrip("-").isdigit() else v.replace("+", " "))
    open(out, "w").write(generate(o))
```

```python
import json
import os
import struct
import sys

NAME = "gather_scatter__tensor_product_equiv_tfn__graph"
HERE = os.path.dirname(os.path.abspath(__file__))
N, E = 10000, 160000
NPROD, CH = 250, 640
XBYTES = N * 1024

WS_TAB = 0
WS_REC = 0x80000
CHB = CH * 32 + 128
WS_EPOCH = WS_REC + CH * 32 + CHB
WS_STAMP = 0x800000

SLOTS = 8
HOT = 4

L_DEG, L_BIN, L_MAX, L_ZERO, L_NULL, L_MAP, L_INV = 0, 256, 512, 528, 544, 768, 1024
L_HIST, L_START = 1280, 2304
L_CG, L_WR = 3328, 3584
L_WM = 5632
L_PAY = L_WM + 32768
L_ENT = L_PAY + SLOTS * 512 * 16
ENT_OWN = 1024
L_AGG = L_ENT + ENT_OWN * 8
ROWB = 288
L_END = L_AGG + 160 * ROWB
L_STAGE = L_AGG
assert (256 * 2 * SLOTS + 8 * 16 + 64) * 8 <= L_END - L_ENT
assert L_END <= 163840


def f32(x):
    return struct.unpack("<I", struct.pack("<f", x))[0]


class Opt:
    stamps = 0
    dbgidx = 13
    cyc = 0
    D = 6
    D0 = 6
    pfa = 1
    pf2 = 4
    rot = 8
    bias = 0
    yprio = 1
    tlb = 7
    spin = 1 << 16
    drop = ""
    wmside = 1
    inl = 0
    scale = 0
    g1pos = 2
    allfirst = 0
    ldpol = ''
    wmit = 1
    wmearly = 0
    sidefirst = 0
    g1late = 0
    g1ld = 0
    pub = 0
    ackpoll = 0
    nobr = 3


class Asm:
    def __init__(self):
        self.lines = []
        self.cold = []

    def __call__(self, s=""):
        for ln in s.split("\n"):
            ln = ln.strip()
            if not ln:
                continue
            self.lines.append(ln if ln.endswith(":") or ln.startswith(".") or ln.startswith(";") else "    " + ln)

    def text(self):
        return "\n".join(self.lines) + "\n"


def vr(a, n=1):
    return "v%d" % a if n == 1 else "v[%d:%d]" % (a, a + n - 1)


def sr(a, n=1):
    return "s%d" % a if n == 1 else "s[%d:%d]" % (a, a + n - 1)


def wave_scan(a, v, fill=()):
    fill = list(fill)
    steps = [f"{c} row_mask:0xf bank_mask:0xf bound_ctrl:1" for c in ("row_shr:1", "row_shr:2", "row_shr:4", "row_shr:8")]
    steps += ["row_bcast:15 row_mask:0xa bank_mask:0xf", "row_bcast:31 row_mask:0xc bank_mask:0xf"]
    for c in steps:
        if len(fill) >= 2:
            a(fill.pop(0))
            a(fill.pop(0))
        else:
            a("s_nop 1")
        a(f"v_add_u32_dpp v{v}, v{v}, v{v} {c}")
    for f in fill:
        a(f)


sSPIN = 3
sX, sO = 20, 24
sWS, sREC = 28, 30
sQ, sW, sRND, sMAX, sSTART, sN, sOFF, sT = 32, 33, 34, 35, 36, 37, 38, 40
sTAG, sBIG, sPF = 41, 42, 43
sRING = 44
sM = 60
sTMP = 76
sLN2 = 86
sROT = 87
sST = 88
sWST = 7
sRO2, sBAD = 6, 8

vL16, vLANE, vREC4, vREC16, vREM, vONE = 1, 2, 3, 4, 5, 6
vKA, vEA, vYA, vEINC = 7, 8, 9, 10
vKEY, vPE, vPY, vPFA = 11, 12, 13, 14
vPF = 15
vEF, vYN, vA = 16, 20, 22
vAT = 24
vE = 28
vT = 32
vWR = 40
vCG = 48
vTP = 56
vR = 72
vXB = 88
vU = 120
vACC = 152
vREC1, vTAB, vTA, vEL = 192, 193, 194, 195
vS1 = 196
vINV = 196
vYL, vAGW, vAGR = 204, 205, 206
vWM = 208
NV = 240


def stamp(a, o, idx):
    if o.stamps and (o.stamps < 3 or idx == 0 or (o.stamps == 4 and idx == o.dbgidx)):
        a(f"""
        {"s_memtime" if o.cyc else "s_memrealtime"} {sr(sTMP + 8, 2)}
        s_waitcnt lgkmcnt(0)
        s_mov_b32 s{sST + idx}, s{sTMP + 8}
        """)


def stamp_flush(a, o, n):
    if not o.stamps:
        return
    if o.stamps == 5:
        a(f"""
        s_cmp_lg_u32 s{sW}, 0
        s_cbranch_scc1 Lm_end
        s_mov_b64 exec, 1
        s_lshl_b32 s3, s2, 10
        s_add_u32 s3, s3, {WS_STAMP + 0x80000}
        v_mov_b32 v{vT}, s3
        v_mov_b32 v{vT + 1}, s{sST}
        global_store_dword v{vT}, v{vT + 1}, {sr(sWS, 2)} sc1
        """)
        return
    if o.stamps == 4:
        a(f"""
        s_sub_u32 s4, s{sST + o.dbgidx}, s{sST}
        s_min_u32 s4, s4, 4000
        s_mul_i32 s4, s4, 40
        s_mov_b32 s5, 0
        Ldbg_spin:
        s_sleep 8
        s_memrealtime s[6:7]
        s_waitcnt lgkmcnt(0)
        s_sub_u32 s6, s6, s{sST}
        s_add_u32 s5, s5, 1
        s_cmp_ge_u32 s5, 20000
        s_cbranch_scc1 Lm_end
        s_cmp_lt_u32 s6, s4
        s_cbranch_scc1 Ldbg_spin
        """)
        return
    a(f"""
    s_mov_b64 exec, -1
    s_lshl_b32 s3, s2, 4
    s_add_u32 s3, s3, s{sW}
    s_lshl_b32 s3, s3, 6
    s_add_u32 s3, s3, {WS_STAMP + 0x80000}
    v_mov_b32 v{vT}, s3
    """)
    for i in range(n):
        a(f"v_mov_b32 v{vT + 1}, s{sST + i}")
        a(f"global_store_dword v{vT}, v{vT + 1}, {sr(sWS, 2)} offset:{4 * i}")
        a("s_nop 1")
    a(f"""
    s_lshl_b32 s11, s11, 8
    s_lshl_b32 s12, s12, 16
    s_or_b32 s10, s10, s11
    s_or_b32 s10, s10, s12
    v_mov_b32 v{vT + 1}, s10
    global_store_dword v{vT}, v{vT + 1}, {sr(sWS, 2)} offset:56
    """)


def prefetch(a, k, done, hi=False):
    if not k:
        return
    a(f"""
    s_mul_i32 s{sTMP + 4}, s{sPF}, {k * 8192}
    s_add_u32 s{sTMP + 4}, s{sTMP + 4}, {(done * 262144 - ((8 - k) * 8192 if hi else 0)) & 0xffffffff}
    s_add_u32 s{sTMP + 4}, s{sTMP + 4}, s{sRO2}
    {f"s_cmp_ge_u32 s{sW}, {8 - k}" if hi else f"s_cmp_lt_u32 s{sW}, {k}"}
    s_cselect_b32 s{sTMP + 4}, s{sTMP + 4}, {XBYTES}
    v_add_u32 v{vTA}, s{sTMP + 4}, v{vPFA}
    buffer_load_dword v{vPF}, v{vTA}, {sr(sX, 4)}, 0 offen
    """)


def side_loads(a, o):
    a(f"""
    s_cmp_lg_u32 s{sW}, 7
    s_cbranch_scc1 Lside_a
    v_lshlrev_b32 v{vT}, 2, v{vLANE}
    global_load_dword v{vTP}, v{vT}, s[14:15]
    global_load_dword v{vTP + 1}, v{vT}, s[14:15] offset:256
    global_load_dword v{vTP + 2}, v{vT}, s[14:15] offset:512
    global_load_dword v{vTP + 3}, v{vT}, s[14:15] offset:768
    Lside_a:
    s_cmp_lg_u32 s{sW}, 6
    s_cbranch_scc1 Lside_b
    v_bfe_u32 v{vT}, v{vLANE}, 3, 2
    v_and_b32 v{vT + 1}, 7, v{vLANE}
    v_lshl_add_u32 v{vT}, v{vT + 1}, 3, v{vT}
    v_lshlrev_b32 v{vT}, 1, v{vT}
    global_load_ushort v{vTP}, v{vT}, s[16:17]
    global_load_ushort v{vTP + 1}, v{vT}, s[16:17] offset:8
    Lside_b:
    s_cmp_lg_u32 s{sW}, 5
    s_cbranch_scc1 Lside_t
    s_mov_b64 exec, 0xff
    s_lshl_b32 s{sTMP}, s{sPF}, 10
    v_lshl_add_u32 v{vT}, v{vLANE}, 7, s{sTMP}
    global_load_dword v{vPF}, v{vT}, s[18:19]
    s_mov_b64 exec, 7
    """)
    if o.tlb & 1:
        a(f"""
        v_mul_u32_u24 v{vT}, {102 * CHB}, v{vLANE}
        v_add_u32 v{vT}, {WS_REC + CH * 32}, v{vT}
        global_load_dword v{vPF}, v{vT}, {sr(sWS, 2)}
        """)
    a(f"""
    s_mov_b64 exec, 31
    v_lshlrev_b32 v{vT}, 21, v{vLANE}
    """)
    if o.tlb & 2:
        a(f"buffer_load_dword v{vPF}, v{vT}, {sr(sX, 4)}, 0 offen")
    if o.tlb & 4:
        a(f"buffer_load_dword v{vPF}, v{vT}, {sr(sO, 4)}, 0 offen")
    a("""
    s_mov_b64 exec, -1
    Lside_t:
    """)


def side_finish(a):
    g = vTP + 4
    out = vR
    a(f"""
    s_cmp_lg_u32 s{sW}, 7
    s_cbranch_scc1 Lside_c
    s_mov_b32 s{sT}, {f32(-1.4426950408889634):#x}
    """)
    for k in range(4):
        a(f"v_lshlrev_b32 v{g + k}, 16, v{vTP + k}")
        a(f"v_and_b32 v{g + 4 + k}, 0xffff0000, v{vTP + k}")
    for k in range(8):
        a(f"v_mul_f32 v{g + k}, s{sT}, v{g + k}")
    for h in range(2):
        for p in range(2):
            g0 = g + 4 * h + 2 * p
            hi = out + 4 * h + p
            a(f"""
            v_cvt_pk_bf16_f32 v{hi}, v{g0}, v{g0 + 1}
            v_lshlrev_b32 v{vT}, 16, v{hi}
            v_and_b32 v{vT + 1}, 0xffff0000, v{hi}
            v_sub_f32 v{vT}, v{g0}, v{vT}
            v_sub_f32 v{vT + 1}, v{g0 + 1}, v{vT + 1}
            v_cvt_pk_bf16_f32 v{hi + 2}, v{vT}, v{vT + 1}
            """)
    a(f"""
    ds_write_b128 v{vL16}, {vr(out, 4)} offset:{L_WR}
    ds_write_b128 v{vL16}, {vr(out + 4, 4)} offset:{L_WR + 1024}
    Lside_c:
    s_cmp_lg_u32 s{sW}, 6
    s_cbranch_scc1 Lside_d
    v_lshl_or_b32 v{vTP}, v{vTP + 1}, 16, v{vTP}
    v_lshlrev_b32 v{vT}, 2, v{vLANE}
    ds_write_b32 v{vT}, v{vTP} offset:{L_CG}
    v_mov_b32 v{vT}, {XBYTES}
    v_mov_b32 v{vT + 1}, {L_ZERO}
    v_mov_b32 v{vT + 2}, 0
    ds_write_b64 v{vT + 2}, {vr(vT, 2)} offset:{L_NULL}
    Lside_d:
    """)


def wmix_loads(a, vunit, raw):
    a(f"""
    v_lshrrev_b32 v{vT}, 5, v{vunit}
    v_and_b32 v{vT + 1}, 31, v{vunit}
    v_lshlrev_b32 v{vT}, 11, v{vT}
    v_lshl_add_u32 v{vT}, v{vT + 1}, 3, v{vT}
    """)
    for j in range(8):
        a(f"global_load_dwordx2 {vr(raw + 2 * j, 2)}, v{vT}, s[18:19] offset:{256 * j}")


def wmix_finish(a, vunit, raw, frag):
    a(f"""
    v_bfe_u32 v{vT}, v{vunit}, 3, 2
    v_lshrrev_b32 v{vT + 1}, 7, v{vunit}
    v_lshlrev_b32 v{vT}, 13, v{vT}
    v_lshl_add_u32 v{vT}, v{vT + 1}, 11, v{vT}
    v_bfe_u32 v{vT + 1}, v{vunit}, 5, 2
    v_lshl_add_u32 v{vT}, v{vT + 1}, 8, v{vT}
    v_and_b32 v{vT + 1}, 7, v{vunit}
    v_lshl_add_u32 v{vT}, v{vT + 1}, 5, v{vT}
    """)
    for nn in range(2):
        for t in range(2):
            f = frag + 4 * (2 * nn + t)
            for jj in range(4):
                a(f"v_perm_b32 v{f + jj}, v{raw + 2 * (2 * jj + 1) + nn}, v{raw + 2 * (2 * jj) + nn}, s{sTMP + t}")
            a(f"ds_write_b128 v{vT}, {vr(f, 4)} offset:{L_WM + 1024 * t + 16 * nn}")


WRAW = (vU, vU + 16, vWM)
WUNIT = (vKEY, vPE, vPY)
WFRAG = vWM + 16


def g1_stores(a, t):
    a(f"""
    s_cmp_eq_u32 s{sBIG}, 0
    s_cbranch_scc1 Lg1{t}
    global_store_dwordx4 v{vKA}, {vr(vS1, 4)}, {sr(sREC, 2)} sc1
    s_cmp_eq_u32 s{sBIG}, 1
    s_cbranch_scc1 Lg1{t}
    global_store_dwordx4 v{vEA}, {vr(vS1 + 4, 4)}, {sr(sREC, 2)} sc1
    Lg1{t}:
    """)


def phase_a(a, o):
    vD, vS, vY, vF = vXB, vXB + 2, vXB + 4, vXB + 8
    vQ, vRK, vKK, vC, vSC, vTG = vXB + 12, vXB + 14, vXB + 16, vXB + 20, vXB + 24, vXB + 28
    rest = f"""
    global_load_dwordx2 {vr(vS, 2)}, v{vT + 3}, s[6:7] {o.ldpol}
    global_load_dwordx4 {vr(vY, 4)}, v{vT + 4}, s[10:11] {o.ldpol}
    global_load_dwordx4 {vr(vF, 4)}, v{vT + 4}, s[12:13] {o.ldpol}
    """
    a(f"""
    s_cmp_ge_u32 s2, 256
    s_cbranch_scc1 Lm_end
    """)
    stamp(a, o, 0)
    a(f"""
    s_load_dwordx16 s[4:19], s[0:1], 0
    s_load_dwordx2 {sr(sWS, 2)}, s[0:1], 80
    s_load_dwordx2 {sr(sO, 2)}, s[0:1], 64
    s_getpc_b64 {sr(sTMP + 2, 2)}
    La_pc:
    s_lshr_b32 s{sPF}, s2, 3
    s_mul_i32 s{sTMP}, s{sPF}, 384
    s_sub_u32 s{sTMP}, s{sTMP}, {509 * 128}
    v_lshl_add_u32 v{vT}, v0, 7, s{sTMP}
    v_min_u32 v{vT}, tfn_deal_table+508-La_pc, v{vT}
    v_cmp_lt_u32 vcc, 508, v0
    s_and_saveexec_b64 {sr(sTMP + 4, 2)}, vcc
    s_cbranch_execz La_notouch
    global_load_dword v{vPF}, v{vT}, {sr(sTMP + 2, 2)}
    La_notouch:
    s_mov_b64 exec, -1
    v_lshrrev_b32 v{vT}, 6, v0
    v_and_b32 v{vLANE}, 63, v0
    v_readfirstlane_b32 s{sW}, v{vT}
    v_mov_b32 v{vT}, 0
    v_mov_b32 v{vT + 1}, 0
    v_lshlrev_b32 v{vT + 7}, 3, v0
    ds_write_b64 v{vT + 7}, {vr(vT, 2)}
    v_lshlrev_b32 v{vL16}, 4, v{vLANE}
    v_mov_b32 v{vONE}, 1
    s_mul_i32 s3, s2, {CH * 4}
    v_add_u32 v{vT + 3}, s3, v{vT + 7}
    v_lshlrev_b32 v{vT + 4}, 1, v{vT + 3}
    s_and_b32 s{sQ}, s2, 7
    s_lshl_b32 s{sQ}, s{sQ}, 5
    s_or_b32 s{sQ}, s{sQ}, s{sPF}
    v_lshlrev_b32 v{vPFA}, 7, v0
    s_mov_b32 s{sX + 2}, {XBYTES}
    s_mov_b32 s{sX + 3}, 0x20000
    s_mov_b32 s{sO + 2}, {XBYTES}
    s_mov_b32 s{sO + 3}, 0x20000
    s_mov_b32 s{sRND}, 0
    s_mov_b32 s{sLN2}, {f32(-0.6931471805599453):#x}
    s_lshl_b32 s{sT}, s2, 11
    v_lshl_add_u32 v{vT + 6}, v0, 4, s{sT}
    s_cmp_lt_u32 s2, {NPROD}
    s_cselect_b32 s{sT}, 5, 0
    s_cmp_lt_u32 s{sW}, s{sT}
    s_cselect_b32 s{sBIG}, 1, 0
    s_waitcnt lgkmcnt(0)
    s_cbranch_scc0 La_noload
    global_load_dwordx2 {vr(vD, 2)}, v{vT + 3}, s[8:9] {o.ldpol}
    {rest if o.allfirst else ""}
    La_noload:
    s_add_u32 s{sREC}, s{sWS}, {WS_REC}
    s_addc_u32 s{sREC + 1}, s{sWS + 1}, 0
    s_load_dword s{sTAG}, {sr(sREC, 2)}, {WS_EPOCH - WS_REC}
    s_mov_b32 s{sX}, s4
    s_and_b32 s{sX + 1}, s5, 0xffff
    s_and_b32 s{sO + 1}, s{sO + 1}, 0xffff
    s_barrier
    s_cmp_eq_u32 s{sBIG}, 0
    s_cbranch_scc1 La_other
    {rest if not o.allfirst else ""}
    """)
    here = len(a.lines)

    def rot_setup():
        a(f"""
        s_and_b32 s{sRO2}, s2, {o.rot - 1 if o.rot else 0}
        s_mul_i32 s{sRO2}, s{sRO2}, {8 // o.rot if o.rot else 0}
        s_sub_u32 s{sROT}, 8, s{sRO2}
        s_lshl_b32 s{sROT}, s{sROT}, 6
        s_mul_i32 s{sRO2}, s{sRO2}, {1261 * 1024}
        """)
    rot_setup()
    for i in range(40):
        a(f"v_mov_b32 v{vACC + i}, 0")
    a("s_waitcnt vmcnt(3)")
    stamp(a, o, 1)
    for k in range(2):
        a(f"""
        v_and_b32 v{vQ + k}, 255, v{vD + k}
        v_lshlrev_b32 v{vQ + k}, 2, v{vQ + k}
        ds_add_rtn_u32 v{vRK + k}, v{vQ + k}, v{vONE} offset:{L_HIST}
        """)
    a(f"""
    v_bfe_u32 v{vKK}, v{vD}, 8, 6
    v_bfe_u32 v{vKK + 2}, v{vD + 1}, 8, 6
    s_waitcnt lgkmcnt(0)
    s_barrier
    ds_read_b128 {vr(vC, 4)}, v{vL16} offset:{L_HIST}
    ds_read_b64 {vr(vE, 2)}, v{vT + 7} offset:{L_HIST}
    s_add_u32 s{sTAG}, s{sTAG}, 0x9e3779b9
    v_mov_b32 v{vTG}, s{sTAG}
    v_mov_b32 v{vTG + 1}, s{sTAG}
    v_mov_b32 v{vKK + 1}, s{sTAG}
    v_mov_b32 v{vKK + 3}, s{sTAG}
    v_mov_b32 v{vAT + 1}, s{sTAG}
    v_mov_b32 v{vAT + 3}, s{sTAG}
    s_mov_b32 s{sT}, {L_STAGE}
    s_waitcnt vmcnt(2) lgkmcnt(1)
    v_add_u32 v{vT}, v{vC}, v{vC + 1}
    v_add_u32 v{vT + 1}, v{vT}, v{vC + 2}
    v_add_u32 v{vT + 2}, v{vT + 1}, v{vC + 3}
    v_mov_b32 v{vT + 3}, v{vT + 2}
    """)
    fill = []
    for op in ("v_mul_u32_u24 v{t}, 13, v{s}", "v_lshrrev_b32 v{t}, 14, v{t}", "v_min_u32 v{t}, 7, v{t}",
               "v_lshl_or_b32 v{k}, v{t}, 6, v{k}", "v_lshl_or_b32 v{k}, v{s}, 10, v{k}"):
        for k in range(2):
            fill.append(op.format(t=vT + 4 + k, s=vS + k, k=vKK + 2 * k))
    wave_scan(a, vT + 3, fill)
    a(f"""
    v_sub_u32 v{vSC}, v{vT + 3}, v{vT + 2}
    v_add_u32 v{vSC + 1}, v{vSC}, v{vC}
    v_add_u32 v{vSC + 2}, v{vSC}, v{vT}
    v_add_u32 v{vSC + 3}, v{vSC}, v{vT + 1}
    ds_write_b128 v{vL16}, {vr(vSC, 4)} offset:{L_START}
    ds_read_b64 {vr(vE + 2, 2)}, v{vT + 7} offset:{L_START}
    ds_read_b32 v{vT}, v{vQ} offset:{L_START}
    ds_read_b32 v{vT + 1}, v{vQ + 1} offset:{L_START}
    s_cmp_ge_u32 s{sW}, 2
    s_cbranch_scc1 La_notab
    s_waitcnt lgkmcnt(2)
    v_lshl_or_b32 v{vAT}, v{vE}, 16, v{vE + 2}
    v_lshl_or_b32 v{vAT + 2}, v{vE + 1}, 16, v{vE + 3}
    {f"global_store_dwordx4 v{vT + 6}, {vr(vAT, 4)}, {sr(sWS, 2)} sc1" if o.pub == 0 else f"v_mov_b32 v{vTA}, v{vT + 6}"}
    s_waitcnt vmcnt({1 if o.pub == 0 else 0}) lgkmcnt(0)
    s_branch La_tabdone
    La_notab:
    s_waitcnt vmcnt(0) lgkmcnt(0)
    La_tabdone:
    """)
    for k in range(2):
        a(f"""
        v_add_u32 v{vRK + k}, v{vRK + k}, v{vT + k}
        v_lshl_add_u32 v{vT + 2}, v{vRK + k}, 4, s{sT}
        v_add_u32 v{vT + 3}, {CH * 16}, v{vT + 2}
        ds_write2_b64 v{vT + 2}, {vr(vKK + 2 * k, 2)}, {vr(vY + 2 * k, 2)} offset0:0 offset1:1
        ds_write2_b64 v{vT + 3}, {vr(vF + 2 * k, 2)}, {vr(vTG, 2)} offset0:0 offset1:1
        """)
    c = Asm()
    c("La_other:")
    side_loads(c, o)
    save, a_lines = a.lines, c.lines
    a.lines = a_lines
    rot_setup()
    prefetch(a, o.pfa, 0, hi=True)
    for i in range(40):
        a(f"v_mov_b32 v{vACC + i}, 0")
    a(f"""
    s_waitcnt lgkmcnt(0)
    s_add_u32 s{sTAG}, s{sTAG}, 0x9e3779b9
    s_cmp_ge_u32 s{sW}, 2
    s_cbranch_scc1 La_notab2
    v_mov_b32 v{vKK}, 0
    v_mov_b32 v{vKK + 1}, s{sTAG}
    v_mov_b32 v{vKK + 2}, 0
    v_mov_b32 v{vKK + 3}, s{sTAG}
    global_store_dwordx4 v{vT + 6}, {vr(vKK, 4)}, {sr(sWS, 2)} sc1
    La_notab2:
    s_cmp_lt_u32 s{sW}, 5
    s_cbranch_scc0 La_side
    s_barrier
    s_branch La_join
    La_side:
    v_subrev_u32 v{WUNIT[0]}, 320, v0
    v_subrev_u32 v{WUNIT[1]}, 128, v0
    v_add_u32 v{WUNIT[2]}, 64, v0
    """)
    early = o.wmearly if o.wmside == 1 else 0

    def wm_round(r):
        if r == 2:
            a(f"""
            s_cmp_eq_u32 s{sW}, 7
            s_cbranch_scc1 La_wm2
            """)
        wmix_loads(a, WUNIT[r], WRAW[r])
        if r == 2:
            a("La_wm2:")
    for r in range(early):
        wm_round(r)
    young = (1 if o.pfa else 0) + 8 * min(early, 2)
    a(f"""
    s_barrier
    s_cmp_eq_u32 s{sW}, 5
    s_cbranch_scc1 La_now5
    s_waitcnt vmcnt({young})
    La_now5:
    """)
    if o.sidefirst:
        side_finish(a)
    if o.wmside == 1:
        for r in range(early, 3):
            wm_round(r)
    if not o.sidefirst:
        side_finish(a)
    a("s_branch La_join")
    if o.inl:
        save[here:here] = ["    s_branch La_prod"] + a.lines + ["La_prod:"]
    else:
        a.cold += a.lines
    a.lines = save
    a(f"""
    La_join:
    s_mov_b32 s{sT}, {L_STAGE}
    v_lshl_add_u32 v{vT + 4}, v0, 4, s{sT}
    s_mul_i32 s{sT}, s2, {CHB}
    v_lshl_add_u32 v{vT + 5}, v0, 4, s{sT}
    v_add_u32 v{vT + 6}, 8192, v{vT + 5}
    v_add_u32 v{vKA}, {CH * 16}, v{vT + 5}
    v_add_u32 v{vEA}, {CH * 16 + 8192}, v{vT + 5}
    s_cmp_lt_u32 s{sW}, 2
    s_cselect_b32 s{sBIG}, 2, 1
    s_cmp_lt_u32 s2, {NPROD}
    s_cselect_b32 s{sBIG}, s{sBIG}, 0
    s_waitcnt lgkmcnt(0)
    s_barrier
    """)
    stamp(a, o, 2)
    g1a = f"global_store_dwordx4 v{vKA}, {vr(vS1, 4)}, {sr(sREC, 2)} sc1" if not o.g1pos else ""
    g1b = f"global_store_dwordx4 v{vEA}, {vr(vS1 + 4, 4)}, {sr(sREC, 2)} sc1" if not o.g1pos else ""
    a(f"""
    s_cmp_ge_u32 s2, {NPROD}
    s_cbranch_scc1 La_nostore
    ds_read_b128 {vr(vY, 4)}, v{vT + 4}
    ds_read_b128 {vr(vS1, 4)}, v{vT + 4} offset:{CH * 16}
    s_cmp_lt_u32 s{sW}, 2
    s_cbranch_scc1 La_four
    s_waitcnt lgkmcnt(1)
    global_store_dwordx4 v{vT + 5}, {vr(vY, 4)}, {sr(sREC, 2)} sc1
    s_waitcnt lgkmcnt(0)
    {g1a}
    s_branch La_nostore
    La_four:
    ds_read_b128 {vr(vF, 4)}, v{vT + 4} offset:8192
    ds_read_b128 {vr(vS1 + 4, 4)}, v{vT + 4} offset:{CH * 16 + 8192}
    s_waitcnt lgkmcnt(3)
    global_store_dwordx4 v{vT + 5}, {vr(vY, 4)}, {sr(sREC, 2)} sc1
    s_waitcnt lgkmcnt(1)
    global_store_dwordx4 v{vT + 6}, {vr(vF, 4)}, {sr(sREC, 2)} sc1
    {g1a}
    s_waitcnt lgkmcnt(0)
    {g1b}
    """)
    if o.pub == 2:
        a(f"""
        s_cmp_ge_u32 s{sW}, 2
        s_cbranch_scc1 La_nostore
        global_store_dwordx4 v{vTA}, {vr(vAT, 4)}, {sr(sWS, 2)} sc1
        """)
    a(f"""
    La_nostore:
    """)
    if o.g1pos == 2:
        a("s_barrier")
        g1_stores(a, "a")
    if o.g1pos == 3:
        a(f"""
        s_lshl_b32 s{sT}, s{sQ}, 3
        v_lshrrev_b32 v{vT + 2}, 1, v0
        v_lshl_add_u32 v{vT + 3}, v{vT + 2}, 11, s{sT}
        s_barrier
        global_load_dwordx2 {vr(vE, 2)}, v{vT + 3}, {sr(sWS, 2)} sc1
        """)
        g1_stores(a, "a")
    stamp(a, o, 3)


def gen_main(a, o):
    kn = NAME + "_kernel"
    D, D0 = o.D, min(o.D, o.D0)
    a(".p2align 8")
    a(f".globl {kn}")
    a(f".type {kn},@function")
    a(f"{kn}:")
    vG0 = vXB
    vG1 = vTP
    vBA = vU + 8
    vRK = vU + 16
    vMP = vU + 24
    vEN = vE
    vK = [vG0 + 4 * j for j in range(SLOTS)]
    phase_a(a, o)
    a(f"""
    s_mov_b32 s{sTMP}, 0x05040100
    s_mov_b32 s{sTMP + 1}, 0x07060302
    """)
    if o.wmside == 1:
        a(f"""
        s_cmp_ge_u32 s{sW}, 5
        s_cbranch_scc1 Lm_wmside
        Lm_wmback:
        """)
        c = Asm()
        c(f"""
        Lm_wmside:
        s_waitcnt vmcnt({1 if o.g1late or o.g1pos == 1 else 3 if o.g1pos == 3 else 2})
        s_cmp_lt_u32 s2, {NPROD}
        s_cbranch_scc1 Lm_wmgo
        s_waitcnt vmcnt(0)
        Lm_wmgo:
        """)
        wmix_finish(c, WUNIT[0], WRAW[0], WFRAG)
        wmix_finish(c, WUNIT[1], WRAW[1], WRAW[0])
        c(f"""
        s_cmp_eq_u32 s{sW}, 7
        s_cbranch_scc1 Lm_wmback
        """)
        wmix_finish(c, WUNIT[2], WRAW[2], WRAW[1])
        c("s_branch Lm_wmback")
        a.cold += c.lines
    elif o.wmside == 0:
        wmix_loads(a, 0, vWM)
    else:
        a(f"s_mov_b32 s{sWST}, {3 - o.wmit}")
    a(f"""
    s_getpc_b64 {sr(sTMP + 2, 2)}
    Lm_pc:
    s_cmp_lt_u32 s{sQ}, {N - 39 * 256}
    s_cselect_b32 s{sT}, 256, 0
    s_add_u32 s{sT}, s{sT}, tfn_deal_table-Lm_pc
    v_lshl_add_u32 v{vT}, v{vLANE}, 2, s{sT}
    global_load_dword v{vTAB}, v{vT}, {sr(sTMP + 2, 2)}
    s_lshl_b32 s{sT}, s{sQ}, 3
    v_lshrrev_b32 v{vT + 2}, 1, v0
    v_lshl_add_u32 v{vT + 3}, v{vT + 2}, 11, s{sT}
    {f"global_load_dwordx2 {vr(vEN, 2)}, v{vT + 3}, {sr(sWS, 2)} sc1" if not o.ackpoll and o.g1pos != 3 else ""}
    v_mul_u32_u24 v{vREC16}, {CHB}, v{vT + 2}
    v_and_b32 v{vT + 4}, 1, v0
    v_mov_b32 v{vT + 5}, {L_MAX}
    v_lshlrev_b32 v{vREC4}, 4, v0
    v_add_u32 v{vREC4}, {L_PAY}, v{vREC4}
    s_mov_b32 s{sSPIN}, {o.spin}
    {"s_mov_b32 s10, 0" if o.stamps == 1 else ""}
    {"s_mov_b32 s11, 0" if o.stamps == 1 else ""}
    {"s_mov_b32 s12, 0" if o.stamps == 1 else ""}
    v_lshrrev_b32 v{vYL}, 2, v{vLANE}
    v_lshlrev_b32 v{vYL}, 3, v{vYL}
    v_bfe_u32 v{vT}, v{vLANE}, 3, 2
    v_and_b32 v{vT + 1}, 3, v{vLANE}
    v_lshl_add_u32 v{vT}, v{vT}, 2, v{vT + 1}
    v_lshlrev_b32 v{vEL}, 3, v{vT}
    s_mov_b32 s{sTMP + 2}, 0x0f0f0f0f
    s_mov_b32 s{sTMP + 3}, 0xf0f0f0f0
    v_mov_b32 v{vT}, 128
    v_cndmask_b32 v{vEINC}, 0, v{vT}, {sr(sTMP + 2, 2)}
    s_mul_i32 s{sT}, s{sW}, {20 * ROWB}
    s_add_u32 s{sT}, s{sT}, {L_AGG}
    v_lshl_add_u32 v{vAGW}, v{vLANE}, 2, s{sT}
    s_lshr_b32 s{sT}, s{sW}, 2
    s_mul_i32 s{sT}, s{sT}, {80 * ROWB}
    s_add_u32 s{sT}, s{sT}, {L_AGG}
    v_and_b32 v{vT}, 15, v{vLANE}
    v_mul_u32_u24 v{vT}, {ROWB}, v{vT}
    v_and_b32 v{vT + 1}, 48, v{vLANE}
    v_add3_u32 v{vAGR}, v{vT}, v{vT + 1}, s{sT}
    {f"s_waitcnt vmcnt({o.ackpoll - 1})" if o.ackpoll else ""}
    {f"global_load_dwordx2 {vr(vEN, 2)}, v{vT + 3}, {sr(sWS, 2)} sc1" if o.ackpoll else ""}
    """)
    if o.g1pos == 1:
        g1_stores(a, "b")
    if o.g1pos == 3:
        a(f"""
        s_waitcnt vmcnt(3)
        s_cmp_eq_u32 s{sBIG}, 2
        s_cbranch_scc1 Lm_poll2
        s_waitcnt vmcnt(2)
        s_cmp_eq_u32 s{sBIG}, 1
        s_cbranch_scc1 Lm_poll2
        """)
    a(f"""
    Lm_poll:
    s_waitcnt vmcnt(0)
    Lm_poll2:
    v_cmp_ne_u32 vcc, s{sTAG}, v{vEN + 1}
    s_cbranch_vccnz Lm_repoll
    s_mov_b64 exec, -1
    """)
    c = Asm()
    c(f"""
    Lm_repoll:
    {"s_add_u32 s10, s10, 1" if o.stamps == 1 else ""}
    s_sub_u32 s{sSPIN}, s{sSPIN}, 1
    s_cbranch_scc1 Lm_end
    s_mov_b64 exec, vcc
    global_load_dwordx2 {vr(vEN, 2)}, v{vT + 3}, {sr(sWS, 2)} sc1
    s_branch Lm_poll
    """)
    a.cold = c.lines + a.cold
    stamp(a, o, 4)
    a(f"""
    v_and_b32 v{vT}, 0xffff, v{vEN}
    v_lshrrev_b32 v{vT + 1}, 16, v{vEN}
    v_add_u32 v{vT}, v{vT}, v{vT + 4}
    v_sub_u32 v{vREM}, v{vT + 1}, v{vT + 4}
    v_lshl_add_u32 v{vREC16}, v{vT}, 4, v{vREC16}
    Lm_round:
    """)
    for j in range(HOT + 1):
        a(f"v_cmp_lt_i32 {sr(sM + 2 * j, 2)}, {2 * j}, v{vREM}")

    def per_slot(label, body, full=False):
        for j in range(HOT):
            if not full:
                a(f"s_mov_b64 exec, {sr(sM + 2 * j, 2)}")
                if j >= o.nobr:
                    a(f"s_cbranch_execz {label}")
            body(a, j)
        a(f"s_cmp_lg_u64 {sr(sM + 2 * HOT, 2)}, 0")
        a(f"s_cbranch_scc1 {label}x")
        a(f"{label}:")
        if not full:
            a("s_mov_b64 exec, -1")
        c = Asm()
        c(f"{label}x:")
        for j in range(HOT, SLOTS):
            if not full:
                c(f"s_mov_b64 exec, {sr(sM + 2 * j, 2)}")
                c(f"s_cbranch_execz {label}")
            body(c, j)
        c(f"s_branch {label}")
        a.cold += c.lines

    def ldg0(b, j):
        if j == HOT:
            b("s_mov_b64 exec, -1")
            for jj in range(HOT + 1, SLOTS):
                b(f"v_cmp_lt_i32 {sr(sM + 2 * jj, 2)}, {2 * jj}, v{vREM}")
            b(f"s_mov_b64 exec, {sr(sM + 2 * j, 2)}")
        b(f"global_load_dwordx4 {vr(vG0 + 4 * j, 4)}, v{vREC16}, {sr(sREC, 2)} offset:{32 * j} sc1")

    def ldg1(b, j):
        b(f"global_load_dwordx3 {vr(vG1 + 4 * j, 3)}, v{vREC1}, {sr(sREC, 2)} offset:{32 * j} sc1")

    a("Lm_g0:")
    per_slot("Lm_ld", ldg0)
    a(f"""
    v_add_u32 v{vREC1}, {CH * 16}, v{vREC16}
    s_cmp_lg_u32 s{sRND}, 0
    s_cbranch_scc1 Lm_nomax
    """)
    if not o.wmside:
        wmix_finish(a, 0, vWM, vWM + 16)
    a(f"""
    v_add_u32 v{vT + 1}, v{vREM}, v{vT + 4}
    v_cmp_lt_u32 vcc, {2 * SLOTS}, v{vT + 1}
    s_and_saveexec_b64 {sr(sTMP + 2, 2)}, vcc
    ds_max_u32 v{vT + 5}, v{vT + 1}
    s_mov_b64 exec, -1
    Lm_nomax:
    s_mov_b64 {sr(sBAD, 2)}, 0
    """)
    if o.g1late:
        a(f"""
        s_cmp_eq_u32 s{sBIG}, 0
        s_cbranch_scc1 Lm_s0
        global_store_dwordx4 v{vKA}, {vr(vS1, 4)}, {sr(sREC, 2)} sc1
        s_cmp_eq_u32 s{sBIG}, 2
        s_cbranch_scc1 Lm_s2
        s_waitcnt vmcnt(1)
        Lm_s1:
        s_mov_b32 s{sBIG}, 0
        """)
        c = Asm()
        c(f"""
        Lm_s0:
        s_waitcnt vmcnt(0)
        s_branch Lm_s1
        Lm_s2:
        global_store_dwordx4 v{vEA}, {vr(vS1 + 4, 4)}, {sr(sREC, 2)} sc1
        s_waitcnt vmcnt(2)
        s_branch Lm_s1
        """)
        a.cold = c.lines + a.cold
    else:
        a("s_waitcnt vmcnt(0)")

    def ck0(b, j):
        b(f"v_cmp_ne_u32 vcc, s{sTAG}, v{vG0 + 4 * j + 1}")
        b(f"v_and_b32 v{vBA + j}, 63, v{vK[j]}")
        b(f"v_lshlrev_b32 v{vBA + j}, 2, v{vBA + j}")
        b(f"s_or_b64 {sr(sBAD, 2)}, {sr(sBAD, 2)}, vcc")
    per_slot("Lm_ck0", ck0)
    a(f"""
    s_cmp_lg_u64 {sr(sBAD, 2)}, 0
    s_cbranch_scc1 Lm_re0
    """)
    stamp(a, o, 5)

    def hist1(b, j):
        b(f"ds_add_u32 v{vBA + j}, v{vONE} offset:{L_DEG}")
        if o.g1ld == 0:
            ldg1(b, j)
        b(f"ds_write_b64 v{vREC4}, {vr(vG0 + 4 * j + 2, 2)} offset:{8192 * j}")
        if o.rot:
            b(f"v_add_u32 v{vRK + j}, s{sROT}, v{vK[j]}")
            b(f"v_bfe_u32 v{vRK + j}, v{vRK + j}, 6, 3")
        else:
            b(f"v_bfe_u32 v{vRK + j}, v{vK[j]}, 6, 3")
        b(f"v_and_b32 v{vK[j]}, 0xfffffc00, v{vK[j]}")
    per_slot("Lm_h1", hist1)
    a(f"""
    s_cmp_lg_u32 s{sRND}, 0
    s_cbranch_scc1 {"Lm_binsx" if o.g1ld == 1 else "Lm_bins"}
    v_lshlrev_b32 v{vT + 1}, 2, v{vLANE}
    s_mul_i32 s{sT}, s{sW}, 5
    v_sub_u32 v{vT + 2}, 63, v{vLANE}
    v_add_u32 v{vT + 6}, s{sT}, v{vLANE}
    v_lshlrev_b32 v{vT + 4}, 2, v{vT + 6}
    v_and_b32 v{vT + 7}, 3, v0
    v_lshlrev_b32 v{vT + 7}, 5, v{vT + 7}
    s_add_u32 s{sTMP}, s{sT}, 1
    s_add_u32 s{sTMP + 1}, s{sT}, 2
    s_add_u32 s{sTMP + 2}, s{sT}, 3
    s_add_u32 s{sTMP + 3}, s{sT}, 4
    s_waitcnt lgkmcnt(0)
    s_barrier
    """)
    stamp(a, o, 6)
    a(f"""
    ds_read_b32 v{vT}, v{vT + 1} offset:{L_DEG}
    ds_read_b32 v{vT + 5}, v{vT + 5}
    """)
    if o.g1ld == 0:
        prefetch(a, o.pf2, o.pfa)
    a(f"""
    s_waitcnt lgkmcnt(0)
    v_lshl_or_b32 v{vT}, v{vT}, 6, v{vT + 2}
    v_readfirstlane_b32 s{sMAX}, v{vT + 5}
    v_readlane_b32 s{sRING}, v{vT}, s{sT}
    v_readlane_b32 s{sRING + 1}, v{vT}, s{sTMP}
    v_readlane_b32 s{sRING + 2}, v{vT}, s{sTMP + 1}
    v_readlane_b32 s{sRING + 3}, v{vT}, s{sTMP + 2}
    v_readlane_b32 s{sRING + 4}, v{vT}, s{sTMP + 3}
    """)
    for k in range(5):
        a(f"v_cmp_lt_u32 {sr(sTMP + 2 * k, 2)}, s{sRING + k}, v{vT}")
    for k in range(5):
        a(f"s_bcnt1_i32_b64 s{sRING + 8 + k}, {sr(sTMP + 2 * k, 2)}")
    for k in range(5):
        a(f"v_readlane_b32 s{sRING + k}, v{vTAB}, s{sRING + 8 + k}")
    for k in range(5):
        a(f"v_writelane_b32 v{vT + 2}, s{sRING + k}, {k}")
    a(f"""
    s_mov_b64 exec, 31
    v_lshrrev_b32 v{vT + 3}, 24, v{vT + 2}
    ds_write_b32 v{vT + 4}, v{vT + 2} offset:{L_MAP}
    ds_write_b32 v{vT + 3}, v{vT + 6} offset:{L_INV}
    s_mov_b64 exec, -1
    ds_read_b128 {vr(vWR, 4)}, v{vL16} offset:{L_WR}
    ds_read_b128 {vr(vWR + 4, 4)}, v{vL16} offset:{L_WR + 1024}
    ds_read_b128 {vr(vCG, 4)}, v{vT + 7} offset:{L_CG}
    ds_read_b128 {vr(vCG + 4, 4)}, v{vT + 7} offset:{L_CG + 16}
    """)
    if o.g1ld == 1:
        per_slot("Lm_l1", ldg1)
        a.cold += ["Lm_binsx:"]
        for j in range(SLOTS):
            a.cold += [f"    s_mov_b64 exec, {sr(sM + 2 * j, 2)}", "    s_cbranch_execz Lm_binsy"]
            c = Asm()
            ldg1(c, j)
            a.cold += c.lines
        a.cold += ["Lm_binsy:", "    s_mov_b64 exec, -1", "    s_branch Lm_bins"]
    a("""
    s_waitcnt lgkmcnt(4)
    s_barrier
    """)
    if o.g1ld == 1:
        prefetch(a, o.pf2, o.pfa)
    a("Lm_bins:")
    stamp(a, o, 7)

    def rdmap(b, j):
        b(f"ds_read_b32 v{vMP + j}, v{vBA + j} offset:{L_MAP}")
        if o.g1ld == 2:
            ldg1(b, j)
    per_slot("Lm_mp", rdmap)
    if o.g1ld == 2:
        a(f"""
        s_cmp_lg_u32 s{sRND}, 0
        s_cbranch_scc1 Lm_nopf
        """)
        prefetch(a, o.pf2, o.pfa)
        a("Lm_nopf:")
    a(f"""
    v_lshlrev_b32 v{vT + 1}, 2, v{vLANE}
    s_lshl_b32 s{sT}, s{sW}, 3
    s_add_u32 s{sTMP}, s{sT}, 7
    v_lshrrev_b32 v{vT + 3}, 3, v{vLANE}
    s_mov_b64 {sr(sBAD, 2)}, 0
    s_waitcnt lgkmcnt(0)
    """)

    def hist2(b, j):
        b(f"v_and_b32 v{vBA + j}, 0xffff, v{vMP + j}")
        b(f"v_lshl_add_u32 v{vBA + j}, v{vRK + j}, 2, v{vBA + j}")
        b(f"ds_add_rtn_u32 v{vRK + j}, v{vBA + j}, v{vONE} offset:{L_BIN}")
        b(f"v_bfe_u32 v{vMP + j}, v{vMP + j}, 16, 8")
        b(f"v_or_b32 v{vK[j]}, v{vK[j]}, v{vMP + j}")
        b(f"v_add_u32 v{vK[j] + 1}, {8192 * j}, v{vREC4}")
    per_slot("Lm_h2", hist2)
    a(f"""
    s_waitcnt lgkmcnt(0)
    s_barrier
    """)
    stamp(a, o, 8)
    a(f"""
    ds_read_b32 v{vT}, v{vT + 1} offset:{L_BIN}
    v_mov_b32 v{vT + 4}, {XBYTES}
    v_mov_b32 v{vT + 5}, {L_ZERO}
    s_mov_b32 s{sTMP + 2}, {L_ENT}
    v_mov_b32 v{vT + 6}, {L_NULL}
    s_mov_b32 s{sTMP + 4}, 0x0f0f0f0f
    s_mov_b32 s{sTMP + 5}, 0xf0f0f0f0
    v_mov_b32 v{vT + 7}, {L_NULL - 32}
    s_waitcnt lgkmcnt(0)
    v_mov_b32 v{vT + 2}, v{vT}
    """)
    wave_scan(a, vT + 2)
    a(f"""
    v_lshl_add_u32 v{vT + 2}, v{vT + 3}, 4, v{vT + 2}
    v_sub_u32 v{vT}, v{vT + 2}, v{vT}
    """)
    per_slot("Lm_bp", lambda b, j: b(f"ds_bpermute_b32 v{vMP + j}, v{vBA + j}, v{vT}"), full=True)
    npf = 1 if o.pf2 else 0
    a(f"s_waitcnt vmcnt({npf})")
    if npf:
        a(f"""
        s_cmp_lg_u32 s{sRND}, 0
        s_cbranch_scc1 Lm_g1w
        """)
        a.cold += ["Lm_g1w:", "    s_waitcnt vmcnt(0)", "    s_branch Lm_g1"]
    a("Lm_g1:")

    def ck1(b, j):
        b(f"v_cmp_ne_u32 vcc, s{sTAG}, v{vG1 + 4 * j + 2}")
        b(f"ds_write_b64 v{vREC4}, {vr(vG1 + 4 * j, 2)} offset:{8192 * j + 8}")
        b(f"s_or_b64 {sr(sBAD, 2)}, {sr(sBAD, 2)}, vcc")
    per_slot("Lm_ck1", ck1)
    a(f"""
    s_cmp_lg_u64 {sr(sBAD, 2)}, 0
    s_cbranch_scc1 Lm_re1
    """)
    a(f"""
    v_readlane_b32 s{sSTART}, v{vT}, s{sT}
    v_readlane_b32 s{sN}, v{vT + 2}, s{sTMP}
    v_readlane_b32 s{sBIG}, v{vT + 2}, 63
    s_nop 0
    v_add_u32 v{vT + 2}, s{sN}, v{vLANE}
    v_lshl_add_u32 v{vT + 2}, v{vT + 2}, 3, s{sTMP + 2}
    s_cmp_eq_u32 s{sW}, 7
    s_cselect_b64 exec, -1, 0xffff
    ds_write_b64 v{vT + 2}, {vr(vT + 4, 2)}
    s_mov_b64 exec, -1
    s_sub_u32 s{sN}, s{sN}, s{sSTART}
    s_lshl_b32 s{sSTART}, s{sSTART}, 3
    s_add_u32 s{sSTART}, s{sSTART}, {L_ENT}
    s_waitcnt lgkmcnt(1)
    """)

    def wr(b, j):
        b(f"v_add_u32 v{vRK + j}, v{vRK + j}, v{vMP + j}")
        b(f"v_lshl_add_u32 v{vRK + j}, v{vRK + j}, 3, s{sTMP + 2}")
        b(f"ds_write_b64 v{vRK + j}, {vr(vK[j], 2)}")
    per_slot("Lm_wr", wr)
    a(f"""
    v_lshl_add_u32 v{vKA}, v{vLANE}, 3, s{sSTART}
    v_add_u32 v{vYA}, s{sSTART}, v{vYL}
    v_add_u32 v{vEA}, s{sSTART}, v{vEL}
    v_cndmask_b32 v{vT}, v{vT + 6}, v{vEA}, {sr(sTMP + 4, 2)}
    v_cndmask_b32 v{vEA}, v{vT + 7}, v{vEA}, {sr(sTMP + 4, 2)}
    v_mov_b32 v{vT + 4}, 0
    s_add_u32 s{sN}, s{sN}, 3
    s_lshr_b32 s{sN}, s{sN}, 2
    s_waitcnt lgkmcnt(0)
    s_barrier
    """)
    stamp(a, o, 9)
    vK0, vPE0, vEF0 = vT + 3, vT + 2, vTP
    a(f"""
    ds_read_b32 v{vK0}, v{vKA}
    ds_read_b32 v{vPE0}, v{vT} offset:4
    ds_read_b32 v{vPE}, v{vEA} offset:{4 + 32}
    ds_read_b32 v{vPY}, v{vYA} offset:4
    ds_read_b32 v{vKEY}, v{vKA} offset:{8 * D}
    ds_write_b32 v{vT + 1}, v{vT + 4} offset:{L_BIN}
    s_waitcnt lgkmcnt(5)
    """)
    for i in range(D + 2):
        a(f"v_readlane_b32 s{sRING + i}, v{vK0}, {i}")

    def rowld(i):
        a(f"s_and_b32 s{sOFF}, s{sRING + i}, 0xfffffc00")
        a(f"buffer_load_dwordx4 {vr(vXB + 4 * i, 4)}, v{vL16}, {sr(sX, 4)}, s{sOFF} offen")
    for i in range(D0):
        rowld(i)
    a(f"""
    s_waitcnt lgkmcnt(2)
    ds_read2_b64 {vr(vEF0, 4)}, v{vPE0} offset0:1 offset1:1
    ds_read_b64 {vr(vYN, 2)}, v{vPY}
    ds_read2_b64 {vr(vEF, 4)}, v{vPE} offset0:1 offset1:1
    """)
    for i in range(D0, D):
        rowld(i)
    a(f"""
    s_and_b32 s{sOFF}, s{sRING + D}, 0xfffffc00
    s_and_b32 s{sOFF + 1}, s{sRING + D + 1}, 0xfffffc00
    s_and_b32 s{sTMP + 2}, s{sW}, 3
    s_lshl_b32 s{sTMP + 3}, s{sTMP + 2}, 13
    v_add_u32 v{vT + 4}, s{sTMP + 3}, v{vL16}
    s_lshr_b32 s{sTMP}, s{sW}, 2
    s_mul_i32 s{sTMP + 1}, s{sTMP}, 80
    v_lshrrev_b32 v{vT + 1}, 4, v{vLANE}
    v_lshl_add_u32 v{vT + 2}, v{vT + 1}, 2, s{sTMP + 1}
    s_waitcnt lgkmcnt(0)
    """)
    for mt in range(5):
        a(f"ds_read_b32 v{vINV + mt}, v{vT + 2} offset:{L_INV + 16 * mt}")
    if o.wmside != 3:
        for i in range(8):
            a(f"ds_read_b128 {vr(vWM + 4 * i, 4)}, v{vT + 4} offset:{L_WM + 1024 * i}")
    a(f"""
    s_cmp_eq_u32 s{sN}, 0
    s_cbranch_scc1 Lm_done
    s_sub_u32 s{sN}, s{sN}, 1
    """)

    def mz(h, ef):
        a(f"v_mfma_f32_32x32x16_bf16 {vr(vU + 16 * h, 16)}, {vr(ef, 4)}, {vr(vWR + 4 * h, 4)}, 0")

    def dot(n):
        i, p = n & 3, n >> 2
        c = f"v{vAT + i}" if p else "0"
        a(f"v_dot2_f32_bf16 v{vAT + i}, v{vYN + p}, v{vCG + 2 * i + p}, {c}")

    mz(0, vEF0)
    mz(1, vEF0)
    for n in range(8):
        dot(n)
    a(f"v_add_u32 v{vEA}, v{vEINC}, v{vEA}")
    a(f"v_add_u32 v{vYA}, 128, v{vYA}")
    a(f"v_add_u32 v{vKA}, 128, v{vKA}")
    if o.scale == 2:
        for r in (0, 2):
            a(f"v_pk_mul_f32 {vr(vAT + r, 2)}, {vr(vAT + r, 2)}, {sr(sLN2, 2)} op_sel_hi:[1,0]")
    a(f"v_cvt_pk_bf16_f32 v{vA}, v{vAT}, v{vAT + 1}")
    a(f"v_cvt_pk_bf16_f32 v{vA + 1}, v{vAT + 2}, v{vAT + 3}")
    tmp = vTP + 8
    for r in range(8):
        a(f"v_exp_f32 v{tmp + r}, v{vU + 16 * (r >> 2) + (r & 3)}")
    a("s_nop 0")
    for r in range(0, 8, 2):
        a(f"v_pk_add_f32 {vr(tmp + r, 2)}, {vr(tmp + r, 2)}, 1.0 op_sel_hi:[1,0]")
    for r in range(8):
        a(f"v_rcp_f32 v{tmp + r}, v{tmp + r}")
    a("s_nop 0")
    for r in range(0, 8, 2):
        a(f"v_pk_mul_f32 {vr(vR + r, 2)}, {vr(vU + 16 * (r >> 2) + (r & 3), 2)}, {vr(tmp + r, 2)}")
    mz(0, vEF)
    a("s_nop 7")
    stamp(a, o, 10)
    if o.yprio:
        a(f"""
        s_cmp_lt_u32 s{sW}, 4
        s_cbranch_scc1 Lm_loop
        s_setprio 1
        """)
    a(".p2align 6")
    a("Lm_loop:")
    for P in range(8):
        g, hf = P >> 1, P & 1
        i0 = 2 * P
        sn = vU + 16 * hf + 4 * g
        dn = vR + 8 * ((g + 1) & 1) + 4 * hf
        cur = vR + 8 * (g & 1) + 2 * hf
        a(f"s_waitcnt vmcnt({D - 2})")
        for k in range(2):
            a(f"buffer_load_dwordx4 {vr(vXB + 4 * ((i0 + k + D) & 7), 4)}, v{vL16}, {sr(sX, 4)}, s{sOFF + k} offen")
        for k in range(2):
            xb = vXB + 4 * ((i0 + k) & 7)
            for h in range(2):
                a(f"v_mfma_f32_4x4x4_16b_bf16 {vr(vTP + 8 * k + 4 * h, 4)}, {vr(vA, 2)}, {vr(xb + 2 * h, 2)}, 0 cbsz:4 abid:{i0 + k}")
                a(f"v_exp_f32 v{vE + 2 * k + h}, v{sn + 2 * k + h}")
        if P == 0:
            a("s_waitcnt lgkmcnt(0)")
        for k in range(2):
            a(f"v_readlane_b32 s{sRING + ((i0 + k + D + 2) & 15)}, v{vKEY}, {i0 + k + 2}")
        for k in range(2):
            a(f"v_pk_add_f32 {vr(vE + 2 * k, 2)}, {vr(vE + 2 * k, 2)}, 1.0 op_sel_hi:[1,0]")
        if P == 0:
            mz(1, vEF)
        if P == 7:
            mz(0, vEF)
        for r in range(4):
            a(f"v_rcp_f32 v{vE + r}, v{vE + r}")
        if P == 0:
            a(f"ds_read_b32 v{vPY}, v{vYA} offset:4")
            a(f"ds_read_b32 v{vPE}, v{vEA} offset:{4 + 32}")
        if P == 1:
            a("s_waitcnt lgkmcnt(0)")
            a(f"ds_read_b64 {vr(vYN, 2)}, v{vPY}")
            a(f"ds_read2_b64 {vr(vEF, 4)}, v{vPE} offset0:1 offset1:1")
        if P == 7:
            a(f"ds_read_b32 v{vKEY}, v{vKA} offset:{8 * D}")
        for k in range(2):
            a(f"s_and_b32 s{sOFF + k}, s{sRING + ((i0 + k + D + 2) & 15)}, 0xfffffc00")
        for k in range(2):
            a(f"s_set_gpr_idx_on s{sRING + i0}, 0xc" if k == 0 else f"s_set_gpr_idx_idx s{sRING + i0 + 1}")
            for q in range(4):
                a(f"v_pk_fma_f32 {vr(vACC + 2 * q, 2)}, {vr(cur + 4 * (q >> 1), 2)}, {vr(vTP + 8 * k + 2 * q, 2)}, "
                  f"{vr(vACC + 2 * q, 2)} op_sel:[{k},0,0] op_sel_hi:[{k},1,1]")
        a("s_set_gpr_idx_off")
        for k in range(2):
            a(f"v_pk_mul_f32 {vr(dn + 2 * k, 2)}, {vr(sn + 2 * k, 2)}, {vr(vE + 2 * k, 2)}")
        if P == 1:
            a(f"v_add_u32 v{vEA}, v{vEINC}, v{vEA}")
            a(f"v_add_u32 v{vYA}, 128, v{vYA}")
        if P == 6 and o.wmside == 3:
            a(f"""
            s_cmp_lt_u32 s{sWST}, 5
            s_cbranch_scc1 Lm_wst
            Lm_wstb:
            """)
            c = Asm()
            c(f"""
            Lm_wst:
            s_add_u32 s{sWST}, s{sWST}, 1
            s_cmp_lt_u32 s{sWST}, 4
            s_cbranch_scc1 Lm_wstb
            s_cmp_eq_u32 s{sWST}, 5
            s_cbranch_scc1 Lm_wst2
            """)
            wmix_loads(c, 0, vWM)
            c(f"""
            s_branch Lm_wstb
            Lm_wst2:
            s_mov_b32 s{sTMP}, 0x05040100
            s_mov_b32 s{sTMP + 1}, 0x07060302
            """)
            wmix_finish(c, 0, vWM, vWM + 16)
            c("s_branch Lm_wstb")
            a.cold = c.lines + a.cold
        if P == 2:
            a("s_waitcnt lgkmcnt(0)")
        if 2 <= P < 6:
            dot(2 * (P - 2))
            dot(2 * (P - 2) + 1)
        if P == 6 and o.scale == 2:
            for r in (0, 2):
                a(f"v_pk_mul_f32 {vr(vAT + r, 2)}, {vr(vAT + r, 2)}, {sr(sLN2, 2)} op_sel_hi:[1,0]")
        if P == 7:
            a(f"""
            v_cvt_pk_bf16_f32 v{vA}, v{vAT}, v{vAT + 1}
            v_cvt_pk_bf16_f32 v{vA + 1}, v{vAT + 2}, v{vAT + 3}
            v_add_u32 v{vKA}, 128, v{vKA}
            """)
        if hf:
            a(f"s_sub_u32 s{sN}, s{sN}, 1")
            a("s_cbranch_scc1 Lm_done" if P < 7 else "s_cbranch_scc0 Lm_loop")
    if o.drop:
        i0 = max(i for i, l in enumerate(a.lines) if l == "Lm_loop:")
        a.lines[i0:] = [l for l in a.lines[i0:] if not any(l.strip().startswith(d) for d in o.drop.split())]
    a("Lm_done:")
    if o.yprio:
        a("s_setprio 0")
    stamp(a, o, 11)
    a(f"""
    s_add_u32 s{sRND}, s{sRND}, {2 * SLOTS}
    s_cmp_lt_u32 s{sRND}, s{sMAX}
    s_cbranch_scc1 Lm_next
    s_cmp_gt_u32 s{sBIG}, {ENT_OWN - 64}
    s_cbranch_scc1 Lm_big
    Lm_small:
    """)
    if o.wmside == 3:
        a(f"""
        s_cmp_lt_u32 s{sWST}, 5
        s_cbranch_scc1 Lm_wfix
        Lm_wfixb:
        """)
        c = Asm()
        c(f"""
        Lm_wfix:
        s_waitcnt vmcnt(0)
        """)
        wmix_loads(c, 0, vWM)
        c(f"""
        s_mov_b32 s{sTMP}, 0x05040100
        s_mov_b32 s{sTMP + 1}, 0x07060302
        s_waitcnt vmcnt(0)
        """)
        wmix_finish(c, 0, vWM, vWM + 16)
        c("s_branch Lm_wfixb")
        a.cold += c.lines
    c = Asm()
    c(f"""
    Lm_next:
    s_waitcnt vmcnt(0) lgkmcnt(0)
    s_barrier
    s_mov_b32 s{sBIG}, 0
    v_subrev_u32 v{vREM}, {2 * SLOTS}, v{vREM}
    v_add_u32 v{vREC16}, {32 * SLOTS}, v{vREC16}
    s_branch Lm_round
    Lm_big:
    s_waitcnt lgkmcnt(0)
    s_barrier
    s_branch Lm_small
    """)
    a.cold += c.lines
    for s in range(5):
        acc = vACC + 8 * s
        if o.scale == 0:
            for r in range(0, 8, 2):
                a(f"v_pk_mul_f32 {vr(acc + r, 2)}, {vr(acc + r, 2)}, {sr(sLN2, 2)} op_sel_hi:[1,0]")
        for r in range(4):
            a(f"v_cvt_pk_bf16_f32 v{acc + r}, v{acc + r}, v{acc + 4 + r}")
        a(f"ds_write2_b32 v{vAGW}, v{acc}, v{acc + 1} offset0:0 offset1:{ROWB // 4}")
        a(f"ds_write2_b32 v{vAGW}, v{acc + 2}, v{acc + 3} offset0:{2 * ROWB // 4} offset1:{3 * ROWB // 4}")
        if s < 4:
            a(f"v_add_u32 v{vAGW}, {4 * ROWB}, v{vAGW}")
    a(f"""
    v_and_b32 v{vT + 3}, 15, v{vLANE}
    s_and_b32 s{sT}, s{sW}, 3
    s_lshl_b32 s{sTMP + 3}, s{sT}, 13
    v_add_u32 v{vT + 4}, s{sTMP + 3}, v{vL16}
    s_lshl_b32 s{sT}, s{sT}, 8
    s_lshl_b32 s{sTMP + 1}, s{sQ}, 10
    s_add_u32 s{sT}, s{sT}, s{sTMP + 1}
    v_lshl_add_u32 v{vT + 3}, v{vT + 3}, 4, s{sT}
    s_waitcnt vmcnt(0) lgkmcnt(0)
    s_barrier
    """)
    stamp(a, o, 12)

    def frag(mt, s):
        return vWR + 16 * mt + 4 * s

    def rd(mt):
        for s in range(4):
            a(f"ds_read_b128 {vr(frag(mt, s), 4)}, v{vAGR} offset:{16 * ROWB * mt + 64 * s}")
    if o.wmside == 3:
        for i in range(8):
            a(f"ds_read_b128 {vr(vWM + 4 * i, 4)}, v{vT + 4} offset:{L_WM + 1024 * i}")
        rd(0)
        a("s_waitcnt lgkmcnt(4)")
        rd(1)
        rd(2)
    else:
        for mt in range(3):
            rd(mt)
    for mt in range(5):
        a(f"v_lshl_add_u32 v{vINV + mt}, v{vINV + mt}, 18, v{vT + 3}")
    vD = vACC

    def fin_ops(mt):
        d = vD + 8 * mt
        ops = []
        for r in range(4):
            if o.scale == 1:
                ops.append(f"v_mul_f32 v{d + 2 * r}, s{sLN2}, v{d + 2 * r}")
                ops.append(f"v_mul_f32 v{d + 2 * r + 1}, s{sLN2}, v{d + 2 * r + 1}")
            ops.append(f"v_cvt_pk_bf16_f32 v{d + r}, v{d + 2 * r}, v{d + 2 * r + 1}")
        ops.append(f"buffer_store_dwordx4 {vr(d, 4)}, v{vINV + mt}, {sr(sO, 4)}, 0 offen sc1")
        return ops
    for mt in range(5):
        d = vD + 8 * mt
        pend = min(mt + 3, 5) - mt - 1
        ops = fin_ops(mt - 1) if mt else []
        n = 0
        for s in range(4):
            a(f"s_waitcnt lgkmcnt({4 * pend + 3 - s})")
            for t in range(2):
                cc = vr(d + 4 * t, 4) if s else "0"
                a(f"v_mfma_f32_16x16x32_bf16 {vr(d + 4 * t, 4)}, {vr(frag(mt, s), 4)}, {vr(vWM + 8 * s + 4 * t, 4)}, {cc}")
                n += 1
                if n >= 5:
                    for _ in range(3 if o.scale == 1 else 2):
                        if ops:
                            a(ops.pop(0))
        for op in ops:
            a(op)
        if mt + 3 < 5:
            rd(mt + 3)
    a("s_nop 4" if o.scale == 1 else "s_nop 7")
    for op in fin_ops(4):
        a(op)
    a(f"""
    s_or_b32 s{sT}, s2, s{sW}
    s_cmp_lg_u32 s{sT}, 0
    s_cbranch_scc1 Lm_noep
    v_mov_b32 v{vT}, {WS_EPOCH}
    v_mov_b32 v{vT + 1}, s{sTAG}
    s_mov_b64 exec, 1
    global_store_dword v{vT}, v{vT + 1}, {sr(sWS, 2)} sc1
    Lm_noep:
    """)
    if o.stamps and o.stamps != 5:
        a("s_waitcnt vmcnt(0)")
    stamp(a, o, 13)
    stamp_flush(a, o, 14)
    a(f"""
    Lm_end:
    s_endpgm
    """)
    a.lines += a.cold
    a(f"""
    Lm_re0:
    {"s_add_u32 s11, s11, 1" if o.stamps == 1 else ""}
    s_sub_u32 s{sSPIN}, s{sSPIN}, 1
    s_cbranch_scc0 Lm_g0
    s_endpgm
    Lm_re1:
    {"s_add_u32 s12, s12, 1" if o.stamps == 1 else ""}
    s_sub_u32 s{sSPIN}, s{sSPIN}, 1
    s_cbranch_scc1 Lm_end
    """)
    for j in range(SLOTS):
        a(f"s_mov_b64 exec, {sr(sM + 2 * j, 2)}")
        a("s_cbranch_execz Lm_rl1")
        ldg1(a, j)
    a(f"""
    Lm_rl1:
    s_mov_b64 exec, -1
    s_mov_b64 {sr(sBAD, 2)}, 0
    s_waitcnt vmcnt(0) lgkmcnt(0)
    s_branch Lm_g1
    """)
    a(".p2align 2")
    a(".type tfn_deal_table,@object")
    a("tfn_deal_table:")
    for asg in json.load(open(os.path.join(HERE, "part.json")))[str(o.bias)]:
        used = [0] * 8
        vals = []
        for w in asg:
            sl = used[w]
            used[w] += 1
            vals.append(w * 32 | (sl * 8) << 16 | ((w * 5 + sl) * 4) << 24)
        vals += [0] * 24
        for lo in range(0, 64, 8):
            a(".long " + ", ".join("%#x" % v for v in vals[lo:lo + 8]))
    a(".size tfn_deal_table, 512")


def generate(o):
    a = Asm()
    ref = open(f"cdna_kernels/{NAME}.s.ref").read().split("\n")
    for ln in ref:
        if ln.startswith("; Override"):
            break
        a.lines.append(ln)
    kerns = [(NAME + "_kernel", NV)]
    diag = o.stamps in (1, 5)
    if diag:
        a.lines.append(f"; @launch kernel={NAME}_kernel grid=(256,1,1) block=(512,1,1) lds={L_END}")
        a.lines.append("; @launch kernel=diag_end_kernel grid=(1,1,1) block=(64,1,1) lds=0")
    else:
        a.lines.append(f"; @launch grid=(256,1,1) block=(512,1,1) lds={L_END}")
    a('.amdgcn_target "amdgcn-amd-amdhsa--gfx950"')
    a(".text")
    gen_main(a, o)
    if diag:
        kerns.append(("diag_end_kernel", 8))
        a(f"""
        .p2align 8
        .globl diag_end_kernel
        .type diag_end_kernel,@function
        diag_end_kernel:
        s_memrealtime s[8:9]
        s_load_dwordx2 s[4:5], s[0:1], 80
        v_mov_b32 v1, {WS_STAMP + 2 * 0x80000}
        s_waitcnt lgkmcnt(0)
        v_mov_b32 v2, s8
        global_store_dword v1, v2, s[4:5]
        s_endpgm
        """)
    a('.section .rodata,"a"')
    for kn, v in kerns:
        a(f"""
        .p2align 6
        .amdhsa_kernel {kn}
        .amdhsa_next_free_vgpr {v}
        .amdhsa_next_free_sgpr 102
        .amdhsa_accum_offset {v}
        .amdhsa_group_segment_fixed_size 0
        .amdhsa_kernarg_size 88
        .amdhsa_user_sgpr_count 2
        .amdhsa_user_sgpr_kernarg_segment_ptr 1
        .amdhsa_system_sgpr_workgroup_id_x 1
        .amdhsa_float_denorm_mode_32 3
        .end_amdhsa_kernel
        """)
    return a.text()


if __name__ == "__main__":
    o = Opt()
    out = sys.argv[1]
    for kv in sys.argv[2:]:
        k, v = kv.split("=")
        assert hasattr(o, k), k
        setattr(o, k, int(v) if v.lstrip("-").isdigit() else v.replace("+", " "))
    open(out, "w").write(generate(o))
```

```python
import json
import os
import struct
import sys

NAME = "gather_scatter__tensor_product_equiv_tfn__graph"
HERE = os.path.dirname(os.path.abspath(__file__))
N, E = 10000, 160000
NPROD, CH = 250, 640
XBYTES = N * 1024

WS_TAB = 0
WS_REC = 0x80000
CHB = CH * 32 + 128
WS_EPOCH = WS_REC + CH * 32 + CHB
WS_STAMP = 0x800000

SLOTS = 8
HOT = 4

L_DEG, L_BIN, L_MAX, L_ZERO, L_NULL, L_MAP, L_INV = 0, 256, 512, 528, 544, 768, 1024
L_HIST, L_START = 1280, 2304
L_CG, L_WR = 3328, 3584
L_WM = 5632
L_PAY = L_WM + 32768
L_ENT = L_PAY + SLOTS * 512 * 16
ENT_OWN = 1024
L_AGG = L_ENT + ENT_OWN * 8
ROWB = 288
L_END = L_AGG + 160 * ROWB
L_STAGE = L_AGG
assert (256 * 2 * SLOTS + 8 * 16 + 64) * 8 <= L_END - L_ENT
assert L_END <= 163840


def f32(x):
    return struct.unpack("<I", struct.pack("<f", x))[0]


class Opt:
    stamps = 0
    dbgidx = 13
    cyc = 0
    D = 6
    D0 = 6
    pfa = 1
    pf2 = 4
    rot = 8
    bias = 0
    yprio = 1
    tlb = 0
    spin = 1 << 16
    drop = ""
    wmside = 1
    inl = 0
    sched = 3
    nvar = 1
    pfcb = 1
    spf0 = 0
    spf1 = 0
    spf2 = 0
    done = 0
    slp = -1
    slpn = 8
    keylate = 1
    b0b = 1
    b5 = 0
    sidelate = 1
    pollfirst = 1
    vtag = 1
    fine = 0
    thr = 0
    thrd = 1
    thrmask = 255
    pbins = ''
    sbins = ''
    stag = 8
    npre = 8
    pfb = 0
    pfbw = 4
    pfc = 0
    scale = 0
    g1pos = 2
    allfirst = 0
    ldpol = ''
    wmit = 1
    wmearly = 0
    sidefirst = 0
    g1late = 0
    g1ld = 0
    pub = 0
    ackpoll = 0
    nobr = 3


class Asm:
    def __init__(self):
        self.lines = []
        self.cold = []

    def __call__(self, s=""):
        for ln in s.split("\n"):
            ln = ln.strip()
            if not ln:
                continue
            self.lines.append(ln if ln.endswith(":") or ln.startswith(".") or ln.startswith(";") else "    " + ln)

    def text(self):
        return "\n".join(self.lines) + "\n"


def vr(a, n=1):
    return "v%d" % a if n == 1 else "v[%d:%d]" % (a, a + n - 1)


def sr(a, n=1):
    return "s%d" % a if n == 1 else "s[%d:%d]" % (a, a + n - 1)


def wave_scan(a, v, fill=()):
    fill = list(fill)
    steps = [f"{c} row_mask:0xf bank_mask:0xf bound_ctrl:1" for c in ("row_shr:1", "row_shr:2", "row_shr:4", "row_shr:8")]
    steps += ["row_bcast:15 row_mask:0xa bank_mask:0xf", "row_bcast:31 row_mask:0xc bank_mask:0xf"]
    for c in steps:
        if len(fill) >= 2:
            a(fill.pop(0))
            a(fill.pop(0))
        else:
            a("s_nop 1")
        a(f"v_add_u32_dpp v{v}, v{v}, v{v} {c}")
    for f in fill:
        a(f)


sSPIN = 3
sX, sO = 20, 24
sWS, sREC = 28, 30
sQ, sW, sRND, sMAX, sSTART, sN, sOFF, sT = 32, 33, 34, 35, 36, 37, 38, 40
sTAG, sBIG, sPF = 41, 42, 43
sRING = 44
sM = 60
sTMP = 76
sLN2 = 86
sROT = 87
sST = 88
sWST = 7
sRO2, sBAD = 6, 8

vL16, vLANE, vREC4, vREC16, vREM, vONE = 1, 2, 3, 4, 5, 6
vKA, vEA, vYA, vEINC = 7, 8, 9, 10
vKEY, vPE, vPY, vPFA = 11, 12, 13, 14
vPF = 15
vEF, vYN, vA = 16, 20, 22
vAT = 24
vE = 28
vT = 32
vWR = 40
vCG = 48
vTP = 56
vR = 72
vXB = 88
vU = 120
vACC = 152
vREC1, vTAB, vTA, vEL = 192, 193, 194, 195
vS1 = 196
vINV = 196
vYL, vAGW, vAGR = 204, 205, 206
vWM = 208
NV = 240


def stamp(a, o, idx):
    if o.stamps and o.slp == idx:
        a(f"s_sleep {o.slpn}")
    if o.stamps and (o.stamps < 3 or idx == 0 or (o.stamps == 4 and idx == o.dbgidx)):
        a(f"""
        {"s_memtime" if o.cyc else "s_memrealtime"} {sr(sTMP + 8, 2)}
        s_waitcnt lgkmcnt(0)
        s_mov_b32 s{sST + idx}, s{sTMP + 8}
        """)


def stamp_flush(a, o, n):
    if not o.stamps:
        return
    if o.stamps == 5:
        a(f"""
        s_cmp_lg_u32 s{sW}, 0
        s_cbranch_scc1 Lm_end
        s_mov_b64 exec, 1
        s_lshl_b32 s3, s2, 10
        s_add_u32 s3, s3, {WS_STAMP + 0x80000}
        v_mov_b32 v{vT}, s3
        v_mov_b32 v{vT + 1}, s{sST}
        global_store_dword v{vT}, v{vT + 1}, {sr(sWS, 2)} sc1
        """)
        return
    if o.stamps == 4:
        a(f"""
        s_sub_u32 s4, s{sST + o.dbgidx}, s{sST}
        s_min_u32 s4, s4, 4000
        s_mul_i32 s4, s4, 40
        s_mov_b32 s5, 0
        Ldbg_spin:
        s_sleep 8
        s_memrealtime s[6:7]
        s_waitcnt lgkmcnt(0)
        s_sub_u32 s6, s6, s{sST}
        s_add_u32 s5, s5, 1
        s_cmp_ge_u32 s5, 20000
        s_cbranch_scc1 Lm_end
        s_cmp_lt_u32 s6, s4
        s_cbranch_scc1 Ldbg_spin
        """)
        return
    a(f"""
    s_mov_b64 exec, -1
    s_lshl_b32 s3, s2, 4
    s_add_u32 s3, s3, s{sW}
    s_lshl_b32 s3, s3, 6
    s_add_u32 s3, s3, {WS_STAMP + 0x80000}
    v_mov_b32 v{vT}, s3
    """)
    for i in range(n):
        a(f"v_mov_b32 v{vT + 1}, s{sST + i}")
        a(f"global_store_dword v{vT}, v{vT + 1}, {sr(sWS, 2)} offset:{4 * i}")
        a("s_nop 1")
    a(f"""
    s_lshl_b32 s11, s11, 8
    s_lshl_b32 s12, s12, 16
    s_or_b32 s10, s10, s11
    s_or_b32 s10, s10, s12
    v_mov_b32 v{vT + 1}, s10
    global_store_dword v{vT}, v{vT + 1}, {sr(sWS, 2)} offset:56
    """)


def prefetch(a, k, done, hi=False, first=None):
    if not k:
        return
    if first is not None:
        lab = f"Lpf{first}_{done}"
        a(f"""
        s_sub_u32 s{sTMP + 5}, s{sW}, {first}
        s_cmp_ge_u32 s{sTMP + 5}, {k}
        s_cbranch_scc1 {lab}
        s_mul_i32 s{sTMP + 4}, s{sPF}, {k * 8192}
        s_add_u32 s{sTMP + 4}, s{sTMP + 4}, {(done - first * 8192) & 0xffffffff}
        s_add_u32 s{sTMP + 4}, s{sTMP + 4}, s{sRO2}
        v_add_u32 v{vTA}, s{sTMP + 4}, v{vPFA}
        buffer_load_dword v{vPF}, v{vTA}, {sr(sX, 4)}, 0 offen
        {lab}:
        """)
        return
    a(f"""
    s_mul_i32 s{sTMP + 4}, s{sPF}, {k * 8192}
    s_add_u32 s{sTMP + 4}, s{sTMP + 4}, {(done - ((8 - k) * 8192 if hi else 0)) & 0xffffffff}
    s_add_u32 s{sTMP + 4}, s{sTMP + 4}, s{sRO2}
    {f"s_cmp_ge_u32 s{sW}, {8 - k}" if hi else f"s_cmp_lt_u32 s{sW}, {k}"}
    s_cselect_b32 s{sTMP + 4}, s{sTMP + 4}, {XBYTES}
    v_add_u32 v{vTA}, s{sTMP + 4}, v{vPFA}
    buffer_load_dword v{vPF}, v{vTA}, {sr(sX, 4)}, 0 offen
    """)


def sprefetch(a, n, nw, w0, done_bytes):
    a(f"""
    s_mul_i32 s{sTMP + 4}, s{sPF}, {nw}
    s_add_u32 s{sTMP + 4}, s{sTMP + 4}, s{sW}
    s_mul_i32 s{sTMP + 4}, s{sTMP + 4}, {n * 128}
    s_add_u32 s{sTMP + 4}, s{sTMP + 4}, {(done_bytes - w0 * n * 128) & 0xffffffff}
    s_add_u32 s{sTMP + 4}, s{sTMP + 4}, s{sRO2}
    s_add_u32 s{sTMP + 6}, s4, s{sTMP + 4}
    s_addc_u32 s{sTMP + 7}, s5, 0
    """)
    for i in range(n):
        a(f"s_load_dword s{sRING + (i & 15)}, {sr(sTMP + 6, 2)}, {128 * i}")
    return 32 * nw * n * 128


def side_loads(a, o):
    a(f"""
    s_cmp_lg_u32 s{sW}, 7
    s_cbranch_scc1 Lside_a
    v_lshlrev_b32 v{vT}, 2, v{vLANE}
    global_load_dword v{vTP}, v{vT}, s[14:15]
    global_load_dword v{vTP + 1}, v{vT}, s[14:15] offset:256
    global_load_dword v{vTP + 2}, v{vT}, s[14:15] offset:512
    global_load_dword v{vTP + 3}, v{vT}, s[14:15] offset:768
    Lside_a:
    s_cmp_lg_u32 s{sW}, 6
    s_cbranch_scc1 Lside_b
    v_bfe_u32 v{vT}, v{vLANE}, 3, 2
    v_and_b32 v{vT + 1}, 7, v{vLANE}
    v_lshl_add_u32 v{vT}, v{vT + 1}, 3, v{vT}
    v_lshlrev_b32 v{vT}, 1, v{vT}
    global_load_ushort v{vTP}, v{vT}, s[16:17]
    global_load_ushort v{vTP + 1}, v{vT}, s[16:17] offset:8
    Lside_b:
    s_cmp_lg_u32 s{sW}, 5
    s_cbranch_scc1 Lside_t
    s_mov_b64 exec, 0xff
    s_lshl_b32 s{sTMP}, s{sPF}, 10
    v_lshl_add_u32 v{vT}, v{vLANE}, 7, s{sTMP}
    global_load_dword v{vPF}, v{vT}, s[18:19]
    s_mov_b64 exec, 7
    """)
    if o.tlb & 1:
        a(f"""
        v_mul_u32_u24 v{vT}, {102 * CHB}, v{vLANE}
        v_add_u32 v{vT}, {WS_REC + CH * 32}, v{vT}
        global_load_dword v{vPF}, v{vT}, {sr(sWS, 2)}
        """)
    a(f"""
    s_mov_b64 exec, 31
    v_lshlrev_b32 v{vT}, 21, v{vLANE}
    """)
    if o.tlb & 2:
        a(f"buffer_load_dword v{vPF}, v{vT}, {sr(sX, 4)}, 0 offen")
    if o.tlb & 4:
        a(f"buffer_load_dword v{vPF}, v{vT}, {sr(sO, 4)}, 0 offen")
    a("""
    s_mov_b64 exec, -1
    Lside_t:
    """)


def side_finish(a):
    g = vTP + 4
    out = vR
    a(f"""
    s_cmp_lg_u32 s{sW}, 7
    s_cbranch_scc1 Lside_c
    s_mov_b32 s{sT}, {f32(-1.4426950408889634):#x}
    """)
    for k in range(4):
        a(f"v_lshlrev_b32 v{g + k}, 16, v{vTP + k}")
        a(f"v_and_b32 v{g + 4 + k}, 0xffff0000, v{vTP + k}")
    for k in range(8):
        a(f"v_mul_f32 v{g + k}, s{sT}, v{g + k}")
    for h in range(2):
        for p in range(2):
            g0 = g + 4 * h + 2 * p
            hi = out + 4 * h + p
            a(f"""
            v_cvt_pk_bf16_f32 v{hi}, v{g0}, v{g0 + 1}
            v_lshlrev_b32 v{vT}, 16, v{hi}
            v_and_b32 v{vT + 1}, 0xffff0000, v{hi}
            v_sub_f32 v{vT}, v{g0}, v{vT}
            v_sub_f32 v{vT + 1}, v{g0 + 1}, v{vT + 1}
            v_cvt_pk_bf16_f32 v{hi + 2}, v{vT}, v{vT + 1}
            """)
    a(f"""
    ds_write_b128 v{vL16}, {vr(out, 4)} offset:{L_WR}
    ds_write_b128 v{vL16}, {vr(out + 4, 4)} offset:{L_WR + 1024}
    Lside_c:
    s_cmp_lg_u32 s{sW}, 6
    s_cbranch_scc1 Lside_d
    v_lshl_or_b32 v{vTP}, v{vTP + 1}, 16, v{vTP}
    v_lshlrev_b32 v{vT}, 2, v{vLANE}
    ds_write_b32 v{vT}, v{vTP} offset:{L_CG}
    v_mov_b32 v{vT}, {XBYTES}
    v_mov_b32 v{vT + 1}, {L_ZERO}
    v_mov_b32 v{vT + 2}, 0
    ds_write_b64 v{vT + 2}, {vr(vT, 2)} offset:{L_NULL}
    Lside_d:
    """)


def wmix_loads(a, vunit, raw):
    a(f"""
    v_lshrrev_b32 v{vT}, 5, v{vunit}
    v_and_b32 v{vT + 1}, 31, v{vunit}
    v_lshlrev_b32 v{vT}, 11, v{vT}
    v_lshl_add_u32 v{vT}, v{vT + 1}, 3, v{vT}
    """)
    for j in range(8):
        a(f"global_load_dwordx2 {vr(raw + 2 * j, 2)}, v{vT}, s[18:19] offset:{256 * j}")


def wmix_finish(a, vunit, raw, frag):
    a(f"""
    v_bfe_u32 v{vT}, v{vunit}, 3, 2
    v_lshrrev_b32 v{vT + 1}, 7, v{vunit}
    v_lshlrev_b32 v{vT}, 13, v{vT}
    v_lshl_add_u32 v{vT}, v{vT + 1}, 11, v{vT}
    v_bfe_u32 v{vT + 1}, v{vunit}, 5, 2
    v_lshl_add_u32 v{vT}, v{vT + 1}, 8, v{vT}
    v_and_b32 v{vT + 1}, 7, v{vunit}
    v_lshl_add_u32 v{vT}, v{vT + 1}, 5, v{vT}
    """)
    for nn in range(2):
        for t in range(2):
            f = frag + 4 * (2 * nn + t)
            for jj in range(4):
                a(f"v_perm_b32 v{f + jj}, v{raw + 2 * (2 * jj + 1) + nn}, v{raw + 2 * (2 * jj) + nn}, s{sTMP + t}")
            a(f"ds_write_b128 v{vT}, {vr(f, 4)} offset:{L_WM + 1024 * t + 16 * nn}")


WRAW = (vU, vU + 16, vWM)
WUNIT = (vKEY, vPE, vPY)
WFRAG = vWM + 16


def g1_stores(a, t):
    a(f"""
    s_cmp_eq_u32 s{sBIG}, 0
    s_cbranch_scc1 Lg1{t}
    global_store_dwordx4 v{vKA}, {vr(vS1, 4)}, {sr(sREC, 2)} sc1
    s_cmp_eq_u32 s{sBIG}, 1
    s_cbranch_scc1 Lg1{t}
    global_store_dwordx4 v{vEA}, {vr(vS1 + 4, 4)}, {sr(sREC, 2)} sc1
    Lg1{t}:
    """)


def phase_a(a, o):
    vD, vS, vY, vF = vXB, vXB + 2, vXB + 4, vXB + 8
    vQ, vRK, vKK, vC, vSC, vTG = vXB + 12, vXB + 14, vXB + 16, vXB + 20, vXB + 24, vXB + 28
    rest = f"""
    global_load_dwordx2 {vr(vS, 2)}, v{vT + 3}, s[6:7] {o.ldpol}
    global_load_dwordx4 {vr(vY, 4)}, v{vT + 4}, s[10:11] {o.ldpol}
    global_load_dwordx4 {vr(vF, 4)}, v{vT + 4}, s[12:13] {o.ldpol}
    """
    a(f"""
    s_cmp_ge_u32 s2, 256
    s_cbranch_scc1 Lm_end
    """)
    stamp(a, o, 0)
    a(f"""
    s_load_dwordx16 s[4:19], s[0:1], 0
    s_load_dwordx2 {sr(sWS, 2)}, s[0:1], 80
    s_load_dwordx2 {sr(sO, 2)}, s[0:1], 64
    s_getpc_b64 {sr(sTMP + 2, 2)}
    La_pc:
    s_lshr_b32 s{sPF}, s2, 3
    s_mul_i32 s{sTMP}, s{sPF}, 512
    s_sub_u32 s{sTMP}, s{sTMP}, {508 * 128}
    v_lshl_add_u32 v{vT}, v0, 7, s{sTMP}
    v_min_u32 v{vT}, tfn_deal_table+{512 * o.nvar - 4}-La_pc, v{vT}
    v_cmp_lt_u32 vcc, 507, v0
    s_and_saveexec_b64 {sr(sTMP + 4, 2)}, vcc
    s_cbranch_execz La_notouch
    global_load_dword v{vPF}, v{vT}, {sr(sTMP + 2, 2)}
    La_notouch:
    s_mov_b64 exec, -1
    v_lshrrev_b32 v{vT}, 6, v0
    v_and_b32 v{vLANE}, 63, v0
    v_readfirstlane_b32 s{sW}, v{vT}
    v_mov_b32 v{vT}, 0
    v_mov_b32 v{vT + 1}, 0
    v_lshlrev_b32 v{vT + 7}, 3, v0
    ds_write_b64 v{vT + 7}, {vr(vT, 2)}
    v_lshlrev_b32 v{vL16}, 4, v{vLANE}
    v_mov_b32 v{vONE}, 1
    s_mul_i32 s3, s2, {CH * 4}
    v_add_u32 v{vT + 3}, s3, v{vT + 7}
    v_lshlrev_b32 v{vT + 4}, 1, v{vT + 3}
    s_and_b32 s{sQ}, s2, 7
    s_lshl_b32 s{sQ}, s{sQ}, 5
    s_or_b32 s{sQ}, s{sQ}, s{sPF}
    v_lshlrev_b32 v{vPFA}, 7, v0
    s_mov_b32 s{sX + 2}, {XBYTES}
    s_mov_b32 s{sX + 3}, 0x20000
    s_mov_b32 s{sO + 2}, {XBYTES}
    s_mov_b32 s{sO + 3}, 0x20000
    s_mov_b32 s{sRND}, 0
    v_mov_b32 v{vEL}, {WS_EPOCH}
    s_mov_b32 s{sLN2}, {f32(-0.6931471805599453):#x}
    s_lshl_b32 s{sT}, s2, 11
    v_lshl_add_u32 v{vT + 6}, v0, 4, s{sT}
    s_cmp_lt_u32 s2, {NPROD}
    s_cselect_b32 s{sT}, 5, 0
    s_cmp_lt_u32 s{sW}, s{sT}
    s_cselect_b32 s{sBIG}, 1, 0
    s_waitcnt lgkmcnt(0)
    s_cbranch_scc0 La_noload
    global_load_dwordx2 {vr(vD, 2)}, v{vT + 3}, s[8:9] {o.ldpol}
    {rest if o.allfirst else ""}
    La_noload:
    s_add_u32 s{sREC}, s{sWS}, {WS_REC}
    s_addc_u32 s{sREC + 1}, s{sWS + 1}, 0
    {f"s_load_dword s{sTAG}, {sr(sREC, 2)}, {WS_EPOCH - WS_REC}" if not o.vtag else f"global_load_dword v{vEL if o.wmside else vPY}, v{vEL}, {sr(sWS, 2)} sc1"}
    s_mov_b32 s{sX}, s4
    s_and_b32 s{sX + 1}, s5, 0xffff
    s_and_b32 s{sO + 1}, s{sO + 1}, 0xffff
    s_barrier
    s_cmp_eq_u32 s{sBIG}, 0
    s_cbranch_scc1 La_other
    {rest if not o.allfirst else ""}
    {"s_barrier" if o.b0b else ""}
    """)
    here = len(a.lines)

    def rot_setup():
        a(f"""
        s_and_b32 s{sRO2}, s2, {o.rot - 1 if o.rot else 0}
        s_mul_i32 s{sRO2}, s{sRO2}, {8 // o.rot if o.rot else 0}
        s_sub_u32 s{sROT}, 8, s{sRO2}
        s_lshl_b32 s{sROT}, s{sROT}, {5 if o.sched else 6}
        s_mul_i32 s{sRO2}, s{sRO2}, {1261 * 1024}
        """)
    rot_setup()
    for i in range(40):
        a(f"v_mov_b32 v{vACC + i}, 0")
    a(f"s_waitcnt vmcnt({4 if o.vtag else 3})")
    stamp(a, o, 1)
    for k in range(2):
        a(f"""
        v_and_b32 v{vQ + k}, 255, v{vD + k}
        v_lshlrev_b32 v{vQ + k}, 2, v{vQ + k}
        ds_add_rtn_u32 v{vRK + k}, v{vQ + k}, v{vONE} offset:{L_HIST}
        """)
    a(f"""
    v_bfe_u32 v{vKK}, v{vD}, 8, 6
    v_bfe_u32 v{vKK + 2}, v{vD + 1}, 8, 6
    s_waitcnt lgkmcnt(0)
    s_barrier
    """)
    if o.fine:
        stamp(a, o, 7)
    a(f"""
    ds_read_b128 {vr(vC, 4)}, v{vL16} offset:{L_HIST}
    ds_read_b64 {vr(vE, 2)}, v{vT + 7} offset:{L_HIST}
    {"s_waitcnt vmcnt(3)" if o.vtag else ""}
    {f"v_readfirstlane_b32 s{sTAG}, v{vEL if o.wmside else vPY}" if o.vtag else ""}
    s_add_u32 s{sTAG}, s{sTAG}, 0x9e3779b9
    v_mov_b32 v{vTG}, s{sTAG}
    v_mov_b32 v{vTG + 1}, s{sTAG}
    v_mov_b32 v{vKK + 1}, s{sTAG}
    v_mov_b32 v{vKK + 3}, s{sTAG}
    v_mov_b32 v{vAT + 1}, s{sTAG}
    v_mov_b32 v{vAT + 3}, s{sTAG}
    s_mov_b32 s{sT}, {L_STAGE}
    s_waitcnt {'vmcnt(2) ' if not o.keylate else ''}lgkmcnt(1)
    v_add_u32 v{vT}, v{vC}, v{vC + 1}
    v_add_u32 v{vT + 1}, v{vT}, v{vC + 2}
    v_add_u32 v{vT + 2}, v{vT + 1}, v{vC + 3}
    v_mov_b32 v{vT + 3}, v{vT + 2}
    """)
    fill = []
    ops = ("v_mul_u32_u24 v{t}, 13, v{s}", "v_lshrrev_b32 v{t}, 14, v{t}", "v_min_u32 v{t}, 7, v{t}",
           "v_lshl_or_b32 v{k}, v{t}, 6, v{k}", "v_lshl_or_b32 v{k}, v{s}, 10, v{k}")
    if o.sched:
        ops = ("v_mul_u32_u24 v{t}, 13, v{s}", "v_lshrrev_b32 v{t}, 11, v{t}",
               "v_lshl_or_b32 v{k}, v{s}, 10, v{k}", "v_lshl_or_b32 v{k}, v{t}, 24, v{k}")
    for op in ops:
        for k in range(2):
            fill.append(op.format(t=vT + 4 + k, s=vS + k, k=vKK + 2 * k))
    wave_scan(a, vT + 3, fill if not o.keylate else ())
    a(f"""
    v_sub_u32 v{vSC}, v{vT + 3}, v{vT + 2}
    v_add_u32 v{vSC + 1}, v{vSC}, v{vC}
    v_add_u32 v{vSC + 2}, v{vSC}, v{vT}
    v_add_u32 v{vSC + 3}, v{vSC}, v{vT + 1}
    ds_write_b128 v{vL16}, {vr(vSC, 4)} offset:{L_START}
    ds_read_b64 {vr(vE + 2, 2)}, v{vT + 7} offset:{L_START}
    ds_read_b32 v{vT}, v{vQ} offset:{L_START}
    ds_read_b32 v{vT + 1}, v{vQ + 1} offset:{L_START}
    """)
    if o.fine:
        stamp(a, o, 8)
    a(f"""
    s_cmp_ge_u32 s{sW}, 2
    s_cbranch_scc1 La_notab
    s_waitcnt lgkmcnt(2)
    v_lshl_or_b32 v{vAT}, v{vE}, 16, v{vE + 2}
    v_lshl_or_b32 v{vAT + 2}, v{vE + 1}, 16, v{vE + 3}
    {f"global_store_dwordx4 v{vT + 6}, {vr(vAT, 4)}, {sr(sWS, 2)} sc1" if o.pub == 0 else f"v_mov_b32 v{vTA}, v{vT + 6}"}
    s_waitcnt vmcnt({1 if o.pub == 0 else 0}) lgkmcnt(0)
    s_branch La_tabdone
    La_notab:
    s_waitcnt vmcnt(0) lgkmcnt(0)
    La_tabdone:
    """)
    if o.keylate:
        for f in fill:
            a(f)
    if o.fine:
        stamp(a, o, 9)
    for k in range(2):
        a(f"""
        v_add_u32 v{vRK + k}, v{vRK + k}, v{vT + k}
        v_lshl_add_u32 v{vT + 2}, v{vRK + k}, 4, s{sT}
        v_add_u32 v{vT + 3}, {CH * 16}, v{vT + 2}
        ds_write2_b64 v{vT + 2}, {vr(vKK + 2 * k, 2)}, {vr(vY + 2 * k, 2)} offset0:0 offset1:1
        ds_write2_b64 v{vT + 3}, {vr(vF + 2 * k, 2)}, {vr(vTG, 2)} offset0:0 offset1:1
        """)
    c = Asm()
    c("La_other:")
    if o.b0b:
        c("s_barrier")
    side_loads(c, o)
    save, a_lines = a.lines, c.lines
    a.lines = a_lines
    rot_setup()
    prefetch(a, o.pfa, 0, hi=True)
    o.done = o.pfa * 262144
    for i in range(40):
        a(f"v_mov_b32 v{vACC + i}, 0")
    a(f"""
    s_waitcnt lgkmcnt(0)
    {f"s_add_u32 s{sTAG}, s{sTAG}, 0x9e3779b9" if not o.vtag else ""}
    s_cmp_ge_u32 s{sW}, 5
    s_cbranch_scc1 La_notab2
    {"s_waitcnt vmcnt(0)" if o.vtag else ""}
    {f"v_readfirstlane_b32 s{sTAG}, v{vEL if o.wmside else vPY}" if o.vtag else ""}
    {f"s_add_u32 s{sTAG}, s{sTAG}, 0x9e3779b9" if o.vtag else ""}
    s_cmp_ge_u32 s{sW}, 2
    s_cbranch_scc1 La_notab2
    v_mov_b32 v{vKK}, 0
    v_mov_b32 v{vKK + 1}, s{sTAG}
    v_mov_b32 v{vKK + 2}, 0
    v_mov_b32 v{vKK + 3}, s{sTAG}
    global_store_dwordx4 v{vT + 6}, {vr(vKK, 4)}, {sr(sWS, 2)} sc1
    La_notab2:
    s_cmp_lt_u32 s{sW}, 5
    s_cbranch_scc0 La_side
    s_barrier
    s_branch La_join
    La_side:
    v_subrev_u32 v{WUNIT[0]}, 320, v0
    v_subrev_u32 v{WUNIT[1]}, 128, v0
    {f"v_add_u32 v{WUNIT[2]}, 64, v0" if o.wmside else ""}
    """)
    early = o.wmearly if o.wmside == 1 else 0
    if o.spf0:
        o.done += sprefetch(a, o.spf0, 3, 5, o.done)

    def wm_round(r):
        if r == 2:
            a(f"""
            s_cmp_eq_u32 s{sW}, 7
            s_cbranch_scc1 La_wm2
            """)
        wmix_loads(a, WUNIT[r], WRAW[r])
        if r == 2:
            a("La_wm2:")
    for r in range(early):
        wm_round(r)
    a("s_barrier")
    if not o.sidelate:
        young = (1 if o.pfa else 0) + 8 * min(early, 2)
        a(f"""
        s_cmp_eq_u32 s{sW}, 5
        s_cbranch_scc1 La_now5
        s_waitcnt vmcnt({young})
        La_now5:
        """)
    if o.wmside == 1:
        for r in range(early, 3):
            wm_round(r)
    if not o.sidelate:
        side_finish(a)
    a("s_branch La_join")
    if o.inl:
        save[here:here] = ["    s_branch La_prod"] + a.lines + ["La_prod:"]
    else:
        a.cold += a.lines
    a.lines = save
    a(f"""
    La_join:
    """)
    if o.fine:
        stamp(a, o, 10)
    a(f"""
    s_mov_b32 s{sT}, {L_STAGE}
    v_lshl_add_u32 v{vT + 4}, v0, 4, s{sT}
    s_mul_i32 s{sT}, s2, {CHB}
    v_lshl_add_u32 v{vT + 5}, v0, 4, s{sT}
    v_add_u32 v{vT + 6}, 8192, v{vT + 5}
    v_add_u32 v{vKA}, {CH * 16}, v{vT + 5}
    v_add_u32 v{vEA}, {CH * 16 + 8192}, v{vT + 5}
    s_cmp_lt_u32 s{sW}, 2
    s_cselect_b32 s{sBIG}, 2, 1
    s_cmp_lt_u32 s2, {NPROD}
    s_cselect_b32 s{sBIG}, s{sBIG}, 0
    s_waitcnt lgkmcnt(0)
    s_barrier
    """)
    stamp(a, o, 2)
    g1a = f"global_store_dwordx4 v{vKA}, {vr(vS1, 4)}, {sr(sREC, 2)} sc1" if not o.g1pos else ""
    g1b = f"global_store_dwordx4 v{vEA}, {vr(vS1 + 4, 4)}, {sr(sREC, 2)} sc1" if not o.g1pos else ""
    a(f"""
    s_cmp_ge_u32 s2, {NPROD}
    s_cbranch_scc1 La_nostore
    ds_read_b128 {vr(vY, 4)}, v{vT + 4}
    ds_read_b128 {vr(vS1, 4)}, v{vT + 4} offset:{CH * 16}
    s_cmp_lt_u32 s{sW}, 2
    s_cbranch_scc1 La_four
    s_waitcnt lgkmcnt(1)
    global_store_dwordx4 v{vT + 5}, {vr(vY, 4)}, {sr(sREC, 2)} sc1
    s_waitcnt lgkmcnt(0)
    {g1a}
    s_branch La_nostore
    La_four:
    ds_read_b128 {vr(vF, 4)}, v{vT + 4} offset:8192
    ds_read_b128 {vr(vS1 + 4, 4)}, v{vT + 4} offset:{CH * 16 + 8192}
    s_waitcnt lgkmcnt(3)
    global_store_dwordx4 v{vT + 5}, {vr(vY, 4)}, {sr(sREC, 2)} sc1
    s_waitcnt lgkmcnt(1)
    global_store_dwordx4 v{vT + 6}, {vr(vF, 4)}, {sr(sREC, 2)} sc1
    {g1a}
    s_waitcnt lgkmcnt(0)
    {g1b}
    """)
    if o.pub == 2:
        a(f"""
        s_cmp_ge_u32 s{sW}, 2
        s_cbranch_scc1 La_nostore
        global_store_dwordx4 v{vTA}, {vr(vAT, 4)}, {sr(sWS, 2)} sc1
        """)
    a(f"""
    La_nostore:
    """)
    if o.g1pos == 2 and not o.g1late:
        a("s_barrier")
        g1_stores(a, "a")
    if o.spf1:
        a("s_waitcnt lgkmcnt(0)")
        o.done += sprefetch(a, o.spf1, 8, 0, o.done)
    if o.g1pos == 3:
        a(f"""
        s_lshl_b32 s{sT}, s{sQ}, 3
        v_lshrrev_b32 v{vT + 2}, 1, v0
        v_lshl_add_u32 v{vT + 3}, v{vT + 2}, 11, s{sT}
        s_barrier
        global_load_dwordx2 {vr(vE, 2)}, v{vT + 3}, {sr(sWS, 2)} sc1
        """)
        g1_stores(a, "a")
    stamp(a, o, 3)


def gen_main(a, o):
    kn = NAME + "_kernel"
    D, D0 = o.D, min(o.D, o.D0)
    a(".p2align 8")
    a(f".globl {kn}")
    a(f".type {kn},@function")
    a(f"{kn}:")
    vG0 = vXB
    vG1 = vTP
    vBA = vU + 8
    vRK = vU + 16
    vMP = vU + 24
    vEN = vE
    vK = [vG0 + 4 * j for j in range(SLOTS)]
    phase_a(a, o)
    a(f"""
    s_mov_b32 s{sTMP}, 0x05040100
    s_mov_b32 s{sTMP + 1}, 0x07060302
    """)
    def side_work(young):
        a(f"""
        s_cmp_ge_u32 s{sW}, 5
        s_cbranch_scc1 Lm_wmside
        Lm_wmback:
        """)
        c = Asm()
        c(f"""
        Lm_wmside:
        s_waitcnt vmcnt({young + (1 if o.g1late else 2)})
        s_cmp_lt_u32 s2, {NPROD}
        s_cbranch_scc1 Lm_wmgo
        s_waitcnt vmcnt({young})
        Lm_wmgo:
        {f"v_readfirstlane_b32 s{sTAG}, v{vEL if o.wmside else vPY}" if o.vtag else ""}
        {f"s_add_u32 s{sTAG}, s{sTAG}, 0x9e3779b9" if o.vtag else ""}
        """)
        wmix_finish(c, WUNIT[0], WRAW[0], WFRAG)
        wmix_finish(c, WUNIT[1], WRAW[1], WRAW[0])
        if o.sidelate:
            side_finish(c)
        c(f"""
        s_cmp_eq_u32 s{sW}, 7
        s_cbranch_scc1 Lm_wmback
        """)
        wmix_finish(c, WUNIT[2], WRAW[2], WRAW[1])
        c("s_branch Lm_wmback")
        a.cold += c.lines
    if o.wmside == 1:
        if not o.pollfirst:
            side_work(0)
    elif o.wmside == 0:
        wmix_loads(a, 0, vWM)
    else:
        a(f"s_mov_b32 s{sWST}, {3 - o.wmit}")
    a(f"""
    s_getpc_b64 {sr(sTMP + 2, 2)}
    Lm_pc:
    s_cmp_lt_u32 s{sQ}, {N - 39 * 256}
    s_cselect_b32 s{sT}, 256, 0
    s_and_b32 s{sTMP + 4}, s{sPF}, {o.nvar - 1}
    s_lshl_b32 s{sTMP + 4}, s{sTMP + 4}, 9
    s_add_u32 s{sT}, s{sT}, s{sTMP + 4}
    s_add_u32 s{sT}, s{sT}, tfn_deal_table-Lm_pc
    v_lshl_add_u32 v{vT}, v{vLANE}, 2, s{sT}
    global_load_dword v{vTAB}, v{vT}, {sr(sTMP + 2, 2)}
    s_lshl_b32 s{sT}, s{sQ}, 3
    v_lshrrev_b32 v{vT + 2}, 1, v0
    v_lshl_add_u32 v{vT + 3}, v{vT + 2}, 11, s{sT}
    {f"global_load_dwordx2 {vr(vEN, 2)}, v{vT + 3}, {sr(sWS, 2)} sc1" if not o.ackpoll and o.g1pos != 3 else ""}
    v_mul_u32_u24 v{vREC16}, {CHB}, v{vT + 2}
    """)
    if o.wmside == 1 and o.pollfirst:
        side_work(2)
    a(f"""
    v_and_b32 v{vT + 4}, 1, v0
    v_mov_b32 v{vT + 5}, {L_MAX}
    v_lshlrev_b32 v{vREC4}, 4, v0
    v_add_u32 v{vREC4}, {L_PAY}, v{vREC4}
    s_mov_b32 s{sSPIN}, {o.spin}
    {f"s_mov_b32 s{sWST}, 0" if o.pfc else ""}
    {"s_mov_b32 s10, 0" if o.stamps == 1 else ""}
    {"s_mov_b32 s11, 0" if o.stamps == 1 else ""}
    {"s_mov_b32 s12, 0" if o.stamps == 1 else ""}
    v_lshrrev_b32 v{vYL}, 2, v{vLANE}
    v_lshlrev_b32 v{vYL}, 3, v{vYL}
    v_bfe_u32 v{vT}, v{vLANE}, 3, 2
    v_and_b32 v{vT + 1}, 3, v{vLANE}
    v_lshl_add_u32 v{vT}, v{vT}, 2, v{vT + 1}
    v_lshlrev_b32 v{vEL}, 3, v{vT}
    s_mov_b32 s{sTMP + 2}, 0x0f0f0f0f
    s_mov_b32 s{sTMP + 3}, 0xf0f0f0f0
    v_mov_b32 v{vT}, 128
    v_cndmask_b32 v{vEINC}, 0, v{vT}, {sr(sTMP + 2, 2)}
    s_mul_i32 s{sT}, s{sW}, {20 * ROWB}
    s_add_u32 s{sT}, s{sT}, {L_AGG}
    v_lshl_add_u32 v{vAGW}, v{vLANE}, 2, s{sT}
    s_lshr_b32 s{sT}, s{sW}, 2
    s_mul_i32 s{sT}, s{sT}, {80 * ROWB}
    s_add_u32 s{sT}, s{sT}, {L_AGG}
    v_and_b32 v{vT}, 15, v{vLANE}
    v_mul_u32_u24 v{vT}, {ROWB}, v{vT}
    v_and_b32 v{vT + 1}, 48, v{vLANE}
    v_add3_u32 v{vAGR}, v{vT}, v{vT + 1}, s{sT}
    {f"s_waitcnt vmcnt({o.ackpoll - 1})" if o.ackpoll else ""}
    {f"global_load_dwordx2 {vr(vEN, 2)}, v{vT + 3}, {sr(sWS, 2)} sc1" if o.ackpoll else ""}
    """)
    if o.g1pos == 1:
        g1_stores(a, "b")
    if o.g1pos == 3:
        a(f"""
        s_waitcnt vmcnt(3)
        s_cmp_eq_u32 s{sBIG}, 2
        s_cbranch_scc1 Lm_poll2
        s_waitcnt vmcnt(2)
        s_cmp_eq_u32 s{sBIG}, 1
        s_cbranch_scc1 Lm_poll2
        """)
    a(f"""
    """)
    if o.wmside == 0 and o.vtag:
        a(f"""
        s_cmp_lt_u32 s{sW}, 5
        s_cbranch_scc1 Lm_poll
        s_waitcnt vmcnt(0)
        v_readfirstlane_b32 s{sTAG}, v{vPY}
        s_add_u32 s{sTAG}, s{sTAG}, 0x9e3779b9
        """)
    a(f"""
    Lm_poll:
    s_waitcnt vmcnt(0)
    Lm_poll2:
    v_cmp_ne_u32 vcc, s{sTAG}, v{vEN + 1}
    s_cbranch_vccnz Lm_repoll
    s_mov_b64 exec, -1
    """)
    c = Asm()
    c(f"""
    Lm_repoll:
    {"s_add_u32 s10, s10, 1" if o.stamps == 1 else ""}
    s_sub_u32 s{sSPIN}, s{sSPIN}, 1
    s_cbranch_scc1 Lm_end
    s_mov_b64 exec, vcc
    global_load_dwordx2 {vr(vEN, 2)}, v{vT + 3}, {sr(sWS, 2)} sc1
    s_branch Lm_poll
    """)
    a.cold = c.lines + a.cold
    stamp(a, o, 4)
    if o.spf2:
        o.done += sprefetch(a, o.spf2, 8, 0, o.done)
    a(f"""
    v_and_b32 v{vT}, 0xffff, v{vEN}
    v_lshrrev_b32 v{vT + 1}, 16, v{vEN}
    v_add_u32 v{vT}, v{vT}, v{vT + 4}
    v_sub_u32 v{vREM}, v{vT + 1}, v{vT + 4}
    v_lshl_add_u32 v{vREC16}, v{vT}, 4, v{vREC16}
    Lm_round:
    """)
    for j in range(HOT + 1):
        a(f"v_cmp_lt_i32 {sr(sM + 2 * j, 2)}, {2 * j}, v{vREM}")

    def per_slot(label, body, full=False):
        for j in range(HOT):
            if not full:
                a(f"s_mov_b64 exec, {sr(sM + 2 * j, 2)}")
                if j >= o.nobr:
                    a(f"s_cbranch_execz {label}")
            body(a, j)
        a(f"s_cmp_lg_u64 {sr(sM + 2 * HOT, 2)}, 0")
        a(f"s_cbranch_scc1 {label}x")
        a(f"{label}:")
        if not full:
            a("s_mov_b64 exec, -1")
        c = Asm()
        c(f"{label}x:")
        for j in range(HOT, SLOTS):
            if not full:
                c(f"s_mov_b64 exec, {sr(sM + 2 * j, 2)}")
                c(f"s_cbranch_execz {label}")
            body(c, j)
        c(f"s_branch {label}")
        a.cold += c.lines

    def ldg0(b, j):
        if j == HOT:
            b("s_mov_b64 exec, -1")
            for jj in range(HOT + 1, SLOTS):
                b(f"v_cmp_lt_i32 {sr(sM + 2 * jj, 2)}, {2 * jj}, v{vREM}")
            b(f"s_mov_b64 exec, {sr(sM + 2 * j, 2)}")
        b(f"global_load_dwordx4 {vr(vG0 + 4 * j, 4)}, v{vREC16}, {sr(sREC, 2)} offset:{32 * j} sc1")

    def ldg1(b, j):
        b(f"global_load_dwordx3 {vr(vG1 + 4 * j, 3)}, v{vREC1}, {sr(sREC, 2)} offset:{32 * j} sc1")

    a("Lm_g0:")
    per_slot("Lm_ld", ldg0)
    a(f"""
    v_add_u32 v{vREC1}, {CH * 16}, v{vREC16}
    s_cmp_lg_u32 s{sRND}, 0
    s_cbranch_scc1 Lm_nomax
    """)
    if not o.wmside:
        wmix_finish(a, 0, vWM, vWM + 16)
        if o.sidelate:
            a(f"""
            s_cmp_ge_u32 s{sW}, 6
            s_cbranch_scc1 Lm_sf
            Lm_sfb:
            """)
            c = Asm()
            c("Lm_sf:")
            side_finish(c)
            c("s_branch Lm_sfb")
            a.cold += c.lines
    a(f"""
    v_add_u32 v{vT + 1}, v{vREM}, v{vT + 4}
    v_cmp_lt_u32 vcc, {2 * SLOTS}, v{vT + 1}
    s_and_saveexec_b64 {sr(sTMP + 2, 2)}, vcc
    ds_max_u32 v{vT + 5}, v{vT + 1}
    s_mov_b64 exec, -1
    Lm_nomax:
    s_mov_b64 {sr(sBAD, 2)}, 0
    """)
    if o.g1late:
        a(f"""
        s_cmp_eq_u32 s{sBIG}, 0
        s_cbranch_scc1 Lm_s0
        global_store_dwordx4 v{vKA}, {vr(vS1, 4)}, {sr(sREC, 2)} sc1
        s_cmp_eq_u32 s{sBIG}, 2
        s_cbranch_scc1 Lm_s2
        s_waitcnt vmcnt(1)
        Lm_s1:
        s_mov_b32 s{sBIG}, 0
        """)
        c = Asm()
        c(f"""
        Lm_s0:
        s_waitcnt vmcnt(0)
        s_branch Lm_s1
        Lm_s2:
        global_store_dwordx4 v{vEA}, {vr(vS1 + 4, 4)}, {sr(sREC, 2)} sc1
        s_waitcnt vmcnt(2)
        s_branch Lm_s1
        """)
        a.cold = c.lines + a.cold
    elif o.pfc:
        a(f"""
        s_cmp_lg_u32 s{sWST}, 0
        s_cbranch_scc1 Lm_pfc0
        s_mov_b32 s{sWST}, 1
        {"s_barrier" if o.pfcb else ""}
        """)
        prefetch(a, o.pfc, o.done)
        o.done += o.pfc * 262144
        a("""
        s_waitcnt vmcnt(1)
        Lm_pfc1:
        """)
        a.cold += ["Lm_pfc0:", "    s_waitcnt vmcnt(0)", "    s_branch Lm_pfc1"]
    else:
        a("s_waitcnt vmcnt(0)")

    def ck0(b, j):
        b(f"v_cmp_ne_u32 vcc, s{sTAG}, v{vG0 + 4 * j + 1}")
        b(f"v_and_b32 v{vBA + j}, 63, v{vK[j]}")
        b(f"v_lshlrev_b32 v{vBA + j}, 2, v{vBA + j}")
        b(f"s_or_b64 {sr(sBAD, 2)}, {sr(sBAD, 2)}, vcc")
    per_slot("Lm_ck0", ck0)
    a(f"""
    s_cmp_lg_u64 {sr(sBAD, 2)}, 0
    s_cbranch_scc1 Lm_re0
    """)
    stamp(a, o, 5)

    def hist1(b, j):
        b(f"ds_add_u32 v{vBA + j}, v{vONE} offset:{L_DEG}")
        if o.g1ld == 0:
            ldg1(b, j)
        b(f"ds_write_b64 v{vREC4}, {vr(vG0 + 4 * j + 2, 2)} offset:{8192 * j}")
        if o.sched:
            b(f"v_lshrrev_b32 v{vRK + j}, 22, v{vK[j]}")
            b(f"v_add_u32 v{vRK + j}, s{sROT}, v{vRK + j}")
        elif o.rot:
            b(f"v_add_u32 v{vRK + j}, s{sROT}, v{vK[j]}")
            b(f"v_bfe_u32 v{vRK + j}, v{vRK + j}, 6, 3")
        else:
            b(f"v_bfe_u32 v{vRK + j}, v{vK[j]}, 6, 3")
        b(f"v_and_b32 v{vK[j]}, 0x00fffc00, v{vK[j]}")
    per_slot("Lm_h1", hist1)
    if o.sched:
        per_slot("Lm_sb", lambda b, j: b(f"ds_bpermute_b32 v{vRK + j}, v{vRK + j}, v{vTAB}"), full=True)
    a(f"""
    s_cmp_lg_u32 s{sRND}, 0
    s_cbranch_scc1 {"Lm_binsx" if o.g1ld in (1, 3) else "Lm_bins"}
    v_lshlrev_b32 v{vT + 1}, 2, v{vLANE}
    s_mul_i32 s{sT}, s{sW}, 5
    v_sub_u32 v{vT + 2}, 63, v{vLANE}
    v_add_u32 v{vT + 6}, s{sT}, v{vLANE}
    v_lshlrev_b32 v{vT + 4}, 2, v{vT + 6}
    v_and_b32 v{vT + 7}, 3, v0
    v_lshlrev_b32 v{vT + 7}, 5, v{vT + 7}
    s_add_u32 s{sTMP}, s{sT}, 1
    s_add_u32 s{sTMP + 1}, s{sT}, 2
    s_add_u32 s{sTMP + 2}, s{sT}, 3
    s_add_u32 s{sTMP + 3}, s{sT}, 4
    s_waitcnt lgkmcnt(0)
    s_barrier
    """)
    stamp(a, o, 6)
    a(f"""
    ds_read_b32 v{vT}, v{vT + 1} offset:{L_DEG}
    ds_read_b32 v{vT + 5}, v{vT + 5}
    """)
    if o.g1ld in (0, 3):
        prefetch(a, o.pf2, o.done)
    a(f"""
    s_waitcnt lgkmcnt(0)
    v_lshl_or_b32 v{vT}, v{vT}, 6, v{vT + 2}
    v_readfirstlane_b32 s{sMAX}, v{vT + 5}
    v_readlane_b32 s{sRING}, v{vT}, s{sT}
    v_readlane_b32 s{sRING + 1}, v{vT}, s{sTMP}
    v_readlane_b32 s{sRING + 2}, v{vT}, s{sTMP + 1}
    v_readlane_b32 s{sRING + 3}, v{vT}, s{sTMP + 2}
    v_readlane_b32 s{sRING + 4}, v{vT}, s{sTMP + 3}
    """)
    for k in range(5):
        a(f"v_cmp_lt_u32 {sr(sTMP + 2 * k, 2)}, s{sRING + k}, v{vT}")
    for k in range(5):
        a(f"s_bcnt1_i32_b64 s{sRING + 8 + k}, {sr(sTMP + 2 * k, 2)}")
    for k in range(5):
        a(f"v_readlane_b32 s{sRING + k}, v{vTAB}, s{sRING + 8 + k}")
    for k in range(5):
        a(f"v_writelane_b32 v{vT + 2}, s{sRING + k}, {k}")
    a(f"""
    s_mov_b64 exec, 31
    v_lshrrev_b32 v{vT + 3}, 24, v{vT + 2}
    ds_write_b32 v{vT + 4}, v{vT + 2} offset:{L_MAP}
    ds_write_b32 v{vT + 3}, v{vT + 6} offset:{L_INV}
    s_mov_b64 exec, -1
    ds_read_b128 {vr(vWR, 4)}, v{vL16} offset:{L_WR}
    ds_read_b128 {vr(vWR + 4, 4)}, v{vL16} offset:{L_WR + 1024}
    ds_read_b128 {vr(vCG, 4)}, v{vT + 7} offset:{L_CG}
    ds_read_b128 {vr(vCG + 4, 4)}, v{vT + 7} offset:{L_CG + 16}
    """)
    if o.g1ld in (1, 3):
        per_slot("Lm_l1", ldg1)
        a.cold += ["Lm_binsx:"]
        for j in range(SLOTS):
            a.cold += [f"    s_mov_b64 exec, {sr(sM + 2 * j, 2)}", "    s_cbranch_execz Lm_binsy"]
            c = Asm()
            ldg1(c, j)
            a.cold += c.lines
        a.cold += ["Lm_binsy:", "    s_mov_b64 exec, -1", "    s_branch Lm_bins"]
    a("""
    s_waitcnt lgkmcnt(4)
    s_barrier
    """)
    if o.g1ld == 1:
        prefetch(a, o.pf2, o.done)
    a("Lm_bins:")
    if not o.fine:
        stamp(a, o, 7)

    def rdmap(b, j):
        b(f"ds_read_b32 v{vMP + j}, v{vBA + j} offset:{L_MAP}")
        if o.g1ld == 2:
            ldg1(b, j)
    per_slot("Lm_mp", rdmap)
    if o.g1ld == 2:
        a(f"""
        s_cmp_lg_u32 s{sRND}, 0
        s_cbranch_scc1 Lm_nopf
        """)
        prefetch(a, o.pf2, o.done)
        a("Lm_nopf:")
    a(f"""
    v_lshlrev_b32 v{vT + 1}, 2, v{vLANE}
    s_lshl_b32 s{sT}, s{sW}, 3
    s_add_u32 s{sTMP}, s{sT}, 7
    v_lshrrev_b32 v{vT + 3}, 3, v{vLANE}
    s_mov_b64 {sr(sBAD, 2)}, 0
    s_waitcnt lgkmcnt(0)
    """)

    def hist2(b, j):
        if o.sched:
            b(f"v_and_b32 v{vBA + j}, 0xe0, v{vMP + j}")
            b(f"v_and_or_b32 v{vBA + j}, v{vRK + j}, 28, v{vBA + j}")
        else:
            b(f"v_and_b32 v{vBA + j}, 0xffff, v{vMP + j}")
            b(f"v_lshl_add_u32 v{vBA + j}, v{vRK + j}, 2, v{vBA + j}")
        b(f"ds_add_rtn_u32 v{vRK + j}, v{vBA + j}, v{vONE} offset:{L_BIN}")
        b(f"v_bfe_u32 v{vMP + j}, v{vMP + j}, 16, 8")
        b(f"v_or_b32 v{vK[j]}, v{vK[j]}, v{vMP + j}")
        b(f"v_add_u32 v{vK[j] + 1}, {8192 * j}, v{vREC4}")
    per_slot("Lm_h2", hist2)
    a(f"""
    s_waitcnt lgkmcnt(0)
    s_barrier
    """)
    if not o.fine:
        stamp(a, o, 8)
    a(f"""
    ds_read_b32 v{vT}, v{vT + 1} offset:{L_BIN}
    v_mov_b32 v{vT + 4}, {XBYTES}
    v_mov_b32 v{vT + 5}, {L_ZERO}
    s_mov_b32 s{sTMP + 2}, {L_ENT}
    v_mov_b32 v{vT + 6}, {L_NULL}
    s_mov_b32 s{sTMP + 4}, 0x0f0f0f0f
    s_mov_b32 s{sTMP + 5}, 0xf0f0f0f0
    v_mov_b32 v{vT + 7}, {L_NULL - 32}
    s_waitcnt lgkmcnt(0)
    v_mov_b32 v{vT + 2}, v{vT}
    """)
    wave_scan(a, vT + 2)
    a(f"""
    v_lshl_add_u32 v{vT + 2}, v{vT + 3}, 4, v{vT + 2}
    v_sub_u32 v{vT}, v{vT + 2}, v{vT}
    """)
    per_slot("Lm_bp", lambda b, j: b(f"ds_bpermute_b32 v{vMP + j}, v{vBA + j}, v{vT}"), full=True)
    def ck1(b, j):
        b(f"v_cmp_ne_u32 vcc, s{sTAG}, v{vG1 + 4 * j + 2}")
        b(f"ds_write_b64 v{vREC4}, {vr(vG1 + 4 * j, 2)} offset:{8192 * j + 8}")
        b(f"s_or_b64 {sr(sBAD, 2)}, {sr(sBAD, 2)}, vcc")

    def g1_finish(young):
        npf = 1 if o.pf2 and o.g1ld != 3 else 0
        a(f"s_waitcnt vmcnt({npf + young})")
        if npf:
            a(f"""
            s_cmp_lg_u32 s{sRND}, 0
            s_cbranch_scc1 Lm_g1w
            """)
            a.cold += ["Lm_g1w:", f"    s_waitcnt vmcnt({young})", "    s_branch Lm_g1"]
        a("Lm_g1:")
        per_slot("Lm_ck1", ck1)
        a(f"""
        s_cmp_lg_u64 {sr(sBAD, 2)}, 0
        s_cbranch_scc1 Lm_re1
        """)
    if not o.b5:
        g1_finish(0)
    a(f"""
    v_readlane_b32 s{sSTART}, v{vT}, s{sT}
    v_readlane_b32 s{sN}, v{vT + 2}, s{sTMP}
    v_readlane_b32 s{sBIG}, v{vT + 2}, 63
    s_nop 0
    v_add_u32 v{vT + 2}, s{sN}, v{vLANE}
    v_lshl_add_u32 v{vT + 2}, v{vT + 2}, 3, s{sTMP + 2}
    s_cmp_eq_u32 s{sW}, 7
    s_cselect_b64 exec, -1, 0xffff
    ds_write_b64 v{vT + 2}, {vr(vT + 4, 2)}
    s_mov_b64 exec, -1
    s_sub_u32 s{sN}, s{sN}, s{sSTART}
    s_lshl_b32 s{sSTART}, s{sSTART}, 3
    s_add_u32 s{sSTART}, s{sSTART}, {L_ENT}
    s_waitcnt lgkmcnt(1)
    """)

    def wr(b, j):
        b(f"v_add_u32 v{vRK + j}, v{vRK + j}, v{vMP + j}")
        b(f"v_lshl_add_u32 v{vRK + j}, v{vRK + j}, 3, s{sTMP + 2}")
        b(f"ds_write_b64 v{vRK + j}, {vr(vK[j], 2)}")
    per_slot("Lm_wr", wr)
    a(f"""
    v_lshl_add_u32 v{vKA}, v{vLANE}, 3, s{sSTART}
    v_add_u32 v{vYA}, s{sSTART}, v{vYL}
    v_add_u32 v{vEA}, s{sSTART}, v{vEL}
    v_cndmask_b32 v{vT}, v{vT + 6}, v{vEA}, {sr(sTMP + 4, 2)}
    v_cndmask_b32 v{vEA}, v{vT + 7}, v{vEA}, {sr(sTMP + 4, 2)}
    v_mov_b32 v{vT + 4}, 0
    s_add_u32 s{sN}, s{sN}, 3
    s_lshr_b32 s{sN}, s{sN}, 2
    s_waitcnt lgkmcnt(0)
    s_barrier
    """)
    if not o.fine:
        stamp(a, o, 9)
    vK0, vPE0, vEF0 = vT + 3, vT + 2, vTP
    a(f"""
    ds_read_b32 v{vK0}, v{vKA}
    ds_read_b32 v{vPE0}, v{vT} offset:4
    ds_read_b32 v{vPE}, v{vEA} offset:{4 + 32}
    ds_read_b32 v{vPY}, v{vYA} offset:4
    ds_read_b32 v{vKEY}, v{vKA} offset:{8 * D}
    ds_write_b32 v{vT + 1}, v{vT + 4} offset:{L_BIN}
    s_waitcnt lgkmcnt(5)
    """)
    for i in range(D + 2):
        a(f"v_readlane_b32 s{sRING + i}, v{vK0}, {i}")

    def rowld(i):
        a(f"s_and_b32 s{sOFF}, s{sRING + i}, 0xfffffc00")
        a(f"buffer_load_dwordx4 {vr(vXB + 4 * i, 4)}, v{vL16}, {sr(sX, 4)}, s{sOFF} offen")
    for i in range(D0):
        rowld(i)
    if o.b5:
        g1_finish(D0)
        a("""
        s_waitcnt lgkmcnt(0)
        s_barrier
        """)
    a(f"""
    s_waitcnt lgkmcnt(2)
    ds_read2_b64 {vr(vEF0, 4)}, v{vPE0} offset0:1 offset1:1
    ds_read_b64 {vr(vYN, 2)}, v{vPY}
    ds_read2_b64 {vr(vEF, 4)}, v{vPE} offset0:1 offset1:1
    """)
    for i in range(D0, D):
        rowld(i)
    a(f"""
    s_and_b32 s{sOFF}, s{sRING + D}, 0xfffffc00
    s_and_b32 s{sOFF + 1}, s{sRING + D + 1}, 0xfffffc00
    s_and_b32 s{sTMP + 2}, s{sW}, 3
    s_lshl_b32 s{sTMP + 3}, s{sTMP + 2}, 13
    v_add_u32 v{vT + 4}, s{sTMP + 3}, v{vL16}
    s_lshr_b32 s{sTMP}, s{sW}, 2
    s_mul_i32 s{sTMP + 1}, s{sTMP}, 80
    v_lshrrev_b32 v{vT + 1}, 4, v{vLANE}
    v_lshl_add_u32 v{vT + 2}, v{vT + 1}, 2, s{sTMP + 1}
    s_waitcnt lgkmcnt(0)
    """)
    for mt in range(5):
        a(f"ds_read_b32 v{vINV + mt}, v{vT + 2} offset:{L_INV + 16 * mt}")
    if o.wmside != 3:
        for i in range(8):
            a(f"ds_read_b128 {vr(vWM + 4 * i, 4)}, v{vT + 4} offset:{L_WM + 1024 * i}")
    a(f"""
    s_cmp_eq_u32 s{sN}, 0
    s_cbranch_scc1 Lm_done
    s_sub_u32 s{sN}, s{sN}, 1
    """)

    def mz(h, ef):
        a(f"v_mfma_f32_32x32x16_bf16 {vr(vU + 16 * h, 16)}, {vr(ef, 4)}, {vr(vWR + 4 * h, 4)}, 0")

    def dot(n):
        i, p = n & 3, n >> 2
        c = f"v{vAT + i}" if p else "0"
        a(f"v_dot2_f32_bf16 v{vAT + i}, v{vYN + p}, v{vCG + 2 * i + p}, {c}")

    mz(0, vEF0)
    mz(1, vEF0)
    for n in range(8):
        dot(n)
    a(f"v_add_u32 v{vEA}, v{vEINC}, v{vEA}")
    a(f"v_add_u32 v{vYA}, 128, v{vYA}")
    a(f"v_add_u32 v{vKA}, 128, v{vKA}")
    if o.scale == 2:
        for r in (0, 2):
            a(f"v_pk_mul_f32 {vr(vAT + r, 2)}, {vr(vAT + r, 2)}, {sr(sLN2, 2)} op_sel_hi:[1,0]")
    a(f"v_cvt_pk_bf16_f32 v{vA}, v{vAT}, v{vAT + 1}")
    a(f"v_cvt_pk_bf16_f32 v{vA + 1}, v{vAT + 2}, v{vAT + 3}")
    tmp = vTP + 8
    for r in range(8):
        a(f"v_exp_f32 v{tmp + r}, v{vU + 16 * (r >> 2) + (r & 3)}")
    a("s_nop 0")
    for r in range(0, 8, 2):
        a(f"v_pk_add_f32 {vr(tmp + r, 2)}, {vr(tmp + r, 2)}, 1.0 op_sel_hi:[1,0]")
    for r in range(8):
        a(f"v_rcp_f32 v{tmp + r}, v{tmp + r}")
    a("s_nop 0")
    for r in range(0, 8, 2):
        a(f"v_pk_mul_f32 {vr(vR + r, 2)}, {vr(vU + 16 * (r >> 2) + (r & 3), 2)}, {vr(tmp + r, 2)}")
    mz(0, vEF)
    a("s_nop 7")
    if not o.fine:
        stamp(a, o, 10)
    if o.yprio:
        a(f"""
        s_cmp_lt_u32 s{sW}, 4
        s_cbranch_scc1 Lm_yp
        s_setprio 1
        Lm_yp:
        """)
    if o.thr:
        a(f"""
        s_cmp_lt_u32 s{sBIG}, {o.thr + 112}
        s_cbranch_scc1 Lm_loopb
        """)
    a(".p2align 6")
    a("Lm_loop:")
    loop_start = len(a.lines)
    for P in range(8):
        g, hf = P >> 1, P & 1
        i0 = 2 * P
        sn = vU + 16 * hf + 4 * g
        dn = vR + 8 * ((g + 1) & 1) + 4 * hf
        cur = vR + 8 * (g & 1) + 2 * hf
        a(f"s_waitcnt vmcnt({D - 2})")
        for k in range(2):
            a(f"buffer_load_dwordx4 {vr(vXB + 4 * ((i0 + k + D) & 7), 4)}, v{vL16}, {sr(sX, 4)}, s{sOFF + k} offen")
        for k in range(2):
            xb = vXB + 4 * ((i0 + k) & 7)
            for h in range(2):
                a(f"v_mfma_f32_4x4x4_16b_bf16 {vr(vTP + 8 * k + 4 * h, 4)}, {vr(vA, 2)}, {vr(xb + 2 * h, 2)}, 0 cbsz:4 abid:{i0 + k}")
                a(f"v_exp_f32 v{vE + 2 * k + h}, v{sn + 2 * k + h}")
        if P == 0:
            a("s_waitcnt lgkmcnt(0)")
        for k in range(2):
            a(f"v_readlane_b32 s{sRING + ((i0 + k + D + 2) & 15)}, v{vKEY}, {i0 + k + 2}")
        for k in range(2):
            a(f"v_pk_add_f32 {vr(vE + 2 * k, 2)}, {vr(vE + 2 * k, 2)}, 1.0 op_sel_hi:[1,0]")
        if P == 0:
            mz(1, vEF)
        if P == 7:
            mz(0, vEF)
        for r in range(4):
            a(f"v_rcp_f32 v{vE + r}, v{vE + r}")
        if P == 0:
            a(f"ds_read_b32 v{vPY}, v{vYA} offset:4")
            a(f"ds_read_b32 v{vPE}, v{vEA} offset:{4 + 32}")
        if P == 1:
            a("s_waitcnt lgkmcnt(0)")
            a(f"ds_read_b64 {vr(vYN, 2)}, v{vPY}")
            a(f"ds_read2_b64 {vr(vEF, 4)}, v{vPE} offset0:1 offset1:1")
        if P == 7:
            a(f"ds_read_b32 v{vKEY}, v{vKA} offset:{8 * D}")
        for k in range(2):
            a(f"s_and_b32 s{sOFF + k}, s{sRING + ((i0 + k + D + 2) & 15)}, 0xfffffc00")
        for k in range(2):
            a(f"s_set_gpr_idx_on s{sRING + i0}, 0xc" if k == 0 else f"s_set_gpr_idx_idx s{sRING + i0 + 1}")
            for q in range(4):
                a(f"v_pk_fma_f32 {vr(vACC + 2 * q, 2)}, {vr(cur + 4 * (q >> 1), 2)}, {vr(vTP + 8 * k + 2 * q, 2)}, "
                  f"{vr(vACC + 2 * q, 2)} op_sel:[{k},0,0] op_sel_hi:[{k},1,1]")
        a("s_set_gpr_idx_off")
        for k in range(2):
            a(f"v_pk_mul_f32 {vr(dn + 2 * k, 2)}, {vr(sn + 2 * k, 2)}, {vr(vE + 2 * k, 2)}")
        if P == 1:
            a(f"v_add_u32 v{vEA}, v{vEINC}, v{vEA}")
            a(f"v_add_u32 v{vYA}, 128, v{vYA}")
        if P == 6 and o.wmside == 3:
            a(f"""
            s_cmp_lt_u32 s{sWST}, 5
            s_cbranch_scc1 Lm_wst
            Lm_wstb:
            """)
            c = Asm()
            c(f"""
            Lm_wst:
            s_add_u32 s{sWST}, s{sWST}, 1
            s_cmp_lt_u32 s{sWST}, 4
            s_cbranch_scc1 Lm_wstb
            s_cmp_eq_u32 s{sWST}, 5
            s_cbranch_scc1 Lm_wst2
            """)
            wmix_loads(c, 0, vWM)
            c(f"""
            s_branch Lm_wstb
            Lm_wst2:
            s_mov_b32 s{sTMP}, 0x05040100
            s_mov_b32 s{sTMP + 1}, 0x07060302
            """)
            wmix_finish(c, 0, vWM, vWM + 16)
            c("s_branch Lm_wstb")
            a.cold = c.lines + a.cold
        if P == 2:
            a("s_waitcnt lgkmcnt(0)")
        if 2 <= P < 6:
            dot(2 * (P - 2))
            dot(2 * (P - 2) + 1)
        if P == 6 and o.scale == 2:
            for r in (0, 2):
                a(f"v_pk_mul_f32 {vr(vAT + r, 2)}, {vr(vAT + r, 2)}, {sr(sLN2, 2)} op_sel_hi:[1,0]")
        if P == 7:
            a(f"""
            v_cvt_pk_bf16_f32 v{vA}, v{vAT}, v{vAT + 1}
            v_cvt_pk_bf16_f32 v{vA + 1}, v{vAT + 2}, v{vAT + 3}
            v_add_u32 v{vKA}, 128, v{vKA}
            """)
        if hf:
            a(f"s_sub_u32 s{sN}, s{sN}, 1")
            a("s_cbranch_scc1 Lm_done" if P < 7 else "s_cbranch_scc0 Lm_loop")
    if o.thr:
        body = a.lines[loop_start:]
        n = 0
        alt = []
        for l in body:
            if l.strip() == f"s_waitcnt vmcnt({D - 2})":
                if (o.thrmask >> n) & 1:
                    l = f"    s_waitcnt vmcnt({D - 2 - o.thrd})"
                n += 1
            alt.append(l.replace("Lm_loop", "Lm_loopb"))
        a.cold = [".p2align 6", "Lm_loopb:"] + alt + ["    s_branch Lm_done"] + a.cold
    if o.drop:
        i0 = max(i for i, l in enumerate(a.lines) if l == "Lm_loop:")
        a.lines[i0:] = [l for l in a.lines[i0:] if not any(l.strip().startswith(d) for d in o.drop.split())]
    a("Lm_done:")
    if o.yprio:
        a("s_setprio 0")
    stamp(a, o, 11)
    a(f"""
    s_add_u32 s{sRND}, s{sRND}, {2 * SLOTS}
    s_cmp_lt_u32 s{sRND}, s{sMAX}
    s_cbranch_scc1 Lm_next
    s_cmp_gt_u32 s{sBIG}, {ENT_OWN - 64}
    s_cbranch_scc1 Lm_big
    Lm_small:
    """)
    if o.wmside == 3:
        a(f"""
        s_cmp_lt_u32 s{sWST}, 5
        s_cbranch_scc1 Lm_wfix
        Lm_wfixb:
        """)
        c = Asm()
        c(f"""
        Lm_wfix:
        s_waitcnt vmcnt(0)
        """)
        wmix_loads(c, 0, vWM)
        c(f"""
        s_mov_b32 s{sTMP}, 0x05040100
        s_mov_b32 s{sTMP + 1}, 0x07060302
        s_waitcnt vmcnt(0)
        """)
        wmix_finish(c, 0, vWM, vWM + 16)
        c("s_branch Lm_wfixb")
        a.cold += c.lines
    c = Asm()
    c(f"""
    Lm_next:
    s_waitcnt vmcnt(0) lgkmcnt(0)
    s_barrier
    s_mov_b32 s{sBIG}, 0
    v_subrev_u32 v{vREM}, {2 * SLOTS}, v{vREM}
    v_add_u32 v{vREC16}, {32 * SLOTS}, v{vREC16}
    s_branch Lm_round
    Lm_big:
    s_waitcnt lgkmcnt(0)
    s_barrier
    s_branch Lm_small
    """)
    a.cold += c.lines
    for s in range(5):
        acc = vACC + 8 * s
        if o.scale == 0:
            for r in range(0, 8, 2):
                a(f"v_pk_mul_f32 {vr(acc + r, 2)}, {vr(acc + r, 2)}, {sr(sLN2, 2)} op_sel_hi:[1,0]")
        for r in range(4):
            a(f"v_cvt_pk_bf16_f32 v{acc + r}, v{acc + r}, v{acc + 4 + r}")
        a(f"ds_write2_b32 v{vAGW}, v{acc}, v{acc + 1} offset0:0 offset1:{ROWB // 4}")
        a(f"ds_write2_b32 v{vAGW}, v{acc + 2}, v{acc + 3} offset0:{2 * ROWB // 4} offset1:{3 * ROWB // 4}")
        if s < 4:
            a(f"v_add_u32 v{vAGW}, {4 * ROWB}, v{vAGW}")
    a(f"""
    v_and_b32 v{vT + 3}, 15, v{vLANE}
    s_and_b32 s{sT}, s{sW}, 3
    s_lshl_b32 s{sTMP + 3}, s{sT}, 13
    v_add_u32 v{vT + 4}, s{sTMP + 3}, v{vL16}
    s_lshl_b32 s{sT}, s{sT}, 8
    s_lshl_b32 s{sTMP + 1}, s{sQ}, 10
    s_add_u32 s{sT}, s{sT}, s{sTMP + 1}
    v_lshl_add_u32 v{vT + 3}, v{vT + 3}, 4, s{sT}
    s_waitcnt vmcnt(0) lgkmcnt(0)
    s_barrier
    """)
    stamp(a, o, 12)

    def frag(mt, s):
        return vWR + 16 * mt + 4 * s

    def rd(mt):
        for s in range(4):
            a(f"ds_read_b128 {vr(frag(mt, s), 4)}, v{vAGR} offset:{16 * ROWB * mt + 64 * s}")
    if o.wmside == 3:
        for i in range(8):
            a(f"ds_read_b128 {vr(vWM + 4 * i, 4)}, v{vT + 4} offset:{L_WM + 1024 * i}")
        rd(0)
        a("s_waitcnt lgkmcnt(4)")
        rd(1)
        rd(2)
    else:
        for mt in range(3):
            rd(mt)
    for mt in range(5):
        a(f"v_lshl_add_u32 v{vINV + mt}, v{vINV + mt}, 18, v{vT + 3}")
    vD = vACC

    def fin_ops(mt):
        d = vD + 8 * mt
        ops = []
        for r in range(4):
            if o.scale == 1:
                ops.append(f"v_mul_f32 v{d + 2 * r}, s{sLN2}, v{d + 2 * r}")
                ops.append(f"v_mul_f32 v{d + 2 * r + 1}, s{sLN2}, v{d + 2 * r + 1}")
            ops.append(f"v_cvt_pk_bf16_f32 v{d + r}, v{d + 2 * r}, v{d + 2 * r + 1}")
        ops.append(f"buffer_store_dwordx4 {vr(d, 4)}, v{vINV + mt}, {sr(sO, 4)}, 0 offen sc1")
        return ops
    for mt in range(5):
        d = vD + 8 * mt
        pend = min(mt + 3, 5) - mt - 1
        ops = fin_ops(mt - 1) if mt else []
        n = 0
        for s in range(4):
            a(f"s_waitcnt lgkmcnt({4 * pend + 3 - s})")
            for t in range(2):
                cc = vr(d + 4 * t, 4) if s else "0"
                a(f"v_mfma_f32_16x16x32_bf16 {vr(d + 4 * t, 4)}, {vr(frag(mt, s), 4)}, {vr(vWM + 8 * s + 4 * t, 4)}, {cc}")
                n += 1
                if n >= 5:
                    for _ in range(3 if o.scale == 1 else 2):
                        if ops:
                            a(ops.pop(0))
        for op in ops:
            a(op)
        if mt + 3 < 5:
            rd(mt + 3)
    a("s_nop 4" if o.scale == 1 else "s_nop 7")
    for op in fin_ops(4):
        a(op)
    a(f"""
    s_or_b32 s{sT}, s2, s{sW}
    s_cmp_lg_u32 s{sT}, 0
    s_cbranch_scc1 Lm_noep
    v_mov_b32 v{vT}, {WS_EPOCH}
    v_mov_b32 v{vT + 1}, s{sTAG}
    s_mov_b64 exec, 1
    global_store_dword v{vT}, v{vT + 1}, {sr(sWS, 2)} sc1
    Lm_noep:
    """)
    if o.stamps and o.stamps != 5:
        a("s_waitcnt vmcnt(0)")
    stamp(a, o, 13)
    stamp_flush(a, o, 14)
    a(f"""
    Lm_end:
    s_endpgm
    """)
    a.lines += a.cold
    a(f"""
    Lm_re0:
    {"s_add_u32 s11, s11, 1" if o.stamps == 1 else ""}
    s_sub_u32 s{sSPIN}, s{sSPIN}, 1
    s_cbranch_scc0 Lm_g0
    s_endpgm
    Lm_re1:
    {"s_add_u32 s12, s12, 1" if o.stamps == 1 else ""}
    s_sub_u32 s{sSPIN}, s{sSPIN}, 1
    s_cbranch_scc1 Lm_end
    """)
    for j in range(SLOTS):
        a(f"s_mov_b64 exec, {sr(sM + 2 * j, 2)}")
        a("s_cbranch_execz Lm_rl1")
        ldg1(a, j)
    a(f"""
    Lm_rl1:
    s_mov_b64 exec, -1
    s_mov_b64 {sr(sBAD, 2)}, 0
    s_waitcnt vmcnt(0) lgkmcnt(0)
    s_branch Lm_g1
    """)
    a(".p2align 2")
    a(".type tfn_deal_table,@object")
    a("tfn_deal_table:")
    nv = o.nvar
    for var in range(nv):
        for asg in json.load(open(os.path.join(HERE, "part.json")))[str(o.bias)]:
            used = [0] * 8
            vals = []
            for w in asg:
                sl = used[w]
                used[w] += 1
                vals.append(w * 32 | (sl * 8) << 16 | ((w * 5 + sl) * 4) << 24)
            vals += [0] * 24
            if o.sched:
                npre = o.npre
                shift = ((var + 0.5) / nv - 0.5) * o.stag / 8.0 if nv > 1 else 0.0
                for l in range(64):
                    if l < npre:
                        t = (l + 0.5) * o.sched / npre
                    else:
                        t = (l - npre + 0.5) * 8 / (64 - npre)
                    b = max(0, min(7, int(t + shift + 8) - 8))
                    if o.pbins:
                        seq = []
                        for part in (o.pbins, o.sbins):
                            for bi, cnt in enumerate(int(x) for x in part.split(".")):
                                seq += [bi] * cnt
                        assert len(seq) == 64
                        b = seq[l]
                    vals[l] |= b << 2
            for lo in range(0, 64, 8):
                a(".long " + ", ".join("%#x" % v for v in vals[lo:lo + 8]))
    a(f".size tfn_deal_table, {512 * nv}")


def generate(o):
    a = Asm()
    ref = open(f"cdna_kernels/{NAME}.s.ref").read().split("\n")
    for ln in ref:
        if ln.startswith("; Override"):
            break
        a.lines.append(ln)
    kerns = [(NAME + "_kernel", NV)]
    diag = o.stamps in (1, 5)
    if diag:
        a.lines.append(f"; @launch kernel={NAME}_kernel grid=(256,1,1) block=(512,1,1) lds={L_END}")
        a.lines.append("; @launch kernel=diag_end_kernel grid=(1,1,1) block=(64,1,1) lds=0")
    else:
        a.lines.append(f"; @launch grid=(256,1,1) block=(512,1,1) lds={L_END}")
    a('.amdgcn_target "amdgcn-amd-amdhsa--gfx950"')
    a(".text")
    gen_main(a, o)
    if diag:
        kerns.append(("diag_end_kernel", 8))
        a(f"""
        .p2align 8
        .globl diag_end_kernel
        .type diag_end_kernel,@function
        diag_end_kernel:
        s_memrealtime s[8:9]
        s_load_dwordx2 s[4:5], s[0:1], 80
        v_mov_b32 v1, {WS_STAMP + 2 * 0x80000}
        s_waitcnt lgkmcnt(0)
        v_mov_b32 v2, s8
        global_store_dword v1, v2, s[4:5]
        s_endpgm
        """)
    a('.section .rodata,"a"')
    for kn, v in kerns:
        a(f"""
        .p2align 6
        .amdhsa_kernel {kn}
        .amdhsa_next_free_vgpr {v}
        .amdhsa_next_free_sgpr 102
        .amdhsa_accum_offset {v}
        .amdhsa_group_segment_fixed_size 0
        .amdhsa_kernarg_size 88
        .amdhsa_user_sgpr_count 2
        .amdhsa_user_sgpr_kernarg_segment_ptr 1
        .amdhsa_system_sgpr_workgroup_id_x 1
        .amdhsa_float_denorm_mode_32 3
        .end_amdhsa_kernel
        """)
    return a.text()


if __name__ == "__main__":
    o = Opt()
    out = sys.argv[1]
    for kv in sys.argv[2:]:
        k, v = kv.split("=")
        assert hasattr(o, k), k
        setattr(o, k, int(v) if v.lstrip("-").isdigit() else v.replace("+", " "))
    open(out, "w").write(generate(o))
```

```python
import json
import os
import struct
import sys

NAME = "gather_scatter__tensor_product_equiv_tfn__graph"
HERE = os.path.dirname(os.path.abspath(__file__))
N, E = 10000, 160000
NPROD, CH = 250, 640
XBYTES = N * 1024

WS_TAB = 0
WS_REC = 0x80000
CHB = CH * 32 + 128
WS_EPOCH = WS_REC + CH * 32 + CHB
WS_STAMP = 0x800000

SLOTS = 8
HOT = 4
NOBR = 3

L_DEG, L_BIN, L_MAX, L_ZERO, L_NULL, L_TAG, L_MAP, L_INV = 0, 256, 512, 528, 544, 560, 768, 1024
L_HIST, L_START = 1280, 2304
L_CG, L_WR = 3328, 3584
L_WM = 5632
L_PAY = L_WM + 32768
L_ENT = L_PAY + SLOTS * 512 * 16
ENT_OWN = 1024
L_AGG = L_ENT + ENT_OWN * 8
ROWB = 288
L_END = L_AGG + 160 * ROWB
L_STAGE = L_AGG
assert (256 * 2 * SLOTS + 8 * 16 + 64) * 8 <= L_END - L_ENT
assert L_END <= 163840


def f32(x):
    return struct.unpack("<I", struct.pack("<f", x))[0]


class Opt:
    stamps = 0
    dbgidx = 13
    slp = -1
    slpn = 10
    D = 6
    pfa = 1
    pf2 = 4
    npre = 8
    sched = 3
    ndef = 0
    kdef = 3
    bias = -4
    yprio = 1
    xbal = 1
    pad = 0
    lowp = 1
    gran = 2
    early0 = 1
    sbar = 0
    spin = 1 << 16


class Asm:
    def __init__(self):
        self.lines = []
        self.cold = []

    def __call__(self, s=""):
        for ln in s.split("\n"):
            ln = ln.strip()
            if not ln:
                continue
            self.lines.append(ln if ln.endswith(":") or ln.startswith(".") or ln.startswith(";") else "    " + ln)

    def text(self):
        return "\n".join(self.lines) + "\n"


def vr(a, n=1):
    return "v%d" % a if n == 1 else "v[%d:%d]" % (a, a + n - 1)


def sr(a, n=1):
    return "s%d" % a if n == 1 else "s[%d:%d]" % (a, a + n - 1)


def wave_scan(a, v):
    steps = [f"{c} row_mask:0xf bank_mask:0xf bound_ctrl:1" for c in ("row_shr:1", "row_shr:2", "row_shr:4", "row_shr:8")]
    steps += ["row_bcast:15 row_mask:0xa bank_mask:0xf", "row_bcast:31 row_mask:0xc bank_mask:0xf"]
    for c in steps:
        a("s_nop 1")
        a(f"v_add_u32_dpp v{v}, v{v}, v{v} {c}")


sSPIN = 3
sX, sO = 20, 24
sWS, sREC = 28, 30
sQ, sW, sRND, sMAX, sSTART, sN, sOFF, sT = 32, 33, 34, 35, 36, 37, 38, 40
sTAG, sBIG, sPF = 41, 42, 43
sRING = 44
sM = 60
sTMP = 76
sLN2 = 86
sROT = 87
sST = 88
sRO2, sDEF, sBAD, sRES = 6, 7, 8, 13

vL16, vLANE, vREC4, vREC16, vREM, vONE = 1, 2, 3, 4, 5, 6
vKA, vEA, vYA, vEINC = 7, 8, 9, 10
vKEY, vPE, vPY, vPFA = 11, 12, 13, 14
vPF = 15
vEF, vYN, vA = 16, 20, 22
vAT = 24
vE = 28
vT = 32
vWR = 40
vCG = 48
vTP = 56
vR = 72
vXB = 88
vU = 120
vACC = 152
vREC1, vTAB, vTA, vEL = 192, 193, 194, 195
vS1 = 196
vINV = 196
vYL, vAGW, vAGR = 204, 205, 206
vWM = 208
vD = 240
NV = 256


def stamp(a, o, idx):
    if o.stamps and o.slp == idx:
        a(f"s_sleep {o.slpn}")
    if o.stamps and (o.stamps < 3 or idx == 0 or (o.stamps == 4 and idx == o.dbgidx)):
        a(f"""
        s_memrealtime {sr(sTMP + 8, 2)}
        s_waitcnt lgkmcnt(0)
        s_mov_b32 s{sST + idx}, s{sTMP + 8}
        """)


def stamp_flush(a, o, n):
    if not o.stamps:
        return
    if o.stamps == 5:
        a(f"""
        s_cmp_lg_u32 s{sW}, 0
        s_cbranch_scc1 Lm_end
        s_mov_b64 exec, 1
        s_lshl_b32 s3, s2, 10
        s_add_u32 s3, s3, {WS_STAMP + 0x80000}
        v_mov_b32 v{vT}, s3
        v_mov_b32 v{vT + 1}, s{sST}
        global_store_dword v{vT}, v{vT + 1}, {sr(sWS, 2)} sc1
        """)
        return
    if o.stamps == 4:
        a(f"""
        s_sub_u32 s4, s{sST + o.dbgidx}, s{sST}
        s_min_u32 s4, s4, 4000
        s_mul_i32 s4, s4, 40
        s_mov_b32 s5, 0
        Ldbg_spin:
        s_sleep 8
        s_memrealtime s[6:7]
        s_waitcnt lgkmcnt(0)
        s_sub_u32 s6, s6, s{sST}
        s_add_u32 s5, s5, 1
        s_cmp_ge_u32 s5, 20000
        s_cbranch_scc1 Lm_end
        s_cmp_lt_u32 s6, s4
        s_cbranch_scc1 Ldbg_spin
        """)
        return
    a(f"""
    s_mov_b64 exec, -1
    s_lshl_b32 s3, s2, 4
    s_add_u32 s3, s3, s{sW}
    s_lshl_b32 s3, s3, 6
    s_add_u32 s3, s3, {WS_STAMP + 0x80000}
    v_mov_b32 v{vT}, s3
    """)
    for i in range(n):
        a(f"v_mov_b32 v{vT + 1}, s{sST + i}")
        a(f"global_store_dword v{vT}, v{vT + 1}, {sr(sWS, 2)} offset:{4 * i}")
        a("s_nop 1")
    a(f"""
    s_lshl_b32 s11, s11, 8
    s_lshl_b32 s12, s12, 16
    s_or_b32 s10, s10, s11
    s_or_b32 s10, s10, s12
    v_mov_b32 v{vT + 1}, s10
    global_store_dword v{vT}, v{vT + 1}, {sr(sWS, 2)} offset:56
    """)


def prefetch(a, k, done, hi=False):
    if not k:
        return
    a(f"""
    s_mul_i32 s{sTMP + 4}, s{sPF}, {k * 8192}
    s_add_u32 s{sTMP + 4}, s{sTMP + 4}, {(done * 262144 - ((8 - k) * 8192 if hi else 0)) & 0xffffffff}
    s_add_u32 s{sTMP + 4}, s{sTMP + 4}, s{sRO2}
    {f"s_cmp_ge_u32 s{sW}, {8 - k}" if hi else f"s_cmp_lt_u32 s{sW}, {k}"}
    s_cselect_b32 s{sTMP + 4}, s{sTMP + 4}, {XBYTES}
    v_add_u32 v{vTA}, s{sTMP + 4}, v{vPFA}
    buffer_load_dword v{vPF}, v{vTA}, {sr(sX, 4)}, 0 offen
    """)


def side_loads(a):
    a(f"""
    s_cmp_lg_u32 s{sW}, 7
    s_cbranch_scc1 Lside_a
    v_lshlrev_b32 v{vT}, 2, v{vLANE}
    global_load_dword v{vTP}, v{vT}, s[14:15]
    global_load_dword v{vTP + 1}, v{vT}, s[14:15] offset:256
    global_load_dword v{vTP + 2}, v{vT}, s[14:15] offset:512
    global_load_dword v{vTP + 3}, v{vT}, s[14:15] offset:768
    Lside_a:
    s_cmp_lg_u32 s{sW}, 6
    s_cbranch_scc1 Lside_b
    v_bfe_u32 v{vT}, v{vLANE}, 3, 2
    v_and_b32 v{vT + 1}, 7, v{vLANE}
    v_lshl_add_u32 v{vT}, v{vT + 1}, 3, v{vT}
    v_lshlrev_b32 v{vT}, 1, v{vT}
    global_load_ushort v{vTP}, v{vT}, s[16:17]
    global_load_ushort v{vTP + 1}, v{vT}, s[16:17] offset:8
    Lside_b:
    s_cmp_lg_u32 s{sW}, 5
    s_cbranch_scc1 Lside_t
    s_mov_b64 exec, 0xff
    s_lshl_b32 s{sTMP}, s{sPF}, 10
    v_lshl_add_u32 v{vT}, v{vLANE}, 7, s{sTMP}
    global_load_dword v{vPF}, v{vT}, s[18:19]
    s_mov_b64 exec, -1
    Lside_t:
    """)


def side_finish(a):
    g = vTP + 4
    out = vR
    a(f"""
    s_cmp_lg_u32 s{sW}, 7
    s_cbranch_scc1 Lside_c
    s_mov_b32 s{sT}, {f32(-1.4426950408889634):#x}
    """)
    for k in range(4):
        a(f"v_lshlrev_b32 v{g + k}, 16, v{vTP + k}")
        a(f"v_and_b32 v{g + 4 + k}, 0xffff0000, v{vTP + k}")
    for k in range(8):
        a(f"v_mul_f32 v{g + k}, s{sT}, v{g + k}")
    for h in range(2):
        for p in range(2):
            g0 = g + 4 * h + 2 * p
            hi = out + 4 * h + p
            a(f"""
            v_cvt_pk_bf16_f32 v{hi}, v{g0}, v{g0 + 1}
            v_lshlrev_b32 v{vT}, 16, v{hi}
            v_and_b32 v{vT + 1}, 0xffff0000, v{hi}
            v_sub_f32 v{vT}, v{g0}, v{vT}
            v_sub_f32 v{vT + 1}, v{g0 + 1}, v{vT + 1}
            v_cvt_pk_bf16_f32 v{hi + 2}, v{vT}, v{vT + 1}
            """)
    a(f"""
    ds_write_b128 v{vL16}, {vr(out, 4)} offset:{L_WR}
    ds_write_b128 v{vL16}, {vr(out + 4, 4)} offset:{L_WR + 1024}
    Lside_c:
    s_cmp_lg_u32 s{sW}, 6
    s_cbranch_scc1 Lside_d
    v_lshl_or_b32 v{vTP}, v{vTP + 1}, 16, v{vTP}
    v_lshlrev_b32 v{vT}, 2, v{vLANE}
    ds_write_b32 v{vT}, v{vTP} offset:{L_CG}
    v_mov_b32 v{vT}, {XBYTES}
    v_mov_b32 v{vT + 1}, {L_ZERO}
    v_mov_b32 v{vT + 2}, 0
    ds_write_b64 v{vT + 2}, {vr(vT, 2)} offset:{L_NULL}
    Lside_d:
    """)


def wmix_loads(a, vunit, raw):
    a(f"""
    v_lshrrev_b32 v{vT}, 5, v{vunit}
    v_and_b32 v{vT + 1}, 31, v{vunit}
    v_lshlrev_b32 v{vT}, 11, v{vT}
    v_lshl_add_u32 v{vT}, v{vT + 1}, 3, v{vT}
    """)
    for j in range(8):
        a(f"global_load_dwordx2 {vr(raw + 2 * j, 2)}, v{vT}, s[18:19] offset:{256 * j}")


def wmix_finish(a, vunit, raw, frag):
    a(f"""
    v_bfe_u32 v{vT}, v{vunit}, 3, 2
    v_lshrrev_b32 v{vT + 1}, 7, v{vunit}
    v_lshlrev_b32 v{vT}, 13, v{vT}
    v_lshl_add_u32 v{vT}, v{vT + 1}, 11, v{vT}
    v_bfe_u32 v{vT + 1}, v{vunit}, 5, 2
    v_lshl_add_u32 v{vT}, v{vT + 1}, 8, v{vT}
    v_and_b32 v{vT + 1}, 7, v{vunit}
    v_lshl_add_u32 v{vT}, v{vT + 1}, 5, v{vT}
    """)
    for nn in range(2):
        for t in range(2):
            f = frag + 4 * (2 * nn + t)
            for jj in range(4):
                a(f"v_perm_b32 v{f + jj}, v{raw + 2 * (2 * jj + 1) + nn}, v{raw + 2 * (2 * jj) + nn}, s{sTMP + t}")
            a(f"ds_write_b128 v{vT}, {vr(f, 4)} offset:{L_WM + 1024 * t + 16 * nn}")


WRAW = (vU, vU + 16, vWM)
WUNIT = (vKEY, vPE, vPY)
WFRAG = vWM + 16


def phase_a(a, o):
    vDS, vS, vY, vF = vXB, vXB + 2, vXB + 4, vXB + 8
    vQ, vRK, vKK, vC, vSC, vTG = vXB + 12, vXB + 14, vXB + 16, vXB + 20, vXB + 24, vXB + 28
    a(f"""
    s_cmp_ge_u32 s2, 256
    s_cbranch_scc1 Lm_end
    """)
    stamp(a, o, 0)
    a(f"""
    s_load_dwordx16 s[4:19], s[0:1], 0
    s_load_dwordx2 {sr(sWS, 2)}, s[0:1], 80
    s_load_dwordx2 {sr(sO, 2)}, s[0:1], 64
    s_getpc_b64 {sr(sTMP + 2, 2)}
    La_pc:
    s_lshr_b32 s{sPF}, s2, 3
    s_mul_i32 s{sTMP}, s{sPF}, 384
    s_sub_u32 s{sTMP}, s{sTMP}, {509 * 128}
    v_lshl_add_u32 v{vT}, v0, 7, s{sTMP}
    v_min_u32 v{vT}, tfn_deal_table+508-La_pc, v{vT}
    v_cmp_lt_u32 vcc, 508, v0
    s_and_saveexec_b64 {sr(sTMP + 4, 2)}, vcc
    s_cbranch_execz La_notouch
    global_load_dword v{vPF}, v{vT}, {sr(sTMP + 2, 2)}
    La_notouch:
    s_mov_b64 exec, -1
    v_lshrrev_b32 v{vT}, 6, v0
    v_and_b32 v{vLANE}, 63, v0
    v_readfirstlane_b32 s{sW}, v{vT}
    v_mov_b32 v{vT}, 0
    v_mov_b32 v{vT + 1}, 0
    v_lshlrev_b32 v{vT + 7}, 3, v0
    ds_write_b64 v{vT + 7}, {vr(vT, 2)}
    v_lshlrev_b32 v{vL16}, 4, v{vLANE}
    v_mov_b32 v{vONE}, 1
    s_mul_i32 s3, s2, {CH * 4}
    v_add_u32 v{vT + 3}, s3, v{vT + 7}
    v_lshlrev_b32 v{vT + 4}, 1, v{vT + 3}
    s_and_b32 s{sQ}, s2, 7
    s_lshl_b32 s{sQ}, s{sQ}, 5
    s_or_b32 s{sQ}, s{sQ}, s{sPF}
    v_lshlrev_b32 v{vPFA}, 7, v0
    s_mov_b32 s{sX + 2}, {XBYTES}
    s_mov_b32 s{sX + 3}, 0x20000
    s_mov_b32 s{sO + 2}, {XBYTES}
    s_mov_b32 s{sO + 3}, 0x20000
    s_mov_b32 s{sRND}, 0
    v_mov_b32 v{vEL}, {WS_EPOCH}
    v_mov_b32 v{vYL}, {L_TAG}
    s_mov_b32 s{sLN2}, {f32(-0.6931471805599453):#x}
    s_lshl_b32 s{sT}, s2, 11
    v_lshl_add_u32 v{vT + 6}, v0, 4, s{sT}
    s_cmp_lt_u32 s2, {NPROD}
    s_cselect_b32 s{sT}, 5, 0
    s_cmp_lt_u32 s{sW}, s{sT}
    s_cselect_b32 s{sBIG}, 1, 0
    s_waitcnt lgkmcnt(0)
    s_cbranch_scc0 La_noload
    global_load_dwordx2 {vr(vDS, 2)}, v{vT + 3}, s[8:9]
    La_noload:
    s_cmp_lg_u32 s{sW}, 5
    s_cbranch_scc1 La_notag
    global_load_dword v{vEL}, v{vEL}, {sr(sWS, 2)} sc1
    La_notag:
    s_add_u32 s{sREC}, s{sWS}, {WS_REC}
    s_addc_u32 s{sREC + 1}, s{sWS + 1}, 0
    s_mov_b32 s{sX}, s4
    s_and_b32 s{sX + 1}, s5, 0xffff
    s_and_b32 s{sO + 1}, s{sO + 1}, 0xffff
    s_barrier
    s_cmp_eq_u32 s{sBIG}, 0
    s_cbranch_scc1 La_other
    global_load_dwordx2 {vr(vS, 2)}, v{vT + 3}, s[6:7]
    global_load_dwordx4 {vr(vY, 4)}, v{vT + 4}, s[10:11]
    global_load_dwordx4 {vr(vF, 4)}, v{vT + 4}, s[12:13]
    s_barrier
    """)

    def common(b):
        b(f"""
        s_and_b32 s{sRO2}, s2, 7
        s_sub_u32 s{sROT}, 8, s{sRO2}
        s_lshl_b32 s{sROT}, s{sROT}, 5
        s_mul_i32 s{sRO2}, s{sRO2}, {1261 * 1024}
        """)
    common(a)
    for i in range(40):
        a(f"v_mov_b32 v{vACC + i}, 0")
    a("s_waitcnt vmcnt(3)")
    stamp(a, o, 1)
    for k in range(2):
        if o.xbal:
            a(f"""
            v_bfe_u32 v{vQ + k}, v{vDS + k}, 3, 5
            v_and_b32 v{vT + k}, 7, v{vDS + k}
            v_lshlrev_b32 v{vQ + k}, 2, v{vQ + k}
            v_lshl_or_b32 v{vQ + k}, v{vT + k}, 7, v{vQ + k}
            """)
        else:
            a(f"""
            v_and_b32 v{vQ + k}, 255, v{vDS + k}
            v_lshlrev_b32 v{vQ + k}, 2, v{vQ + k}
            """)
        a(f"ds_add_rtn_u32 v{vRK + k}, v{vQ + k}, v{vONE} offset:{L_HIST}")
    a(f"""
    v_bfe_u32 v{vKK}, v{vDS}, 8, 6
    v_bfe_u32 v{vKK + 2}, v{vDS + 1}, 8, 6
    s_waitcnt lgkmcnt(0)
    s_barrier
    ds_read_b128 {vr(vC, 4)}, v{vL16} offset:{L_HIST}
    ds_read_b32 v{vTG}, v{vYL}
    ds_read_b64 {vr(vE, 2)}, v{vT + 7} offset:{L_HIST}
    s_mov_b32 s{sT}, {L_STAGE}
    s_waitcnt lgkmcnt(2)
    v_add_u32 v{vT}, v{vC}, v{vC + 1}
    v_add_u32 v{vT + 1}, v{vT}, v{vC + 2}
    v_add_u32 v{vT + 2}, v{vT + 1}, v{vC + 3}
    v_mov_b32 v{vT + 3}, v{vT + 2}
    """)
    wave_scan(a, vT + 3)
    a(f"""
    v_sub_u32 v{vSC}, v{vT + 3}, v{vT + 2}
    v_add_u32 v{vSC + 1}, v{vSC}, v{vC}
    v_add_u32 v{vSC + 2}, v{vSC}, v{vT}
    v_add_u32 v{vSC + 3}, v{vSC}, v{vT + 1}
    ds_write_b128 v{vL16}, {vr(vSC, 4)} offset:{L_START}
    ds_read_b64 {vr(vE + 2, 2)}, v{vT + 7} offset:{L_START}
    ds_read_b32 v{vT}, v{vQ} offset:{L_START}
    ds_read_b32 v{vT + 1}, v{vQ + 1} offset:{L_START}
    s_waitcnt lgkmcnt(4)
    v_readfirstlane_b32 s{sTAG}, v{vTG}
    v_mov_b32 v{vTG + 1}, v{vTG}
    v_mov_b32 v{vKK + 1}, v{vTG}
    v_mov_b32 v{vKK + 3}, v{vTG}
    v_mov_b32 v{vAT + 1}, v{vTG}
    v_mov_b32 v{vAT + 3}, v{vTG}
    s_cmp_ge_u32 s{sW}, 2
    s_cbranch_scc1 La_notab
    s_waitcnt lgkmcnt(2)
    v_lshl_or_b32 v{vAT}, v{vE}, 16, v{vE + 2}
    v_lshl_or_b32 v{vAT + 2}, v{vE + 1}, 16, v{vE + 3}
    global_store_dwordx4 v{vT + 6}, {vr(vAT, 4)}, {sr(sWS, 2)} sc1
    s_waitcnt vmcnt(1) lgkmcnt(0)
    s_branch La_tabdone
    La_notab:
    s_waitcnt vmcnt(0) lgkmcnt(0)
    La_tabdone:
    """)
    for k in range(2):
        a(f"""
        v_mul_u32_u24 v{vT + 4}, 13, v{vS + k}
        v_lshl_or_b32 v{vKK + 2 * k}, v{vS + k}, 10, v{vKK + 2 * k}
        v_lshrrev_b32 v{vT + 4}, 11, v{vT + 4}
        v_add_u32 v{vRK + k}, v{vRK + k}, v{vT + k}
        v_lshl_or_b32 v{vKK + 2 * k}, v{vT + 4}, 24, v{vKK + 2 * k}
        v_lshl_add_u32 v{vT + 2}, v{vRK + k}, 4, s{sT}
        v_add_u32 v{vT + 3}, {CH * 16}, v{vT + 2}
        ds_write2_b64 v{vT + 2}, {vr(vKK + 2 * k, 2)}, {vr(vY + 2 * k, 2)} offset0:0 offset1:1
        ds_write2_b64 v{vT + 3}, {vr(vF + 2 * k, 2)}, {vr(vTG, 2)} offset0:0 offset1:1
        """)
    c = Asm()
    c("""
    La_other:
    s_barrier
    """)
    side_loads(c)
    common(c)
    prefetch(c, o.pfa, 0, hi=True)
    for i in range(40):
        c(f"v_mov_b32 v{vACC + i}, 0")
    c(f"""
    v_subrev_u32 v{WUNIT[0]}, 320, v0
    v_subrev_u32 v{WUNIT[1]}, 128, v0
    v_add_u32 v{WUNIT[2]}, 64, v0
    s_cmp_lg_u32 s{sW}, 5
    s_cbranch_scc1 La_notag2
    s_waitcnt vmcnt({2 if o.pfa else 1})
    v_add_u32 v{vEL}, 0x9e3779b9, v{vEL}
    ds_write_b32 v{vYL}, v{vEL}
    s_waitcnt lgkmcnt(0)
    La_notag2:
    s_barrier
    ds_read_b32 v{vKK + 1}, v{vYL}
    s_cmp_ge_u32 s{sW}, 5
    s_cbranch_scc1 La_side
    v_mov_b32 v{vKK}, 0
    v_mov_b32 v{vKK + 2}, 0
    s_waitcnt lgkmcnt(0)
    v_readfirstlane_b32 s{sTAG}, v{vKK + 1}
    v_mov_b32 v{vKK + 3}, v{vKK + 1}
    s_cmp_ge_u32 s{sW}, 2
    s_cbranch_scc1 La_join
    global_store_dwordx4 v{vT + 6}, {vr(vKK, 4)}, {sr(sWS, 2)} sc1
    s_branch La_join
    La_side:
    """)
    wmix_loads(c, WUNIT[0], WRAW[0])
    wmix_loads(c, WUNIT[1], WRAW[1])
    c(f"""
    s_waitcnt lgkmcnt(0)
    v_readfirstlane_b32 s{sTAG}, v{vKK + 1}
    s_cmp_eq_u32 s{sW}, 7
    s_cbranch_scc1 La_join
    """)
    wmix_loads(c, WUNIT[2], WRAW[2])
    c("s_branch La_join")
    a.cold += c.lines
    a(f"""
    La_join:
    s_mov_b32 s{sT}, {L_STAGE}
    v_lshl_add_u32 v{vT + 4}, v0, 4, s{sT}
    s_mul_i32 s{sT}, s2, {CHB}
    v_lshl_add_u32 v{vT + 5}, v0, 4, s{sT}
    v_add_u32 v{vT + 6}, 8192, v{vT + 5}
    v_add_u32 v{vKA}, {CH * 16}, v{vT + 5}
    v_add_u32 v{vEA}, {CH * 16 + 8192}, v{vT + 5}
    s_waitcnt lgkmcnt(0)
    s_barrier
    """)
    stamp(a, o, 2)
    a(f"""
    s_cmp_ge_u32 s2, {NPROD}
    s_cbranch_scc1 La_nostore
    ds_read_b128 {vr(vY, 4)}, v{vT + 4}
    ds_read_b128 {vr(vS1, 4)}, v{vT + 4} offset:{CH * 16}
    s_cmp_lt_u32 s{sW}, 2
    s_cbranch_scc1 La_four
    s_waitcnt lgkmcnt(1)
    global_store_dwordx4 v{vT + 5}, {vr(vY, 4)}, {sr(sREC, 2)} sc1
    s_waitcnt lgkmcnt(0)
    s_barrier
    global_store_dwordx4 v{vKA}, {vr(vS1, 4)}, {sr(sREC, 2)} sc1
    s_branch La_nostore
    La_four:
    ds_read_b128 {vr(vF, 4)}, v{vT + 4} offset:8192
    ds_read_b128 {vr(vS1 + 4, 4)}, v{vT + 4} offset:{CH * 16 + 8192}
    s_waitcnt lgkmcnt(3)
    global_store_dwordx4 v{vT + 5}, {vr(vY, 4)}, {sr(sREC, 2)} sc1
    s_waitcnt lgkmcnt(1)
    global_store_dwordx4 v{vT + 6}, {vr(vF, 4)}, {sr(sREC, 2)} sc1
    s_waitcnt lgkmcnt(0)
    s_barrier
    global_store_dwordx4 v{vKA}, {vr(vS1, 4)}, {sr(sREC, 2)} sc1
    global_store_dwordx4 v{vEA}, {vr(vS1 + 4, 4)}, {sr(sREC, 2)} sc1
    La_nostore:
    """)
    stamp(a, o, 3)


def gen_main(a, o):
    kn = NAME + "_kernel"
    D = o.D
    sNODE = 2 if o.xbal else sQ
    a(".p2align 8")
    a(f".globl {kn}")
    a(f".type {kn},@function")
    a(f"{kn}:")
    vG0 = vXB
    vG1 = vTP
    vBA = vU + 8
    vRK = vU + 16
    vMP = vU + 24
    vEN = vE
    vK = [vG0 + 4 * j for j in range(SLOTS)]
    cnt = (lambda r: f"s_add_u32 s{r}, s{r}, 1") if o.stamps == 1 else (lambda r: "")
    phase_a(a, o)
    a(f"""
    s_getpc_b64 {sr(sTMP + 2, 2)}
    Lm_pc:
    s_cmp_lt_u32 s{sNODE}, {N - 39 * 256}
    s_cselect_b32 s{sT}, 256, 0
    s_add_u32 s{sT}, s{sT}, tfn_deal_table-Lm_pc
    v_lshl_add_u32 v{vT}, v{vLANE}, 2, s{sT}
    global_load_dword v{vTAB}, v{vT}, {sr(sTMP + 2, 2)}
    s_lshl_b32 s{sT}, s{sQ}, 3
    v_lshrrev_b32 v{vT + 2}, 1, v0
    v_lshl_add_u32 v{vT + 3}, v{vT + 2}, 11, s{sT}
    global_load_dwordx2 {vr(vEN, 2)}, v{vT + 3}, {sr(sWS, 2)} sc1
    v_mul_u32_u24 v{vREC16}, {CHB}, v{vT + 2}
    s_cmp_ge_u32 s{sW}, 5
    s_cbranch_scc1 Lm_wmside
    Lm_wmback:
    """)
    c = Asm()
    c(f"""
    Lm_wmside:
    s_mov_b32 s{sTMP}, 0x05040100
    s_mov_b32 s{sTMP + 1}, 0x07060302
    s_waitcnt vmcnt(4)
    s_cmp_lt_u32 s2, {NPROD}
    s_cbranch_scc1 Lm_wmgo
    s_waitcnt vmcnt(2)
    Lm_wmgo:
    """)
    wmix_finish(c, WUNIT[0], WRAW[0], WFRAG)
    wmix_finish(c, WUNIT[1], WRAW[1], WRAW[0])
    side_finish(c)
    c(f"""
    s_cmp_eq_u32 s{sW}, 7
    s_cbranch_scc1 Lm_wmback
    """)
    wmix_finish(c, WUNIT[2], WRAW[2], WRAW[1])
    c("s_branch Lm_wmback")
    a.cold += c.lines
    a(f"""
    v_and_b32 v{vT + 4}, 1, v0
    v_mov_b32 v{vT + 5}, {L_MAX}
    v_lshlrev_b32 v{vREC4}, 4, v0
    v_add_u32 v{vREC4}, {L_PAY}, v{vREC4}
    s_mov_b32 s{sSPIN}, {o.spin}
    {"s_mov_b32 s10, 0" if o.stamps == 1 else ""}
    {"s_mov_b32 s11, 0" if o.stamps == 1 else ""}
    {"s_mov_b32 s12, 0" if o.stamps == 1 else ""}
    v_lshrrev_b32 v{vYL}, 2, v{vLANE}
    v_lshlrev_b32 v{vYL}, 3, v{vYL}
    v_bfe_u32 v{vT}, v{vLANE}, 3, 2
    v_and_b32 v{vT + 1}, 3, v{vLANE}
    v_lshl_add_u32 v{vT}, v{vT}, 2, v{vT + 1}
    v_lshlrev_b32 v{vEL}, 3, v{vT}
    s_mov_b32 s{sTMP + 2}, 0x0f0f0f0f
    s_mov_b32 s{sTMP + 3}, 0xf0f0f0f0
    v_mov_b32 v{vT}, 128
    v_cndmask_b32 v{vEINC}, 0, v{vT}, {sr(sTMP + 2, 2)}
    s_mul_i32 s{sT}, s{sW}, {16 * ROWB}
    s_add_u32 s{sT}, s{sT}, {L_AGG}
    v_lshl_add_u32 v{vAGW}, v{vLANE}, 2, s{sT}
    v_and_b32 v{vT}, 15, v{vLANE}
    v_mul_u32_u24 v{vT}, {ROWB}, v{vT}
    v_and_b32 v{vT + 1}, 48, v{vLANE}
    v_add3_u32 v{vAGR}, v{vT}, v{vT + 1}, s{sT}
    Lm_poll:
    s_waitcnt vmcnt(0)
    v_cmp_ne_u32 vcc, s{sTAG}, v{vEN + 1}
    s_cbranch_vccnz Lm_repoll
    s_mov_b64 exec, -1
    """)
    c = Asm()
    c(f"""
    Lm_repoll:
    {cnt(10)}
    s_sub_u32 s{sSPIN}, s{sSPIN}, 1
    s_cbranch_scc1 Lm_end
    s_mov_b64 exec, vcc
    global_load_dwordx2 {vr(vEN, 2)}, v{vT + 3}, {sr(sWS, 2)} sc1
    s_branch Lm_poll
    """)
    a.cold = c.lines + a.cold
    stamp(a, o, 4)
    a(f"""
    v_and_b32 v{vT}, 0xffff, v{vEN}
    v_lshrrev_b32 v{vT + 1}, 16, v{vEN}
    v_add_u32 v{vT}, v{vT}, v{vT + 4}
    v_sub_u32 v{vREM}, v{vT + 1}, v{vT + 4}
    v_lshl_add_u32 v{vREC16}, v{vT}, 4, v{vREC16}
    Lm_round:
    """)
    for j in range(HOT + 1):
        a(f"v_cmp_lt_i32 {sr(sM + 2 * j, 2)}, {2 * j}, v{vREM}")

    def per_slot(label, body, full=False):
        for j in range(HOT):
            if not full:
                a(f"s_mov_b64 exec, {sr(sM + 2 * j, 2)}")
                if j >= NOBR:
                    a(f"s_cbranch_execz {label}")
            body(a, j)
        a(f"s_cmp_lg_u64 {sr(sM + 2 * HOT, 2)}, 0")
        a(f"s_cbranch_scc1 {label}x")
        a(f"{label}:")
        if not full:
            a("s_mov_b64 exec, -1")
        c = Asm()
        c(f"{label}x:")
        for j in range(HOT, SLOTS):
            if not full:
                c(f"s_mov_b64 exec, {sr(sM + 2 * j, 2)}")
                c(f"s_cbranch_execz {label}")
            body(c, j)
        c(f"s_branch {label}")
        a.cold += c.lines

    def ldg0(b, j):
        if j == HOT:
            b("s_mov_b64 exec, -1")
            for jj in range(HOT + 1, SLOTS):
                b(f"v_cmp_lt_i32 {sr(sM + 2 * jj, 2)}, {2 * jj}, v{vREM}")
            b(f"s_mov_b64 exec, {sr(sM + 2 * j, 2)}")
        b(f"global_load_dwordx4 {vr(vG0 + 4 * j, 4)}, v{vREC16}, {sr(sREC, 2)} offset:{32 * j} sc1")

    def ldg1(b, j):
        b(f"global_load_dwordx3 {vr(vG1 + 4 * j, 3)}, v{vREC1}, {sr(sREC, 2)} offset:{32 * j} sc1")

    a("Lm_g0:")
    per_slot("Lm_ld", ldg0)
    a(f"""
    v_add_u32 v{vREC1}, {CH * 16}, v{vREC16}
    s_cmp_lg_u32 s{sRND}, 0
    s_cbranch_scc1 Lm_nomax
    v_add_u32 v{vT + 1}, v{vREM}, v{vT + 4}
    v_cmp_lt_u32 vcc, {2 * SLOTS}, v{vT + 1}
    s_and_saveexec_b64 {sr(sTMP + 2, 2)}, vcc
    ds_max_u32 v{vT + 5}, v{vT + 1}
    s_mov_b64 exec, -1
    Lm_nomax:
    s_mov_b64 {sr(sBAD, 2)}, 0
    s_mov_b64 vcc, 0
    s_waitcnt vmcnt(0)
    """)

    def ck0(b, j):
        b(f"v_cmp_ne_u32 vcc, s{sTAG}, v{vG0 + 4 * j + 1}")
        b(f"v_and_b32 v{vBA + j}, 63, v{vK[j]}")
        b(f"v_lshlrev_b32 v{vBA + j}, 2, v{vBA + j}")
        b(f"s_or_b64 {sr(sBAD, 2)}, {sr(sBAD, 2)}, vcc")
    per_slot("Lm_ck0", ck0)
    a(f"""
    s_cmp_lg_u64 {sr(sBAD, 2)}, 0
    s_cbranch_scc1 Lm_re0
    """)
    stamp(a, o, 5)

    def hist1(b, j):
        b(f"ds_add_u32 v{vBA + j}, v{vONE} offset:{L_DEG}")
        ldg1(b, j)
        b(f"ds_write_b64 v{vREC4}, {vr(vG0 + 4 * j + 2, 2)} offset:{8192 * j}")
        b(f"v_lshrrev_b32 v{vRK + j}, 22, v{vK[j]}")
        b(f"v_add_u32 v{vRK + j}, s{sROT}, v{vRK + j}")
        b(f"v_and_b32 v{vK[j]}, 0x00fffc00, v{vK[j]}")
    per_slot("Lm_h1", hist1)
    a(f"""
    s_cmp_lg_u32 s{sRND}, 0
    s_cbranch_scc1 Lm_bins
    v_lshlrev_b32 v{vT + 1}, 2, v{vLANE}
    s_mul_i32 s{sT}, s{sW}, 5
    v_sub_u32 v{vT + 2}, 63, v{vLANE}
    v_add_u32 v{vT + 6}, s{sT}, v{vLANE}
    v_lshlrev_b32 v{vT + 4}, 2, v{vT + 6}
    v_and_b32 v{vT + 7}, 3, v0
    v_lshlrev_b32 v{vT + 7}, 5, v{vT + 7}
    s_add_u32 s{sTMP}, s{sT}, 1
    s_add_u32 s{sTMP + 1}, s{sT}, 2
    s_add_u32 s{sTMP + 2}, s{sT}, 3
    s_add_u32 s{sTMP + 3}, s{sT}, 4
    s_waitcnt lgkmcnt(0)
    s_barrier
    """)
    stamp(a, o, 6)
    a(f"""
    ds_read_b32 v{vT}, v{vT + 1} offset:{L_DEG}
    ds_read_b32 v{vT + 5}, v{vT + 5}
    """)
    prefetch(a, o.pf2, o.pfa)
    a(f"""
    s_waitcnt lgkmcnt(0)
    v_lshl_or_b32 v{vT}, v{vT}, 6, v{vT + 2}
    v_readfirstlane_b32 s{sMAX}, v{vT + 5}
    v_readlane_b32 s{sRING}, v{vT}, s{sT}
    v_readlane_b32 s{sRING + 1}, v{vT}, s{sTMP}
    v_readlane_b32 s{sRING + 2}, v{vT}, s{sTMP + 1}
    v_readlane_b32 s{sRING + 3}, v{vT}, s{sTMP + 2}
    v_readlane_b32 s{sRING + 4}, v{vT}, s{sTMP + 3}
    """)
    for k in range(5):
        a(f"v_cmp_lt_u32 {sr(sTMP + 2 * k, 2)}, s{sRING + k}, v{vT}")
    for k in range(5):
        a(f"s_bcnt1_i32_b64 s{sRING + 8 + k}, {sr(sTMP + 2 * k, 2)}")
    for k in range(5):
        a(f"v_readlane_b32 s{sRING + k}, v{vTAB}, s{sRING + 8 + k}")
    for k in range(5):
        a(f"v_writelane_b32 v{vT + 2}, s{sRING + k}, {k}")
    a(f"""
    s_mov_b64 exec, 31
    v_lshrrev_b32 v{vT + 3}, 24, v{vT + 2}
    ds_write_b32 v{vT + 4}, v{vT + 2} offset:{L_MAP}
    ds_write_b32 v{vT + 3}, v{vT + 6} offset:{L_INV}
    s_mov_b64 exec, -1
    ds_read_b128 {vr(vWR, 4)}, v{vL16} offset:{L_WR}
    ds_read_b128 {vr(vWR + 4, 4)}, v{vL16} offset:{L_WR + 1024}
    ds_read_b128 {vr(vCG, 4)}, v{vT + 7} offset:{L_CG}
    ds_read_b128 {vr(vCG + 4, 4)}, v{vT + 7} offset:{L_CG + 16}
    s_waitcnt lgkmcnt(4)
    s_barrier
    Lm_bins:
    """)
    stamp(a, o, 7)
    per_slot("Lm_mp", lambda b, j: b(f"ds_read_b32 v{vMP + j}, v{vBA + j} offset:{L_MAP}"))
    a("s_waitcnt lgkmcnt(7)")
    per_slot("Lm_sb", lambda b, j: b(f"ds_bpermute_b32 v{vRK + j}, v{vRK + j}, v{vTAB}"), full=True)
    a(f"""
    v_lshlrev_b32 v{vT + 1}, 2, v{vLANE}
    s_lshl_b32 s{sT}, s{sW}, 3
    s_add_u32 s{sTMP}, s{sT}, 7
    v_lshrrev_b32 v{vT + 3}, 3, v{vLANE}
    s_mov_b64 {sr(sBAD, 2)}, 0
    s_waitcnt lgkmcnt(0)
    """)

    def hist2(b, j):
        b(f"v_lshrrev_b32 v{vRK + j}, v{vMP + j}, v{vRK + j}")
        b(f"v_and_b32 v{vBA + j}, 0xe0, v{vMP + j}")
        b(f"v_and_or_b32 v{vBA + j}, v{vRK + j}, 28, v{vBA + j}")
        b(f"ds_add_rtn_u32 v{vRK + j}, v{vBA + j}, v{vONE} offset:{L_BIN}")
        b(f"v_bfe_u32 v{vMP + j}, v{vMP + j}, 16, 8")
        b(f"v_or_b32 v{vK[j]}, v{vK[j]}, v{vMP + j}")
        b(f"v_add_u32 v{vK[j] + 1}, {8192 * j}, v{vREC4}")
    per_slot("Lm_h2", hist2)
    a(f"""
    s_waitcnt lgkmcnt(0)
    s_barrier
    """)
    stamp(a, o, 8)
    a(f"""
    ds_read_b32 v{vT}, v{vT + 1} offset:{L_BIN}
    v_mov_b32 v{vT + 4}, {XBYTES}
    v_mov_b32 v{vT + 5}, {L_ZERO}
    s_mov_b32 s{sTMP + 2}, {L_ENT}
    v_mov_b32 v{vT + 6}, {L_NULL}
    s_mov_b32 s{sTMP + 4}, 0x0f0f0f0f
    s_mov_b32 s{sTMP + 5}, 0xf0f0f0f0
    v_mov_b32 v{vT + 7}, {L_NULL - 32}
    s_waitcnt lgkmcnt(0)
    v_mov_b32 v{vT + 2}, v{vT}
    """)
    wave_scan(a, vT + 2)
    a(f"""
    v_lshl_add_u32 v{vT + 2}, v{vT + 3}, 4, v{vT + 2}
    v_sub_u32 v{vT}, v{vT + 2}, v{vT}
    """)
    per_slot("Lm_bp", lambda b, j: b(f"ds_bpermute_b32 v{vMP + j}, v{vBA + j}, v{vT}"), full=True)
    npf = 1 if o.pf2 else 0
    a(f"s_waitcnt vmcnt({npf}) lgkmcnt(6)")
    if npf:
        a(f"""
        s_cmp_lg_u32 s{sRND}, 0
        s_cbranch_scc1 Lm_g1w
        """)
        a.cold += ["Lm_g1w:", "    s_waitcnt vmcnt(0)", "    s_branch Lm_g1"]
    a("Lm_g1:")

    def ck1(b, j):
        b(f"v_cmp_ne_u32 vcc, s{sTAG}, v{vG1 + 4 * j + 2}")
        b(f"ds_write_b64 v{vREC4}, {vr(vG1 + 4 * j, 2)} offset:{8192 * j + 8}")
        b(f"s_or_b64 {sr(sBAD, 2)}, {sr(sBAD, 2)}, vcc")
    per_slot("Lm_ck1", ck1)
    a(f"""
    s_cmp_lg_u64 {sr(sBAD, 2)}, 0
    s_cbranch_scc1 Lm_re1
    v_readlane_b32 s{sSTART}, v{vT}, s{sT}
    v_readlane_b32 s{sN}, v{vT + 2}, s{sTMP}
    v_readlane_b32 s{sBIG}, v{vT + 2}, 63
    v_readlane_b32 s{sDEF}, v{vT}, s{sTMP}
    v_add_u32 v{vT + 2}, s{sN}, v{vLANE}
    v_lshl_add_u32 v{vT + 2}, v{vT + 2}, 3, s{sTMP + 2}
    s_cmp_eq_u32 s{sW}, 7
    s_cselect_b64 exec, -1, 0xffff
    ds_write_b64 v{vT + 2}, {vr(vT + 4, 2)}
    s_mov_b64 exec, -1
    s_sub_u32 s{sN}, s{sN}, s{sSTART}
    s_sub_u32 s{sDEF}, s{sDEF}, s{sSTART}
    s_lshl_b32 s{sSTART}, s{sSTART}, 3
    s_add_u32 s{sSTART}, s{sSTART}, {L_ENT}
    s_waitcnt lgkmcnt(1)
    """)

    def wr(b, j):
        b(f"v_add_u32 v{vRK + j}, v{vRK + j}, v{vMP + j}")
        b(f"v_lshl_add_u32 v{vRK + j}, v{vRK + j}, 3, s{sTMP + 2}")
        b(f"ds_write_b64 v{vRK + j}, {vr(vK[j], 2)}")
    per_slot("Lm_wr", wr)
    a(f"""
    v_lshl_add_u32 v{vKA}, v{vLANE}, 3, s{sSTART}
    v_add_u32 v{vYA}, s{sSTART}, v{vYL}
    v_add_u32 v{vEA}, s{sSTART}, v{vEL}
    v_cndmask_b32 v{vT}, v{vT + 6}, v{vEA}, {sr(sTMP + 4, 2)}
    v_cndmask_b32 v{vEA}, v{vT + 7}, v{vEA}, {sr(sTMP + 4, 2)}
    v_mov_b32 v{vT + 4}, 0
    """)
    if o.kdef:
        a(f"""
    s_add_u32 s{sN}, s{sN}, 1
    s_lshr_b32 s{sN}, s{sN}, 1
    s_add_u32 s{sDEF}, s{sDEF}, 1
    s_lshr_b32 s{sDEF}, s{sDEF}, 1
    s_sub_u32 s{sDEF}, s{sN}, s{sDEF}
    s_min_u32 s{sDEF}, s{sDEF}, {o.kdef}
    s_add_u32 s{sRND}, s{sRND}, {2 * SLOTS}
    s_cmp_lt_u32 s{sRND}, s{sMAX}
    s_cselect_b32 s{sDEF}, 0, s{sDEF}
    s_cmp_gt_u32 s{sBIG}, {ENT_OWN - 64}
    s_cselect_b32 s{sDEF}, 0, s{sDEF}
    s_cmp_eq_u32 s{sN}, s{sDEF}
    s_cselect_b32 s{sDEF}, 0, s{sDEF}
    s_sub_u32 s{sN}, s{sN}, s{sDEF}
    s_and_b32 s{sRES}, s{sN}, 7
    s_mov_b64 vcc, 0
        """)
    else:
        a(f"""
        s_add_u32 s{sN}, s{sN}, {o.gran - 1}
        s_lshr_b32 s{sN}, s{sN}, {o.gran // 2}
        s_add_u32 s{sRND}, s{sRND}, {2 * SLOTS}
        """)
    a(f"""
    s_waitcnt lgkmcnt(0)
    s_barrier
    """)
    stamp(a, o, 9)
    vK0, vPE0, vEF0 = vT + 3, vT + 2, vTP
    a(f"""
    ds_read_b32 v{vK0}, v{vKA}
    ds_read_b32 v{vPE0}, v{vT} offset:4
    ds_read_b32 v{vPE}, v{vEA} offset:{4 + 32}
    ds_read_b32 v{vPY}, v{vYA} offset:4
    ds_read_b32 v{vKEY}, v{vKA} offset:{8 * D}
    ds_write_b32 v{vT + 1}, v{vT + 4} offset:{L_BIN}
    s_waitcnt lgkmcnt(5)
    """)
    for i in range(D + 2):
        a(f"v_readlane_b32 s{sRING + i}, v{vK0}, {i}")
    for i in range(D):
        a(f"s_and_b32 s{sOFF}, s{sRING + i}, 0xfffffc00")
        a(f"buffer_load_dwordx4 {vr(vXB + 4 * i, 4)}, v{vL16}, {sr(sX, 4)}, s{sOFF} offen")
    a(f"""
    s_waitcnt lgkmcnt(2)
    ds_read2_b64 {vr(vEF0, 4)}, v{vPE0} offset0:1 offset1:1
    ds_read_b64 {vr(vYN, 2)}, v{vPY}
    ds_read2_b64 {vr(vEF, 4)}, v{vPE} offset0:1 offset1:1
    s_and_b32 s{sOFF}, s{sRING + D}, 0xfffffc00
    s_and_b32 s{sOFF + 1}, s{sRING + D + 1}, 0xfffffc00
    s_add_u32 s{sTMP + 2}, s{sW}, 1
    s_and_b32 s{sTMP + 2}, s{sTMP + 2}, 3
    s_lshl_b32 s{sTMP + 3}, s{sTMP + 2}, 13
    v_add_u32 v{vT + 4}, s{sTMP + 3}, v{vL16}
    s_lshl_b32 s{sTMP}, s{sW}, 4
    s_and_b32 s{sTMP + 1}, s{sW}, 4
    s_lshl_b32 s{sTMP + 1}, s{sTMP + 1}, 2
    v_lshrrev_b32 v{vT + 1}, 4, v{vLANE}
    v_lshl_add_u32 v{vT + 2}, v{vT + 1}, 2, s{sTMP}
    v_lshl_add_u32 v{vT + 5}, v{vT + 1}, 2, s{sTMP + 1}
    s_waitcnt lgkmcnt(0)
    ds_read_b32 v{vINV}, v{vT + 2} offset:{L_INV}
    ds_read_b32 v{vINV + 1}, v{vT + 5} offset:{L_INV + 128}
    """)
    for i in range(8):
        a(f"ds_read_b128 {vr(vWM + 4 * i, 4)}, v{vT + 4} offset:{L_WM + 1024 * i}")
    a(f"""
    s_cmp_eq_u32 s{sN}, 0
    s_cbranch_scc1 Lm_done
    s_sub_u32 s{sN}, s{sN}, 1
    """)

    def mz(h, ef):
        a(f"v_mfma_f32_32x32x16_bf16 {vr(vU + 16 * h, 16)}, {vr(ef, 4)}, {vr(vWR + 4 * h, 4)}, 0")

    def dot(n):
        i, p = n & 3, n >> 2
        c = f"v{vAT + i}" if p else "0"
        a(f"v_dot2_f32_bf16 v{vAT + i}, v{vYN + p}, v{vCG + 2 * i + p}, {c}")

    mz(0, vEF0)
    mz(1, vEF0)
    for n in range(8):
        dot(n)
    a(f"v_add_u32 v{vEA}, v{vEINC}, v{vEA}")
    a(f"v_add_u32 v{vYA}, 128, v{vYA}")
    a(f"v_add_u32 v{vKA}, 128, v{vKA}")
    a(f"v_cvt_pk_bf16_f32 v{vA}, v{vAT}, v{vAT + 1}")
    a(f"v_cvt_pk_bf16_f32 v{vA + 1}, v{vAT + 2}, v{vAT + 3}")
    tmp = vTP + 8
    for r in range(8):
        a(f"v_exp_f32 v{tmp + r}, v{vU + 16 * (r >> 2) + (r & 3)}")
    a("s_nop 0")
    for r in range(0, 8, 2):
        a(f"v_pk_add_f32 {vr(tmp + r, 2)}, {vr(tmp + r, 2)}, 1.0 op_sel_hi:[1,0]")
    for r in range(8):
        a(f"v_rcp_f32 v{tmp + r}, v{tmp + r}")
    a("s_nop 0")
    for r in range(0, 8, 2):
        a(f"v_pk_mul_f32 {vr(vR + r, 2)}, {vr(vU + 16 * (r >> 2) + (r & 3), 2)}, {vr(tmp + r, 2)}")
    mz(0, vEF)
    a("s_nop 7")
    stamp(a, o, 10)
    if o.yprio:
        a(f"""
        {"s_setprio 1" if o.lowp else ""}
        s_cmp_lt_u32 s{sW}, 4
        s_cbranch_scc1 Lm_loop
        s_setprio {2 if o.lowp else 1}
        """)
    a(".p2align 6")
    a("Lm_loop:")
    for P in range(8):
        g, hf = P >> 1, P & 1
        i0 = 2 * P
        sn = vU + 16 * hf + 4 * g
        dn = vR + 8 * ((g + 1) & 1) + 4 * hf
        cur = vR + 8 * (g & 1) + 2 * hf
        if o.kdef:
            a(f"s_cbranch_vccnz Lm_r{P}")
        a(f"s_waitcnt vmcnt({D - 2})")
        for k in range(2):
            a(f"buffer_load_dwordx4 {vr(vXB + 4 * ((i0 + k + D) & 7), 4)}, v{vL16}, {sr(sX, 4)}, s{sOFF + k} offen")
        a(f"Lm_r{P}:")
        for k in range(2):
            xb = vXB + 4 * ((i0 + k) & 7)
            for h in range(2):
                a(f"v_mfma_f32_4x4x4_16b_bf16 {vr(vTP + 8 * k + 4 * h, 4)}, {vr(vA, 2)}, {vr(xb + 2 * h, 2)}, 0 cbsz:4 abid:{i0 + k}")
                a(f"v_exp_f32 v{vE + 2 * k + h}, v{sn + 2 * k + h}")
        if P == 0:
            a("s_waitcnt lgkmcnt(0)")
        for k in range(2):
            a(f"v_readlane_b32 s{sRING + ((i0 + k + D + 2) & 15)}, v{vKEY}, {i0 + k + 2}")
        for k in range(2):
            a(f"v_pk_add_f32 {vr(vE + 2 * k, 2)}, {vr(vE + 2 * k, 2)}, 1.0 op_sel_hi:[1,0]")
        if P == 0:
            mz(1, vEF)
        if P == 7:
            mz(0, vEF)
        for r in range(4):
            a(f"v_rcp_f32 v{vE + r}, v{vE + r}")
        for r in range(o.pad):
            a(f"v_mov_b32 v{vT}, v{vT + 1}")
        if P == 0:
            a(f"ds_read_b32 v{vPY}, v{vYA} offset:4")
            a(f"ds_read_b32 v{vPE}, v{vEA} offset:{4 + 32}")
        if P == 1:
            a("s_waitcnt lgkmcnt(0)")
            a(f"ds_read_b64 {vr(vYN, 2)}, v{vPY}")
            a(f"ds_read2_b64 {vr(vEF, 4)}, v{vPE} offset0:1 offset1:1")
        if P == 7:
            a(f"ds_read_b32 v{vKEY}, v{vKA} offset:{8 * D}")
        for k in range(2):
            a(f"s_and_b32 s{sOFF + k}, s{sRING + ((i0 + k + D + 2) & 15)}, 0xfffffc00")
        for k in range(2):
            a(f"s_set_gpr_idx_on s{sRING + i0}, 0xc" if k == 0 else f"s_set_gpr_idx_idx s{sRING + i0 + 1}")
            for q in range(4):
                a(f"v_pk_fma_f32 {vr(vACC + 2 * q, 2)}, {vr(cur + 4 * (q >> 1), 2)}, {vr(vTP + 8 * k + 2 * q, 2)}, "
                  f"{vr(vACC + 2 * q, 2)} op_sel:[{k},0,0] op_sel_hi:[{k},1,1]")
        a("s_set_gpr_idx_off")
        for k in range(2):
            a(f"v_pk_mul_f32 {vr(dn + 2 * k, 2)}, {vr(sn + 2 * k, 2)}, {vr(vE + 2 * k, 2)}")
        if P == 1:
            a(f"v_add_u32 v{vEA}, v{vEINC}, v{vEA}")
            a(f"v_add_u32 v{vYA}, 128, v{vYA}")
        if P == 2:
            a("s_waitcnt lgkmcnt(0)")
        if 2 <= P < 6:
            dot(2 * (P - 2))
            dot(2 * (P - 2) + 1)
        if P == 7:
            a(f"""
            v_cvt_pk_bf16_f32 v{vA}, v{vAT}, v{vAT + 1}
            v_cvt_pk_bf16_f32 v{vA + 1}, v{vAT + 2}, v{vAT + 3}
            v_add_u32 v{vKA}, 128, v{vKA}
            """)
        if o.gran == 2 or hf:
            a(f"s_sub_u32 s{sN}, s{sN}, 1")
            a("s_cbranch_scc1 Lm_done" if P < 7 else "s_cbranch_scc0 Lm_loop")
    a(f"""
    Lm_done:
    {"s_cbranch_vccnz Lm_final" if o.kdef else ""}
    """)
    stamp(a, o, 11)
    a(f"""
    s_cmp_lt_u32 s{sRND}, s{sMAX}
    s_cbranch_scc1 Lm_next
    s_cmp_gt_u32 s{sBIG}, {ENT_OWN - 64}
    s_cbranch_scc1 Lm_big
    Lm_small:
    {"s_setprio 0" if o.lowp else ""}
    {"s_barrier" if o.sbar == 1 else ""}
    """)
    c = Asm()
    c(f"""
    Lm_next:
    s_setprio 0
    s_waitcnt vmcnt(0) lgkmcnt(0)
    s_barrier
    v_subrev_u32 v{vREM}, {2 * SLOTS}, v{vREM}
    v_add_u32 v{vREC16}, {32 * SLOTS}, v{vREC16}
    s_branch Lm_round
    Lm_big:
    s_waitcnt lgkmcnt(0)
    s_barrier
    s_branch Lm_small
    """)
    a.cold += c.lines

    def to_lds(s, vaddr, off):
        acc = vACC + 8 * s
        for r in range(0, 8, 2):
            a(f"v_pk_mul_f32 {vr(acc + r, 2)}, {vr(acc + r, 2)}, {sr(sLN2, 2)} op_sel_hi:[1,0]")
        for r in range(4):
            a(f"v_cvt_pk_bf16_f32 v{acc + r}, v{acc + r}, v{acc + 4 + r}")
        for r in range(4):
            a(f"ds_write_b32 v{vaddr}, v{acc + r} offset:{off + r * ROWB}")

    def fin_ops(d, vaddr, soff):
        ops = [f"v_cvt_pk_bf16_f32 v{d + r}, v{d + 2 * r}, v{d + 2 * r + 1}" for r in range(4)]
        ops.append(f"buffer_store_dwordx4 {vr(d, 4)}, v{vaddr}, {sr(sO, 4)}, s{soff} offen sc1")
        return ops

    def mix(d, b, ops, wait):
        n = 0
        for s in range(4):
            if wait[s] is not None:
                a(f"s_waitcnt lgkmcnt({wait[s]})")
            for t in range(2):
                cc = vr(d + 4 * t, 4) if s else "0"
                a(f"v_mfma_f32_16x16x32_bf16 {vr(d + 4 * t, 4)}, {vr(vTP + 4 * s, 4)}, {vr(b + 8 * s + 4 * t, 4)}, {cc}")
                n += 1
                if n >= 3:
                    for _ in range(2):
                        if ops:
                            a(ops.pop(0))

    vB = [vWM, vACC + 8]
    a("s_waitcnt lgkmcnt(0)")
    if o.early0:
        a(f"""
        s_mul_i32 s{sT}, s{sW}, {-12 * ROWB & 0xffffffff}
        v_add_u32 v{vT}, s{sT}, v{vAGW}
        """)
        to_lds(0, vT, 128 * ROWB)
    for s in range(1, 5):
        to_lds(s, vAGW, (s - 1) * 4 * ROWB)
        if s == 2:
            a("s_waitcnt lgkmcnt(4)")
    a(f"""
    v_and_b32 v{vT + 3}, 15, v{vLANE}
    s_lshl_b32 s{sT}, s{sNODE}, 10
    v_lshl_add_u32 v{vT + 3}, v{vT + 3}, 4, s{sT}
    v_lshl_add_u32 v{vINV}, v{vINV}, 18, v{vT + 3}
    v_lshl_add_u32 v{vINV + 1}, v{vINV + 1}, 18, v{vT + 3}
    """)
    for k in range(4):
        a(f"""
        s_add_u32 s{sTMP + k}, s{sW}, {k + 1}
        s_and_b32 s{sTMP + k}, s{sTMP + k}, 3
        s_lshl_b32 s{sT}, s{sTMP + k}, 13
        s_lshl_b32 s{sTMP + k}, s{sTMP + k}, 8
        """)
        if k:
            a(f"v_add_u32 v{vT + 4 + k}, s{sT}, v{vL16}")
    a("s_waitcnt lgkmcnt(0)")
    for s in range(4):
        a(f"ds_read_b128 {vr(vTP + 4 * s, 4)}, v{vAGR} offset:{64 * s}")

    def rdb(k):
        for i in range(8):
            a(f"ds_read_b128 {vr(vB[k & 1] + 4 * i, 4)}, v{vT + 4 + k} offset:{L_WM + 1024 * i}")
    rdb(1)
    if o.sbar == 2:
        a("s_barrier")
    mix(vD, vB[0], [], [11, 10, 9, 8])
    for k in range(1, 4):
        a("s_waitcnt lgkmcnt(6)")
        if k < 3:
            rdb(k + 1)
            w = [None, 12, 10, 8]
        else:
            a("s_nop 5")
            w = [None, 4, 2, 0]
        mix(vD + 8 * (k & 1), vB[k & 1], fin_ops(vD + 8 * ((k - 1) & 1), vINV, sTMP + k - 1), w)
    a("s_nop 7")
    for op in fin_ops(vD + 8, vINV, sTMP + 3):
        a(op)
    if o.kdef:
        a(f"""
        s_cmp_eq_u32 s{sDEF}, 0
        s_cbranch_scc1 Lm_final
        s_sub_u32 s{sN}, s{sDEF}, 1
        s_mov_b64 vcc, -1
        s_waitcnt vmcnt(4)
        """)
        for P in range(7):
            a(f"s_cmp_eq_u32 s{sRES}, {P}")
            a(f"s_cbranch_scc1 Lm_r{P}")
        a("s_branch Lm_r7")
    a(f"""
    Lm_final:
    s_setprio 0
    s_mul_i32 s{sT}, s{sW}, {-12 * ROWB & 0xffffffff}
    v_add_u32 v{vAGW}, s{sT}, v{vAGW}
    """)
    if not o.early0:
        to_lds(0, vAGW, 128 * ROWB)
    a(f"""
    s_lshr_b32 s{sT}, s{sW}, 2
    s_sub_u32 s{sT}, s{sT}, s{sW}
    s_mul_i32 s{sT}, s{sT}, {16 * ROWB}
    v_add_u32 v{vAGR}, s{sT}, v{vAGR}
    s_waitcnt lgkmcnt(0)
    s_barrier
    """)
    stamp(a, o, 12)
    for s in range(4):
        a(f"ds_read_b128 {vr(vTP + 4 * s, 4)}, v{vAGR} offset:{128 * ROWB + 64 * s}")
    mix(vD, vB[1], [], [3, 2, 1, 0])
    a("s_nop 7")
    for op in fin_ops(vD, vINV + 1, sTMP + 3):
        a(op)
    a(f"""
    s_or_b32 s{sT}, s2, s{sW}
    s_cmp_lg_u32 s{sT}, 0
    s_cbranch_scc1 Lm_noep
    v_mov_b32 v{vT}, {WS_EPOCH}
    v_mov_b32 v{vT + 1}, s{sTAG}
    s_mov_b64 exec, 1
    global_store_dword v{vT}, v{vT + 1}, {sr(sWS, 2)} sc1
    Lm_noep:
    """)
    if o.stamps and o.stamps != 5:
        a("s_waitcnt vmcnt(0)")
    stamp(a, o, 13)
    stamp_flush(a, o, 14)
    a(f"""
    Lm_end:
    s_endpgm
    """)
    a.lines += a.cold
    a(f"""
    Lm_re0:
    {cnt(11)}
    s_sub_u32 s{sSPIN}, s{sSPIN}, 1
    s_cbranch_scc0 Lm_g0
    s_endpgm
    Lm_re1:
    {cnt(12)}
    s_sub_u32 s{sSPIN}, s{sSPIN}, 1
    s_cbranch_scc1 Lm_end
    """)
    for j in range(SLOTS):
        a(f"s_mov_b64 exec, {sr(sM + 2 * j, 2)}")
        a("s_cbranch_execz Lm_rl1")
        ldg1(a, j)
    a(f"""
    Lm_rl1:
    s_mov_b64 exec, -1
    s_mov_b64 {sr(sBAD, 2)}, 0
    s_waitcnt vmcnt(0) lgkmcnt(0)
    s_branch Lm_g1
    """)
    a(".p2align 2")
    a(".type tfn_deal_table,@object")
    a("tfn_deal_table:")
    nb = 7 if o.ndef else 8
    for asg in json.load(open(os.path.join(HERE, "part.json")))[str(o.bias)]:
        used = [0] * 8
        vals = []
        for w in asg:
            sl = used[w]
            used[w] += 1
            p = 32 + w if sl == 0 else 4 * w + sl - 1
            vals.append((9 if sl == 0 else 6) | w * 32 | (sl * 8) << 16 | (p * 4) << 24)
        vals += [0] * 24
        for l in range(64):
            if l < o.npre:
                b = int((l + 0.5) * o.sched / o.npre)
            else:
                b = int((l - o.npre + 0.5) * nb / (64 - o.npre))
            vals[l] |= b << 8 | (7 if l >= 64 - o.ndef else b) << 11
        for lo in range(0, 64, 8):
            a(".long " + ", ".join("%#x" % v for v in vals[lo:lo + 8]))
    a(".size tfn_deal_table, 512")


def generate(o):
    if not o.ndef:
        o.kdef = 0
    a = Asm()
    ref = open(f"cdna_kernels/{NAME}.s.ref").read().split("\n")
    for ln in ref:
        if ln.startswith("; Override"):
            break
        a.lines.append(ln)
    kerns = [(NAME + "_kernel", NV)]
    diag = o.stamps in (1, 5)
    if diag:
        a.lines.append(f"; @launch kernel={NAME}_kernel grid=(256,1,1) block=(512,1,1) lds={L_END}")
        a.lines.append("; @launch kernel=diag_end_kernel grid=(1,1,1) block=(64,1,1) lds=0")
    else:
        a.lines.append(f"; @launch grid=(256,1,1) block=(512,1,1) lds={L_END}")
    a('.amdgcn_target "amdgcn-amd-amdhsa--gfx950"')
    a(".text")
    gen_main(a, o)
    if diag:
        kerns.append(("diag_end_kernel", 8))
        a(f"""
        .p2align 8
        .globl diag_end_kernel
        .type diag_end_kernel,@function
        diag_end_kernel:
        s_memrealtime s[8:9]
        s_load_dwordx2 s[4:5], s[0:1], 80
        v_mov_b32 v1, {WS_STAMP + 2 * 0x80000}
        s_waitcnt lgkmcnt(0)
        v_mov_b32 v2, s8
        global_store_dword v1, v2, s[4:5]
        s_endpgm
        """)
    a('.section .rodata,"a"')
    for kn, v in kerns:
        a(f"""
        .p2align 6
        .amdhsa_kernel {kn}
        .amdhsa_next_free_vgpr {v}
        .amdhsa_next_free_sgpr 102
        .amdhsa_accum_offset {v}
        .amdhsa_group_segment_fixed_size 0
        .amdhsa_kernarg_size 88
        .amdhsa_user_sgpr_count 2
        .amdhsa_user_sgpr_kernarg_segment_ptr 1
        .amdhsa_system_sgpr_workgroup_id_x 1
        .amdhsa_float_denorm_mode_32 3
        .end_amdhsa_kernel
        """)
    return a.text()


if __name__ == "__main__":
    o = Opt()
    out = sys.argv[1]
    for kv in sys.argv[2:]:
        k, v = kv.split("=")
        assert hasattr(o, k), k
        setattr(o, k, int(v) if v.lstrip("-").isdigit() else v.replace("+", " "))
    open(out, "w").write(generate(o))
```

```python
import json
import os
import struct
import sys

NAME = "gather_scatter__tensor_product_equiv_tfn__graph"
HERE = os.path.dirname(os.path.abspath(__file__))
N, E = 10000, 160000
NPROD, CH = 250, 640
XBYTES = N * 1024

WS_TAB = 0
WS_REC = 0x80000
CHB = CH * 32 + 128
WS_EPOCH = WS_REC + CH * 32 + CHB
WS_STAMP = 0x800000

SLOTS = 8
HOT = 4
NOBR = 3

L_DEG, L_BIN, L_MAX, L_ZERO, L_NULL, L_TAG, L_MAP, L_INV = 0, 256, 512, 528, 544, 560, 768, 1024
L_CNT = 576
L_HIST, L_START = 1280, 2304
L_CG, L_WR = 3328, 3584
L_WM = 5632
L_PAY = L_WM + 32768
L_ENT = L_PAY + SLOTS * 512 * 16
ENT_OWN = 1024
L_AGG = L_ENT + ENT_OWN * 8
ROWB = 288
L_END = L_AGG + 160 * ROWB
L_STAGE = L_AGG
assert (256 * 2 * SLOTS + 8 * 16 + 64) * 8 <= L_END - L_ENT
assert L_END <= 163840


def f32(x):
    return struct.unpack("<I", struct.pack("<f", x))[0]


class Opt:
    stamps = 0
    dbgidx = 13
    slp = -1
    slpn = 10
    D = 6
    pfa = 1
    pf2 = 4
    npre = 8
    sched = 3
    ndef = 0
    kdef = 3
    bias = -4
    yprio = 1
    xbal = 1
    stage2 = 1
    wm2 = 0
    hoist = 1
    split = 0
    ipad = 0
    tail = 1
    xbar = 0
    pfe = 0
    pfew = 2
    pad = 0
    lowp = 1
    gran = 2
    early0 = 1
    sbar = 0
    spin = 1 << 16


class Asm:
    def __init__(self):
        self.lines = []
        self.cold = []

    def __call__(self, s=""):
        for ln in s.split("\n"):
            ln = ln.strip()
            if not ln:
                continue
            self.lines.append(ln if ln.endswith(":") or ln.startswith(".") or ln.startswith(";") else "    " + ln)

    def text(self):
        return "\n".join(self.lines) + "\n"


def vr(a, n=1):
    return "v%d" % a if n == 1 else "v[%d:%d]" % (a, a + n - 1)


def sr(a, n=1):
    return "s%d" % a if n == 1 else "s[%d:%d]" % (a, a + n - 1)


def wave_scan(a, v):
    steps = [f"{c} row_mask:0xf bank_mask:0xf bound_ctrl:1" for c in ("row_shr:1", "row_shr:2", "row_shr:4", "row_shr:8")]
    steps += ["row_bcast:15 row_mask:0xa bank_mask:0xf", "row_bcast:31 row_mask:0xc bank_mask:0xf"]
    for c in steps:
        a("s_nop 1")
        a(f"v_add_u32_dpp v{v}, v{v}, v{v} {c}")


sSPIN = 3
sX, sO = 20, 24
sWS, sREC = 28, 30
sQ, sW, sRND, sMAX, sSTART, sN, sOFF, sT = 32, 33, 34, 35, 36, 37, 38, 40
sTAG, sBIG, sPF = 41, 42, 43
sRING = 44
sM = 60
sTMP = 76
sLN2 = 86
sROT = 87
sST = 88
sRO2, sDEF, sBAD, sRES = 6, 7, 8, 13

vL16, vLANE, vREC4, vREC16, vREM, vONE = 1, 2, 3, 4, 5, 6
vKA, vEA, vYA, vEINC = 7, 8, 9, 10
vKEY, vPE, vPY, vPFA = 11, 12, 13, 14
vPF = 15
vEF, vYN, vA = 16, 20, 22
vAT = 24
vE = 28
vT = 32
vWR = 40
vCG = 48
vTP = 56
vR = 72
vXB = 88
vU = 120
vACC = 152
vREC1, vTAB, vTA, vEL = 192, 193, 194, 195
vS1 = 196
vINV = 196
vYL, vAGW, vAGR = 204, 205, 206
vWM = 208
vD = 240
NV = 256


def stamp(a, o, idx):
    if o.stamps and o.slp == idx:
        a(f"s_sleep {o.slpn}")
    if o.stamps and (o.stamps < 3 or idx == 0 or (o.stamps == 4 and idx == o.dbgidx)):
        a(f"""
        s_memrealtime {sr(sTMP + 8, 2)}
        s_waitcnt lgkmcnt(0)
        s_mov_b32 s{sST + idx}, s{sTMP + 8}
        """)


def stamp_flush(a, o, n):
    if not o.stamps:
        return
    if o.stamps == 5:
        a(f"""
        s_cmp_lg_u32 s{sW}, 0
        s_cbranch_scc1 Lm_end
        s_mov_b64 exec, 1
        s_lshl_b32 s3, s2, 10
        s_add_u32 s3, s3, {WS_STAMP + 0x80000}
        v_mov_b32 v{vT}, s3
        v_mov_b32 v{vT + 1}, s{sST}
        global_store_dword v{vT}, v{vT + 1}, {sr(sWS, 2)} sc1
        """)
        return
    if o.stamps == 4:
        a(f"""
        s_sub_u32 s4, s{sST + o.dbgidx}, s{sST}
        s_min_u32 s4, s4, 4000
        s_mul_i32 s4, s4, 40
        s_mov_b32 s5, 0
        Ldbg_spin:
        s_sleep 8
        s_memrealtime s[6:7]
        s_waitcnt lgkmcnt(0)
        s_sub_u32 s6, s6, s{sST}
        s_add_u32 s5, s5, 1
        s_cmp_ge_u32 s5, 20000
        s_cbranch_scc1 Lm_end
        s_cmp_lt_u32 s6, s4
        s_cbranch_scc1 Ldbg_spin
        """)
        return
    a(f"""
    s_mov_b64 exec, -1
    s_lshl_b32 s3, s2, 4
    s_add_u32 s3, s3, s{sW}
    s_lshl_b32 s3, s3, 6
    s_add_u32 s3, s3, {WS_STAMP + 0x80000}
    v_mov_b32 v{vT}, s3
    """)
    for i in range(n):
        a(f"v_mov_b32 v{vT + 1}, s{sST + i}")
        a(f"global_store_dword v{vT}, v{vT + 1}, {sr(sWS, 2)} offset:{4 * i}")
        a("s_nop 1")
    a(f"""
    s_lshl_b32 s11, s11, 8
    s_lshl_b32 s12, s12, 16
    s_or_b32 s10, s10, s11
    s_or_b32 s10, s10, s12
    v_mov_b32 v{vT + 1}, s10
    global_store_dword v{vT}, v{vT + 1}, {sr(sWS, 2)} offset:56
    """)


def prefetch(a, k, done, hi=False):
    if not k:
        return
    a(f"""
    s_mul_i32 s{sTMP + 4}, s{sPF}, {k * 8192}
    s_add_u32 s{sTMP + 4}, s{sTMP + 4}, {(done * 262144 - ((8 - k) * 8192 if hi else 0)) & 0xffffffff}
    s_add_u32 s{sTMP + 4}, s{sTMP + 4}, s{sRO2}
    {f"s_cmp_ge_u32 s{sW}, {8 - k}" if hi else f"s_cmp_lt_u32 s{sW}, {k}"}
    s_cselect_b32 s{sTMP + 4}, s{sTMP + 4}, {XBYTES}
    v_add_u32 v{vTA}, s{sTMP + 4}, v{vPFA}
    buffer_load_dword v{vPF}, v{vTA}, {sr(sX, 4)}, 0 offen
    """)


def side_loads(a):
    a(f"""
    s_cmp_lg_u32 s{sW}, 7
    s_cbranch_scc1 Lside_a
    v_lshlrev_b32 v{vT}, 2, v{vLANE}
    global_load_dword v{vTP}, v{vT}, s[14:15]
    global_load_dword v{vTP + 1}, v{vT}, s[14:15] offset:256
    global_load_dword v{vTP + 2}, v{vT}, s[14:15] offset:512
    global_load_dword v{vTP + 3}, v{vT}, s[14:15] offset:768
    Lside_a:
    s_cmp_lg_u32 s{sW}, 6
    s_cbranch_scc1 Lside_b
    v_bfe_u32 v{vT}, v{vLANE}, 3, 2
    v_and_b32 v{vT + 1}, 7, v{vLANE}
    v_lshl_add_u32 v{vT}, v{vT + 1}, 3, v{vT}
    v_lshlrev_b32 v{vT}, 1, v{vT}
    global_load_ushort v{vTP}, v{vT}, s[16:17]
    global_load_ushort v{vTP + 1}, v{vT}, s[16:17] offset:8
    Lside_b:
    s_cmp_lg_u32 s{sW}, 5
    s_cbranch_scc1 Lside_t
    s_mov_b64 exec, 0xff
    s_lshl_b32 s{sTMP}, s{sPF}, 10
    v_lshl_add_u32 v{vT}, v{vLANE}, 7, s{sTMP}
    global_load_dword v{vPF}, v{vT}, s[18:19]
    s_mov_b64 exec, -1
    Lside_t:
    """)


def side_finish(a):
    g = vTP + 4
    out = vR
    a(f"""
    s_cmp_lg_u32 s{sW}, 7
    s_cbranch_scc1 Lside_c
    s_mov_b32 s{sT}, {f32(-1.4426950408889634):#x}
    """)
    for k in range(4):
        a(f"v_lshlrev_b32 v{g + k}, 16, v{vTP + k}")
        a(f"v_and_b32 v{g + 4 + k}, 0xffff0000, v{vTP + k}")
    for k in range(8):
        a(f"v_mul_f32 v{g + k}, s{sT}, v{g + k}")
    for h in range(2):
        for p in range(2):
            g0 = g + 4 * h + 2 * p
            hi = out + 4 * h + p
            a(f"""
            v_cvt_pk_bf16_f32 v{hi}, v{g0}, v{g0 + 1}
            v_lshlrev_b32 v{vT}, 16, v{hi}
            v_and_b32 v{vT + 1}, 0xffff0000, v{hi}
            v_sub_f32 v{vT}, v{g0}, v{vT}
            v_sub_f32 v{vT + 1}, v{g0 + 1}, v{vT + 1}
            v_cvt_pk_bf16_f32 v{hi + 2}, v{vT}, v{vT + 1}
            """)
    a(f"""
    ds_write_b128 v{vL16}, {vr(out, 4)} offset:{L_WR}
    ds_write_b128 v{vL16}, {vr(out + 4, 4)} offset:{L_WR + 1024}
    Lside_c:
    s_cmp_lg_u32 s{sW}, 6
    s_cbranch_scc1 Lside_d
    v_lshl_or_b32 v{vTP}, v{vTP + 1}, 16, v{vTP}
    v_lshlrev_b32 v{vT}, 2, v{vLANE}
    ds_write_b32 v{vT}, v{vTP} offset:{L_CG}
    v_mov_b32 v{vT}, {XBYTES}
    v_mov_b32 v{vT + 1}, {L_ZERO}
    v_mov_b32 v{vT + 2}, 0
    ds_write_b64 v{vT + 2}, {vr(vT, 2)} offset:{L_NULL}
    Lside_d:
    """)


def wmix_loads(a, vunit, raw):
    a(f"""
    v_lshrrev_b32 v{vT}, 5, v{vunit}
    v_and_b32 v{vT + 1}, 31, v{vunit}
    v_lshlrev_b32 v{vT}, 11, v{vT}
    v_lshl_add_u32 v{vT}, v{vT + 1}, 3, v{vT}
    """)
    for j in range(8):
        a(f"global_load_dwordx2 {vr(raw + 2 * j, 2)}, v{vT}, s[18:19] offset:{256 * j}")


def wmix_finish(a, vunit, raw, frag):
    a(f"""
    v_bfe_u32 v{vT}, v{vunit}, 3, 2
    v_lshrrev_b32 v{vT + 1}, 7, v{vunit}
    v_lshlrev_b32 v{vT}, 13, v{vT}
    v_lshl_add_u32 v{vT}, v{vT + 1}, 11, v{vT}
    v_bfe_u32 v{vT + 1}, v{vunit}, 5, 2
    v_lshl_add_u32 v{vT}, v{vT + 1}, 8, v{vT}
    v_and_b32 v{vT + 1}, 7, v{vunit}
    v_lshl_add_u32 v{vT}, v{vT + 1}, 5, v{vT}
    """)
    for nn in range(2):
        for t in range(2):
            f = frag + 4 * (2 * nn + t)
            for jj in range(4):
                a(f"v_perm_b32 v{f + jj}, v{raw + 2 * (2 * jj + 1) + nn}, v{raw + 2 * (2 * jj) + nn}, s{sTMP + t}")
            a(f"ds_write_b128 v{vT}, {vr(f, 4)} offset:{L_WM + 1024 * t + 16 * nn}")


WRAW = (vU, vU + 16, vWM)
WUNIT = (vKEY, vPE, vPY)
WFRAG = vWM + 16


def phase_a(a, o):
    vDS, vS, vY, vF = vXB, vXB + 2, vXB + 4, vXB + 8
    vQ, vRK, vKK, vC, vSC, vTG = vXB + 12, vXB + 14, vXB + 16, vXB + 20, vXB + 24, vXB + 28
    a(f"""
    s_cmp_ge_u32 s2, 256
    s_cbranch_scc1 Lm_end
    """)
    stamp(a, o, 0)
    a(f"""
    s_load_dwordx16 s[4:19], s[0:1], 0
    s_load_dwordx2 {sr(sWS, 2)}, s[0:1], 80
    s_load_dwordx2 {sr(sO, 2)}, s[0:1], 64
    s_getpc_b64 {sr(sTMP + 2, 2)}
    La_pc:
    s_lshr_b32 s{sPF}, s2, 3
    s_mul_i32 s{sTMP}, s{sPF}, 512
    s_sub_u32 s{sTMP}, s{sTMP}, {508 * 128}
    v_lshl_add_u32 v{vT}, v0, 7, s{sTMP}
    v_min_u32 v{vT}, tfn_deal_table+508-La_pc, v{vT}
    v_cmp_lt_u32 vcc, 507, v0
    s_and_saveexec_b64 {sr(sTMP + 4, 2)}, vcc
    s_cbranch_execz La_notouch
    global_load_dword v{vPF}, v{vT}, {sr(sTMP + 2, 2)}
    La_notouch:
    s_mov_b64 exec, -1
    v_lshrrev_b32 v{vT}, 6, v0
    v_and_b32 v{vLANE}, 63, v0
    v_readfirstlane_b32 s{sW}, v{vT}
    v_mov_b32 v{vT}, 0
    v_mov_b32 v{vT + 1}, 0
    v_lshlrev_b32 v{vT + 7}, 3, v0
    ds_write_b64 v{vT + 7}, {vr(vT, 2)}
    v_lshlrev_b32 v{vL16}, 4, v{vLANE}
    v_mov_b32 v{vONE}, 1
    s_mul_i32 s3, s2, {CH * 4}
    v_add_u32 v{vT + 3}, s3, v{vT + 7}
    v_lshlrev_b32 v{vT + 4}, 1, v{vT + 3}
    s_and_b32 s{sQ}, s2, 7
    s_lshl_b32 s{sQ}, s{sQ}, 5
    s_or_b32 s{sQ}, s{sQ}, s{sPF}
    v_lshlrev_b32 v{vPFA}, 7, v0
    s_mov_b32 s{sX + 2}, {XBYTES}
    s_mov_b32 s{sX + 3}, 0x20000
    s_mov_b32 s{sO + 2}, {XBYTES}
    s_mov_b32 s{sO + 3}, 0x20000
    s_mov_b32 s{sRND}, 0
    v_mov_b32 v{vEL}, {WS_EPOCH}
    v_mov_b32 v{vYL}, {L_TAG}
    s_mov_b32 s{sLN2}, {f32(-0.6931471805599453):#x}
    s_lshl_b32 s{sT}, s2, 11
    v_lshl_add_u32 v{vT + 6}, v0, 4, s{sT}
    s_cmp_lt_u32 s2, {NPROD}
    s_cselect_b32 s{sT}, 5, 0
    s_cmp_lt_u32 s{sW}, s{sT}
    s_cselect_b32 s{sBIG}, 1, 0
    s_waitcnt lgkmcnt(0)
    s_cbranch_scc0 La_noload
    global_load_dwordx2 {vr(vDS, 2)}, v{vT + 3}, s[8:9]
    La_noload:
    s_cmp_lg_u32 s{sW}, 5
    s_cbranch_scc1 La_notag
    global_load_dword v{vEL}, v{vEL}, {sr(sWS, 2)} sc1
    La_notag:
    s_add_u32 s{sREC}, s{sWS}, {WS_REC}
    s_addc_u32 s{sREC + 1}, s{sWS + 1}, 0
    s_mov_b32 s{sX}, s4
    s_and_b32 s{sX + 1}, s5, 0xffff
    s_and_b32 s{sO + 1}, s{sO + 1}, 0xffff
    s_barrier
    s_cmp_eq_u32 s{sBIG}, 0
    s_cbranch_scc1 La_other
    global_load_dwordx2 {vr(vS, 2)}, v{vT + 3}, s[6:7]
    global_load_dwordx4 {vr(vY, 4)}, v{vT + 4}, s[10:11]
    global_load_dwordx4 {vr(vF, 4)}, v{vT + 4}, s[12:13]
    s_barrier
    """)

    def common(b):
        b(f"""
        s_and_b32 s{sRO2}, s2, 7
        s_sub_u32 s{sROT}, 8, s{sRO2}
        s_lshl_b32 s{sROT}, s{sROT}, 5
        s_mul_i32 s{sRO2}, s{sRO2}, {1261 * 1024}
        """)
    common(a)
    for i in range(40):
        a(f"v_mov_b32 v{vACC + i}, 0")
    a("s_waitcnt vmcnt(3)")
    stamp(a, o, 1)
    for k in range(2):
        if o.xbal:
            a(f"""
            v_bfe_u32 v{vQ + k}, v{vDS + k}, 3, 5
            v_and_b32 v{vT + k}, 7, v{vDS + k}
            v_lshlrev_b32 v{vQ + k}, 2, v{vQ + k}
            v_lshl_or_b32 v{vQ + k}, v{vT + k}, 7, v{vQ + k}
            """)
        else:
            a(f"""
            v_and_b32 v{vQ + k}, 255, v{vDS + k}
            v_lshlrev_b32 v{vQ + k}, 2, v{vQ + k}
            """)
        a(f"ds_add_rtn_u32 v{vRK + k}, v{vQ + k}, v{vONE} offset:{L_HIST}")
    a(f"""
    v_bfe_u32 v{vKK}, v{vDS}, 8, 6
    v_bfe_u32 v{vKK + 2}, v{vDS + 1}, 8, 6
    s_waitcnt lgkmcnt(0)
    s_barrier
    ds_read_b128 {vr(vC, 4)}, v{vL16} offset:{L_HIST}
    ds_read_b32 v{vTG}, v{vYL}
    ds_read_b64 {vr(vE, 2)}, v{vT + 7} offset:{L_HIST}
    s_mov_b32 s{sT}, {L_STAGE}
    s_waitcnt lgkmcnt(2)
    v_add_u32 v{vT}, v{vC}, v{vC + 1}
    v_add_u32 v{vT + 1}, v{vT}, v{vC + 2}
    v_add_u32 v{vT + 2}, v{vT + 1}, v{vC + 3}
    v_mov_b32 v{vT + 3}, v{vT + 2}
    """)
    wave_scan(a, vT + 3)
    a(f"""
    v_sub_u32 v{vSC}, v{vT + 3}, v{vT + 2}
    v_add_u32 v{vSC + 1}, v{vSC}, v{vC}
    v_add_u32 v{vSC + 2}, v{vSC}, v{vT}
    v_add_u32 v{vSC + 3}, v{vSC}, v{vT + 1}
    ds_write_b128 v{vL16}, {vr(vSC, 4)} offset:{L_START}
    ds_read_b64 {vr(vE + 2, 2)}, v{vT + 7} offset:{L_START}
    ds_read_b32 v{vT}, v{vQ} offset:{L_START}
    ds_read_b32 v{vT + 1}, v{vQ + 1} offset:{L_START}
    s_waitcnt lgkmcnt(4)
    v_readfirstlane_b32 s{sTAG}, v{vTG}
    v_mov_b32 v{vTG + 1}, v{vTG}
    v_mov_b32 v{vKK + 1}, v{vTG}
    v_mov_b32 v{vKK + 3}, v{vTG}
    v_mov_b32 v{vAT + 1}, v{vTG}
    v_mov_b32 v{vAT + 3}, v{vTG}
    """)
    if o.stage2:
        def keys(b):
            for k in range(2):
                b(f"""
                v_mul_u32_u24 v{vT + 4}, 13, v{vS + k}
                v_lshl_or_b32 v{vKK + 2 * k}, v{vS + k}, 10, v{vKK + 2 * k}
                v_lshrrev_b32 v{vT + 4}, 11, v{vT + 4}
                v_add_u32 v{vRK + k}, v{vRK + k}, v{vT + k}
                v_lshl_or_b32 v{vKK + 2 * k}, v{vT + 4}, 24, v{vKK + 2 * k}
                v_lshl_add_u32 v{vRK + k}, v{vRK + k}, 4, s{sT}
                v_add_u32 v{vQ + k}, {CH * 16}, v{vRK + k}
                """)
        a(f"""
        s_cmp_ge_u32 s{sW}, 2
        s_cbranch_scc1 La_notab
        s_waitcnt lgkmcnt(2)
        v_lshl_or_b32 v{vAT}, v{vE}, 16, v{vE + 2}
        v_lshl_or_b32 v{vAT + 2}, v{vE + 1}, 16, v{vE + 3}
        global_store_dwordx4 v{vT + 6}, {vr(vAT, 4)}, {sr(sWS, 2)} sc1
        s_waitcnt vmcnt(3) lgkmcnt(0)
        """)
        keys(a)
        a("""
        s_waitcnt vmcnt(2)
        s_branch La_tabdone
        La_notab:
        s_waitcnt vmcnt(2) lgkmcnt(0)
        """)
        keys(a)
        a("""
        s_waitcnt vmcnt(1)
        La_tabdone:
        """)
        for k in range(2):
            a(f"ds_write2_b64 v{vRK + k}, {vr(vKK + 2 * k, 2)}, {vr(vY + 2 * k, 2)} offset0:0 offset1:1")
    else:
        a(f"""
        s_cmp_ge_u32 s{sW}, 2
        s_cbranch_scc1 La_notab
        s_waitcnt lgkmcnt(2)
        v_lshl_or_b32 v{vAT}, v{vE}, 16, v{vE + 2}
        v_lshl_or_b32 v{vAT + 2}, v{vE + 1}, 16, v{vE + 3}
        global_store_dwordx4 v{vT + 6}, {vr(vAT, 4)}, {sr(sWS, 2)} sc1
        s_waitcnt vmcnt(1) lgkmcnt(0)
        s_branch La_tabdone
        La_notab:
        s_waitcnt vmcnt(0) lgkmcnt(0)
        La_tabdone:
        """)
        for k in range(2):
            a(f"""
            v_mul_u32_u24 v{vT + 4}, 13, v{vS + k}
            v_lshl_or_b32 v{vKK + 2 * k}, v{vS + k}, 10, v{vKK + 2 * k}
            v_lshrrev_b32 v{vT + 4}, 11, v{vT + 4}
            v_add_u32 v{vRK + k}, v{vRK + k}, v{vT + k}
            v_lshl_or_b32 v{vKK + 2 * k}, v{vT + 4}, 24, v{vKK + 2 * k}
            v_lshl_add_u32 v{vT + 2}, v{vRK + k}, 4, s{sT}
            v_add_u32 v{vT + 3}, {CH * 16}, v{vT + 2}
            ds_write2_b64 v{vT + 2}, {vr(vKK + 2 * k, 2)}, {vr(vY + 2 * k, 2)} offset0:0 offset1:1
            ds_write2_b64 v{vT + 3}, {vr(vF + 2 * k, 2)}, {vr(vTG, 2)} offset0:0 offset1:1
            """)
    c = Asm()
    c("""
    La_other:
    s_barrier
    """)
    side_loads(c)
    common(c)
    prefetch(c, o.pfa, 0, hi=True)
    for i in range(40):
        c(f"v_mov_b32 v{vACC + i}, 0")
    c(f"""
    v_subrev_u32 v{WUNIT[0]}, 320, v0
    v_subrev_u32 v{WUNIT[1]}, 128, v0
    v_add_u32 v{WUNIT[2]}, 64, v0
    s_cmp_lg_u32 s{sW}, 5
    s_cbranch_scc1 La_notag2
    s_waitcnt vmcnt({2 if o.pfa else 1})
    v_add_u32 v{vEL}, 0x9e3779b9, v{vEL}
    ds_write_b32 v{vYL}, v{vEL}
    s_waitcnt lgkmcnt(0)
    La_notag2:
    s_barrier
    ds_read_b32 v{vKK + 1}, v{vYL}
    s_cmp_ge_u32 s{sW}, 5
    s_cbranch_scc1 La_side
    v_mov_b32 v{vKK}, 0
    v_mov_b32 v{vKK + 2}, 0
    s_waitcnt lgkmcnt(0)
    v_readfirstlane_b32 s{sTAG}, v{vKK + 1}
    v_mov_b32 v{vKK + 3}, v{vKK + 1}
    s_cmp_ge_u32 s{sW}, 2
    s_cbranch_scc1 La_join
    global_store_dwordx4 v{vT + 6}, {vr(vKK, 4)}, {sr(sWS, 2)} sc1
    s_branch La_join
    La_side:
    """)
    ne = {0: 3, 1: 1, 2: 2, 3: 0}[o.wm2]
    for r in range(min(ne, 2)):
        wmix_loads(c, WUNIT[r], WRAW[r])
    c(f"""
    s_waitcnt lgkmcnt(0)
    v_readfirstlane_b32 s{sTAG}, v{vKK + 1}
    """)
    if ne == 3:
        c(f"""
        s_cmp_eq_u32 s{sW}, 7
        s_cbranch_scc1 La_join
        """)
        wmix_loads(c, WUNIT[2], WRAW[2])
    c("s_branch La_join")
    a.cold += c.lines
    a(f"""
    La_join:
    s_mov_b32 s{sT}, {L_STAGE}
    v_lshl_add_u32 v{vT + 4}, v0, 4, s{sT}
    s_mul_i32 s{sT}, s2, {CHB}
    v_lshl_add_u32 v{vT + 5}, v0, 4, s{sT}
    v_add_u32 v{vT + 6}, 8192, v{vT + 5}
    v_add_u32 v{vKA}, {CH * 16}, v{vT + 5}
    v_add_u32 v{vEA}, {CH * 16 + 8192}, v{vT + 5}
    s_waitcnt lgkmcnt(0)
    s_barrier
    """)
    stamp(a, o, 2)
    if o.stage2:
        g1w = "\n".join(f"ds_write2_b64 v{vQ + k}, {vr(vF + 2 * k, 2)}, {vr(vTG, 2)} offset0:0 offset1:1" for k in range(2))
        a(f"""
        s_cmp_ge_u32 s2, {NPROD}
        s_cbranch_scc1 La_nostore
        ds_read_b128 {vr(vY, 4)}, v{vT + 4}
        s_cmp_lt_u32 s{sW}, 2
        s_cbranch_scc1 La_four
        s_waitcnt lgkmcnt(0)
        global_store_dwordx4 v{vT + 5}, {vr(vY, 4)}, {sr(sREC, 2)} sc1
        s_cmp_ge_u32 s{sW}, 5
        s_cbranch_scc1 La_nog1
        s_waitcnt vmcnt(1)
        {g1w}
        s_waitcnt lgkmcnt(0)
        La_nog1:
        s_barrier
        ds_read_b128 {vr(vS1, 4)}, v{vT + 4} offset:{CH * 16}
        s_waitcnt lgkmcnt(0)
        global_store_dwordx4 v{vKA}, {vr(vS1, 4)}, {sr(sREC, 2)} sc1
        s_branch La_nostore
        La_four:
        ds_read_b128 {vr(vC, 4)}, v{vT + 4} offset:8192
        s_waitcnt lgkmcnt(1)
        global_store_dwordx4 v{vT + 5}, {vr(vY, 4)}, {sr(sREC, 2)} sc1
        s_waitcnt lgkmcnt(0)
        global_store_dwordx4 v{vT + 6}, {vr(vC, 4)}, {sr(sREC, 2)} sc1
        s_waitcnt vmcnt(3)
        {g1w}
        s_waitcnt lgkmcnt(0)
        s_barrier
        ds_read_b128 {vr(vS1, 4)}, v{vT + 4} offset:{CH * 16}
        ds_read_b128 {vr(vS1 + 4, 4)}, v{vT + 4} offset:{CH * 16 + 8192}
        s_waitcnt lgkmcnt(1)
        global_store_dwordx4 v{vKA}, {vr(vS1, 4)}, {sr(sREC, 2)} sc1
        s_waitcnt lgkmcnt(0)
        global_store_dwordx4 v{vEA}, {vr(vS1 + 4, 4)}, {sr(sREC, 2)} sc1
        La_nostore:
        """)
    else:
        a(f"""
        s_cmp_ge_u32 s2, {NPROD}
        s_cbranch_scc1 La_nostore
        ds_read_b128 {vr(vY, 4)}, v{vT + 4}
        ds_read_b128 {vr(vS1, 4)}, v{vT + 4} offset:{CH * 16}
        s_cmp_lt_u32 s{sW}, 2
        s_cbranch_scc1 La_four
        s_waitcnt lgkmcnt(1)
        global_store_dwordx4 v{vT + 5}, {vr(vY, 4)}, {sr(sREC, 2)} sc1
        s_waitcnt lgkmcnt(0)
        s_barrier
        global_store_dwordx4 v{vKA}, {vr(vS1, 4)}, {sr(sREC, 2)} sc1
        s_branch La_nostore
        La_four:
        ds_read_b128 {vr(vF, 4)}, v{vT + 4} offset:8192
        ds_read_b128 {vr(vS1 + 4, 4)}, v{vT + 4} offset:{CH * 16 + 8192}
        s_waitcnt lgkmcnt(3)
        global_store_dwordx4 v{vT + 5}, {vr(vY, 4)}, {sr(sREC, 2)} sc1
        s_waitcnt lgkmcnt(1)
        global_store_dwordx4 v{vT + 6}, {vr(vF, 4)}, {sr(sREC, 2)} sc1
        s_waitcnt lgkmcnt(0)
        s_barrier
        global_store_dwordx4 v{vKA}, {vr(vS1, 4)}, {sr(sREC, 2)} sc1
        global_store_dwordx4 v{vEA}, {vr(vS1 + 4, 4)}, {sr(sREC, 2)} sc1
        La_nostore:
        """)
    stamp(a, o, 3)


def gen_main(a, o):
    kn = NAME + "_kernel"
    D = o.D
    sNODE = 2 if o.xbal else sQ
    a(".p2align 8")
    a(f".globl {kn}")
    a(f".type {kn},@function")
    a(f"{kn}:")
    vG0 = vXB
    vG1 = vTP
    vBA = vU + 8
    vRK = vU + 16
    vMP = vU + 24
    vEN = vE
    vK = [vG0 + 4 * j for j in range(SLOTS)]
    cnt = (lambda r: f"s_add_u32 s{r}, s{r}, 1") if o.stamps == 1 else (lambda r: "")
    phase_a(a, o)
    a(f"""
    s_getpc_b64 {sr(sTMP + 2, 2)}
    Lm_pc:
    s_cmp_lt_u32 s{sNODE}, {N - 39 * 256}
    s_cselect_b32 s{sT}, 256, 0
    s_add_u32 s{sT}, s{sT}, tfn_deal_table-Lm_pc
    v_lshl_add_u32 v{vT}, v{vLANE}, 2, s{sT}
    global_load_dword v{vTAB}, v{vT}, {sr(sTMP + 2, 2)}
    s_lshl_b32 s{sT}, s{sQ}, 3
    v_lshrrev_b32 v{vT + 2}, 1, v0
    v_lshl_add_u32 v{vT + 3}, v{vT + 2}, 11, s{sT}
    global_load_dwordx2 {vr(vEN, 2)}, v{vT + 3}, {sr(sWS, 2)} sc1
    v_mul_u32_u24 v{vREC16}, {CHB}, v{vT + 2}
    s_cmp_ge_u32 s{sW}, 5
    s_cbranch_scc1 {"Lm_wmside" if not o.wm2 else "Lm_wmld"}
    {"Lm_wmback:" if not o.wm2 else "Lm_wmldb:"}
    """)
    c = Asm()
    if o.wm2:
        ne = {1: 1, 2: 2, 3: 0}[o.wm2]
        c("Lm_wmld:")
        for r in range(ne, 2):
            wmix_loads(c, WUNIT[r], WRAW[r])
        c(f"""
        s_cmp_eq_u32 s{sW}, 7
        s_cbranch_scc1 Lm_wmldb
        """)
        wmix_loads(c, WUNIT[2], WRAW[2])
        c("s_branch Lm_wmldb")
    c(f"""
    Lm_wmside:
    s_mov_b32 s{sTMP}, 0x05040100
    s_mov_b32 s{sTMP + 1}, 0x07060302
    """)
    if not o.wm2:
        c(f"""
        s_waitcnt vmcnt(4)
        s_cmp_lt_u32 s2, {NPROD}
        s_cbranch_scc1 Lm_wmgo
        s_waitcnt vmcnt(2)
        Lm_wmgo:
        """)
    else:
        c(f"s_mov_b32 s{sDEF}, 8")
    wmix_finish(c, WUNIT[0], WRAW[0], WFRAG)
    wmix_finish(c, WUNIT[1], WRAW[1], WRAW[0])
    side_finish(c)
    c(f"""
    s_cmp_eq_u32 s{sW}, 7
    s_cbranch_scc1 Lm_wmback
    """)
    wmix_finish(c, WUNIT[2], WRAW[2], WRAW[1])
    c("s_branch Lm_wmback")
    a.cold += c.lines
    a(f"""
    v_and_b32 v{vT + 4}, 1, v0
    v_mov_b32 v{vT + 5}, {L_MAX}
    v_lshlrev_b32 v{vREC4}, 4, v0
    v_add_u32 v{vREC4}, {L_PAY}, v{vREC4}
    s_mov_b32 s{sSPIN}, {o.spin}
    s_mov_b32 s{sDEF}, 5
    {"s_mov_b32 s10, 0" if o.stamps == 1 else ""}
    {"s_mov_b32 s11, 0" if o.stamps == 1 else ""}
    {"s_mov_b32 s12, 0" if o.stamps == 1 else ""}
    v_lshrrev_b32 v{vYL}, 2, v{vLANE}
    v_lshlrev_b32 v{vYL}, 3, v{vYL}
    v_bfe_u32 v{vT}, v{vLANE}, 3, 2
    v_and_b32 v{vT + 1}, 3, v{vLANE}
    v_lshl_add_u32 v{vT}, v{vT}, 2, v{vT + 1}
    v_lshlrev_b32 v{vEL}, 3, v{vT}
    s_mov_b32 s{sTMP + 2}, 0x0f0f0f0f
    s_mov_b32 s{sTMP + 3}, 0xf0f0f0f0
    v_mov_b32 v{vT}, 128
    v_cndmask_b32 v{vEINC}, 0, v{vT}, {sr(sTMP + 2, 2)}
    s_mul_i32 s{sT}, s{sW}, {16 * ROWB}
    s_add_u32 s{sT}, s{sT}, {L_AGG}
    v_lshl_add_u32 v{vAGW}, v{vLANE}, 2, s{sT}
    v_and_b32 v{vT}, 15, v{vLANE}
    v_mul_u32_u24 v{vT}, {ROWB}, v{vT}
    v_and_b32 v{vT + 1}, 48, v{vLANE}
    v_add3_u32 v{vAGR}, v{vT}, v{vT + 1}, s{sT}
    """)
    if o.ipad:
        a(f"""
        s_cmp_eq_u32 s{sW}, 4
        s_cbranch_scc1 {"Lm_pad1" if o.tail else "Lm_pad2"}
        Lm_padback:
        """)
    if o.pfe:
        a(f"""
        s_sub_u32 s{sTMP + 5}, s{sW}, {o.pfew}
        s_cmp_ge_u32 s{sTMP + 5}, {o.pfe}
        s_cbranch_scc1 Lm_poll
        s_mul_i32 s{sTMP + 4}, s{sPF}, {o.pfe * 8192}
        s_add_u32 s{sTMP + 4}, s{sTMP + 4}, {(o.pfa * 262144 - o.pfew * 8192) & 0xffffffff}
        s_add_u32 s{sTMP + 4}, s{sTMP + 4}, s{sRO2}
        v_add_u32 v{vTA}, s{sTMP + 4}, v{vPFA}
        buffer_load_dword v{vPF}, v{vTA}, {sr(sX, 4)}, 0 offen
        s_waitcnt vmcnt(1)
        s_branch Lm_poll2
        """)
    a(f"""
    Lm_poll:
    s_waitcnt vmcnt(0)
    Lm_poll2:
    v_cmp_ne_u32 vcc, s{sTAG}, v{vEN + 1}
    s_cbranch_vccnz Lm_repoll
    s_mov_b64 exec, -1
    """)
    c = Asm()
    c(f"""
    Lm_repoll:
    {cnt(10)}
    s_sub_u32 s{sSPIN}, s{sSPIN}, 1
    s_cbranch_scc1 Lm_end
    s_mov_b64 exec, vcc
    global_load_dwordx2 {vr(vEN, 2)}, v{vT + 3}, {sr(sWS, 2)} sc1
    s_branch Lm_poll
    """)
    a.cold = c.lines + a.cold
    stamp(a, o, 4)
    a(f"""
    v_and_b32 v{vT}, 0xffff, v{vEN}
    v_lshrrev_b32 v{vT + 1}, 16, v{vEN}
    v_add_u32 v{vT}, v{vT}, v{vT + 4}
    v_sub_u32 v{vREM}, v{vT + 1}, v{vT + 4}
    v_lshl_add_u32 v{vREC16}, v{vT}, 4, v{vREC16}
    Lm_round:
    """)
    for j in range(HOT + 1):
        a(f"v_cmp_lt_i32 {sr(sM + 2 * j, 2)}, {2 * j}, v{vREM}")

    def per_slot(label, body, full=False):
        for j in range(HOT):
            if not full:
                a(f"s_mov_b64 exec, {sr(sM + 2 * j, 2)}")
                if j >= NOBR:
                    a(f"s_cbranch_execz {label}")
            body(a, j)
        a(f"s_cmp_lg_u64 {sr(sM + 2 * HOT, 2)}, 0")
        a(f"s_cbranch_scc1 {label}x")
        a(f"{label}:")
        if not full:
            a("s_mov_b64 exec, -1")
        c = Asm()
        c(f"{label}x:")
        for j in range(HOT, SLOTS):
            if not full:
                c(f"s_mov_b64 exec, {sr(sM + 2 * j, 2)}")
                c(f"s_cbranch_execz {label}")
            body(c, j)
        c(f"s_branch {label}")
        a.cold += c.lines

    def ldg0(b, j):
        if j == HOT:
            b("s_mov_b64 exec, -1")
            for jj in range(HOT + 1, SLOTS):
                b(f"v_cmp_lt_i32 {sr(sM + 2 * jj, 2)}, {2 * jj}, v{vREM}")
            b(f"s_mov_b64 exec, {sr(sM + 2 * j, 2)}")
        b(f"global_load_dwordx4 {vr(vG0 + 4 * j, 4)}, v{vREC16}, {sr(sREC, 2)} offset:{32 * j} sc1")

    def ldg1(b, j):
        b(f"global_load_dwordx3 {vr(vG1 + 4 * j, 3)}, v{vREC1}, {sr(sREC, 2)} offset:{32 * j} sc1")

    a("Lm_g0:")
    per_slot("Lm_ld", ldg0)
    a(f"""
    v_add_u32 v{vREC1}, {CH * 16}, v{vREC16}
    s_cmp_lg_u32 s{sRND}, 0
    s_cbranch_scc1 Lm_nomax
    {f"s_cmp_ge_u32 s{sW}, s{sDEF}" if o.wm2 else ""}
    {"s_cbranch_scc1 Lm_wmside" if o.wm2 else ""}
    {"Lm_wmback:" if o.wm2 else ""}
    v_add_u32 v{vT + 1}, v{vREM}, v{vT + 4}
    v_cmp_lt_u32 vcc, {2 * SLOTS}, v{vT + 1}
    s_and_saveexec_b64 {sr(sTMP + 2, 2)}, vcc
    ds_max_u32 v{vT + 5}, v{vT + 1}
    s_mov_b64 exec, -1
    Lm_nomax:
    s_mov_b64 {sr(sBAD, 2)}, 0
    s_mov_b64 vcc, 0
    s_waitcnt vmcnt(0)
    """)

    def ck0(b, j):
        b(f"v_cmp_ne_u32 vcc, s{sTAG}, v{vG0 + 4 * j + 1}")
        b(f"v_and_b32 v{vBA + j}, 63, v{vK[j]}")
        b(f"v_lshlrev_b32 v{vBA + j}, 2, v{vBA + j}")
        b(f"s_or_b64 {sr(sBAD, 2)}, {sr(sBAD, 2)}, vcc")
    per_slot("Lm_ck0", ck0)
    a(f"""
    s_cmp_lg_u64 {sr(sBAD, 2)}, 0
    s_cbranch_scc1 Lm_re0
    """)
    stamp(a, o, 5)

    if o.xbar:
        per_slot("Lm_l1", ldg1)
        a(f"""
        s_cmp_lg_u32 s{sRND}, 0
        s_cbranch_scc1 Lm_nox
        s_barrier
        """)
        prefetch(a, o.pf2, o.pfa + o.pfe)
        a("Lm_nox:")

    def hist1(b, j):
        b(f"ds_add_u32 v{vBA + j}, v{vONE} offset:{L_DEG}")
        if not o.xbar:
            ldg1(b, j)
        b(f"ds_write_b64 v{vREC4}, {vr(vG0 + 4 * j + 2, 2)} offset:{8192 * j}")
        b(f"v_lshrrev_b32 v{vRK + j}, 22, v{vK[j]}")
        b(f"v_add_u32 v{vRK + j}, s{sROT}, v{vRK + j}")
        b(f"v_and_b32 v{vK[j]}, 0x00fffc00, v{vK[j]}")
    per_slot("Lm_h1", hist1)
    a(f"""
    s_cmp_lg_u32 s{sRND}, 0
    s_cbranch_scc1 Lm_bins
    v_lshlrev_b32 v{vT + 1}, 2, v{vLANE}
    s_mul_i32 s{sT}, s{sW}, 5
    v_sub_u32 v{vT + 2}, 63, v{vLANE}
    v_add_u32 v{vT + 6}, s{sT}, v{vLANE}
    v_lshlrev_b32 v{vT + 4}, 2, v{vT + 6}
    v_and_b32 v{vT + 7}, 3, v0
    v_lshlrev_b32 v{vT + 7}, 5, v{vT + 7}
    s_add_u32 s{sTMP}, s{sT}, 1
    s_add_u32 s{sTMP + 1}, s{sT}, 2
    s_add_u32 s{sTMP + 2}, s{sT}, 3
    s_add_u32 s{sTMP + 3}, s{sT}, 4
    s_waitcnt lgkmcnt(0)
    s_barrier
    """)
    stamp(a, o, 6)
    a(f"""
    ds_read_b32 v{vT}, v{vT + 1} offset:{L_DEG}
    ds_read_b32 v{vT + 5}, v{vT + 5}
    """)
    if not o.xbar:
        prefetch(a, o.pf2, o.pfa + o.pfe)
    a(f"""
    s_waitcnt lgkmcnt(0)
    v_lshl_or_b32 v{vT}, v{vT}, 6, v{vT + 2}
    v_readfirstlane_b32 s{sMAX}, v{vT + 5}
    v_readlane_b32 s{sRING}, v{vT}, s{sT}
    v_readlane_b32 s{sRING + 1}, v{vT}, s{sTMP}
    v_readlane_b32 s{sRING + 2}, v{vT}, s{sTMP + 1}
    v_readlane_b32 s{sRING + 3}, v{vT}, s{sTMP + 2}
    v_readlane_b32 s{sRING + 4}, v{vT}, s{sTMP + 3}
    """)
    for k in range(5):
        a(f"v_cmp_lt_u32 {sr(sTMP + 2 * k, 2)}, s{sRING + k}, v{vT}")
    for k in range(5):
        a(f"s_bcnt1_i32_b64 s{sRING + 8 + k}, {sr(sTMP + 2 * k, 2)}")
    for k in range(5):
        a(f"v_readlane_b32 s{sRING + k}, v{vTAB}, s{sRING + 8 + k}")
    for k in range(5):
        a(f"v_writelane_b32 v{vT + 2}, s{sRING + k}, {k}")
    a(f"""
    s_mov_b64 exec, 31
    v_lshrrev_b32 v{vT + 3}, 24, v{vT + 2}
    ds_write_b32 v{vT + 4}, v{vT + 2} offset:{L_MAP}
    ds_write_b32 v{vT + 3}, v{vT + 6} offset:{L_INV}
    s_mov_b64 exec, -1
    ds_read_b128 {vr(vWR, 4)}, v{vL16} offset:{L_WR}
    ds_read_b128 {vr(vWR + 4, 4)}, v{vL16} offset:{L_WR + 1024}
    ds_read_b128 {vr(vCG, 4)}, v{vT + 7} offset:{L_CG}
    ds_read_b128 {vr(vCG + 4, 4)}, v{vT + 7} offset:{L_CG + 16}
    s_waitcnt lgkmcnt(4)
    s_barrier
    Lm_bins:
    """)
    stamp(a, o, 7)
    per_slot("Lm_mp", lambda b, j: b(f"ds_read_b32 v{vMP + j}, v{vBA + j} offset:{L_MAP}"))
    a("s_waitcnt lgkmcnt(7)")
    per_slot("Lm_sb", lambda b, j: b(f"ds_bpermute_b32 v{vRK + j}, v{vRK + j}, v{vTAB}"), full=True)
    a(f"""
    v_lshlrev_b32 v{vT + 1}, 2, v{vLANE}
    s_lshl_b32 s{sT}, s{sW}, 3
    s_add_u32 s{sTMP}, s{sT}, 7
    v_lshrrev_b32 v{vT + 3}, 3, v{vLANE}
    s_mov_b64 {sr(sBAD, 2)}, 0
    s_waitcnt lgkmcnt(0)
    """)

    def hist2(b, j):
        b(f"v_lshrrev_b32 v{vRK + j}, v{vMP + j}, v{vRK + j}")
        b(f"v_and_b32 v{vBA + j}, 0xe0, v{vMP + j}")
        b(f"v_and_or_b32 v{vBA + j}, v{vRK + j}, 28, v{vBA + j}")
        b(f"ds_add_rtn_u32 v{vRK + j}, v{vBA + j}, v{vONE} offset:{L_BIN}")
        b(f"v_bfe_u32 v{vMP + j}, v{vMP + j}, 16, 8")
        b(f"v_or_b32 v{vK[j]}, v{vK[j]}, v{vMP + j}")
        b(f"v_add_u32 v{vK[j] + 1}, {8192 * j}, v{vREC4}")
    per_slot("Lm_h2", hist2)
    a(f"""
    s_waitcnt lgkmcnt(0)
    s_barrier
    """)
    stamp(a, o, 8)
    a(f"""
    ds_read_b32 v{vT}, v{vT + 1} offset:{L_BIN}
    v_mov_b32 v{vT + 4}, {XBYTES}
    v_mov_b32 v{vT + 5}, {L_ZERO}
    s_mov_b32 s{sTMP + 2}, {L_ENT}
    v_mov_b32 v{vT + 6}, {L_NULL}
    s_mov_b32 s{sTMP + 4}, 0x0f0f0f0f
    s_mov_b32 s{sTMP + 5}, 0xf0f0f0f0
    v_mov_b32 v{vT + 7}, {L_NULL - 32}
    s_waitcnt lgkmcnt(0)
    v_mov_b32 v{vT + 2}, v{vT}
    """)
    wave_scan(a, vT + 2)
    a(f"""
    v_lshl_add_u32 v{vT + 2}, v{vT + 3}, 4, v{vT + 2}
    v_sub_u32 v{vT}, v{vT + 2}, v{vT}
    """)
    per_slot("Lm_bp", lambda b, j: b(f"ds_bpermute_b32 v{vMP + j}, v{vBA + j}, v{vT}"), full=True)
    npf = 1 if o.pf2 else 0
    a(f"s_waitcnt vmcnt({npf}) lgkmcnt(6)")
    if npf:
        a(f"""
        s_cmp_lg_u32 s{sRND}, 0
        s_cbranch_scc1 Lm_g1w
        """)
        a.cold += ["Lm_g1w:", "    s_waitcnt vmcnt(0)", "    s_branch Lm_g1"]
    a("Lm_g1:")

    def ck1(b, j):
        b(f"v_cmp_ne_u32 vcc, s{sTAG}, v{vG1 + 4 * j + 2}")
        b(f"ds_write_b64 v{vREC4}, {vr(vG1 + 4 * j, 2)} offset:{8192 * j + 8}")
        b(f"s_or_b64 {sr(sBAD, 2)}, {sr(sBAD, 2)}, vcc")
    per_slot("Lm_ck1", ck1)
    a(f"""
    s_cmp_lg_u64 {sr(sBAD, 2)}, 0
    s_cbranch_scc1 Lm_re1
    v_readlane_b32 s{sSTART}, v{vT}, s{sT}
    v_readlane_b32 s{sN}, v{vT + 2}, s{sTMP}
    v_readlane_b32 s{sBIG}, v{vT + 2}, 63
    v_readlane_b32 s{sDEF}, v{vT}, s{sTMP}
    v_add_u32 v{vT + 2}, s{sN}, v{vLANE}
    v_lshl_add_u32 v{vT + 2}, v{vT + 2}, 3, s{sTMP + 2}
    s_cmp_eq_u32 s{sW}, 7
    s_cselect_b64 exec, -1, 0xffff
    ds_write_b64 v{vT + 2}, {vr(vT + 4, 2)}
    s_mov_b64 exec, -1
    s_sub_u32 s{sN}, s{sN}, s{sSTART}
    s_sub_u32 s{sDEF}, s{sDEF}, s{sSTART}
    s_lshl_b32 s{sSTART}, s{sSTART}, 3
    s_add_u32 s{sSTART}, s{sSTART}, {L_ENT}
    s_waitcnt lgkmcnt(1)
    """)

    def wr(b, j):
        b(f"v_add_u32 v{vRK + j}, v{vRK + j}, v{vMP + j}")
        b(f"v_lshl_add_u32 v{vRK + j}, v{vRK + j}, 3, s{sTMP + 2}")
        b(f"ds_write_b64 v{vRK + j}, {vr(vK[j], 2)}")
    per_slot("Lm_wr", wr)
    a(f"""
    v_lshl_add_u32 v{vKA}, v{vLANE}, 3, s{sSTART}
    v_add_u32 v{vYA}, s{sSTART}, v{vYL}
    v_add_u32 v{vEA}, s{sSTART}, v{vEL}
    v_cndmask_b32 v{vT}, v{vT + 6}, v{vEA}, {sr(sTMP + 4, 2)}
    v_cndmask_b32 v{vEA}, v{vT + 7}, v{vEA}, {sr(sTMP + 4, 2)}
    v_mov_b32 v{vT + 4}, 0
    """)
    if o.kdef:
        a(f"""
    s_add_u32 s{sN}, s{sN}, 1
    s_lshr_b32 s{sN}, s{sN}, 1
    s_add_u32 s{sDEF}, s{sDEF}, 1
    s_lshr_b32 s{sDEF}, s{sDEF}, 1
    s_sub_u32 s{sDEF}, s{sN}, s{sDEF}
    s_min_u32 s{sDEF}, s{sDEF}, {o.kdef}
    s_add_u32 s{sRND}, s{sRND}, {2 * SLOTS}
    s_cmp_lt_u32 s{sRND}, s{sMAX}
    s_cselect_b32 s{sDEF}, 0, s{sDEF}
    s_cmp_gt_u32 s{sBIG}, {ENT_OWN - 64}
    s_cselect_b32 s{sDEF}, 0, s{sDEF}
    s_cmp_eq_u32 s{sN}, s{sDEF}
    s_cselect_b32 s{sDEF}, 0, s{sDEF}
    s_sub_u32 s{sN}, s{sN}, s{sDEF}
    s_and_b32 s{sRES}, s{sN}, 7
    s_mov_b64 vcc, 0
        """)
    else:
        a(f"""
        s_add_u32 s{sN}, s{sN}, {o.gran - 1}
        s_lshr_b32 s{sN}, s{sN}, {o.gran // 2}
        s_add_u32 s{sRND}, s{sRND}, {2 * SLOTS}
        """)
    a(f"""
    s_waitcnt lgkmcnt(0)
    s_barrier
    """)
    stamp(a, o, 9)
    vK0, vPE0, vEF0 = vT + 3, vT + 2, vTP
    a(f"""
    ds_read_b32 v{vK0}, v{vKA}
    ds_read_b32 v{vPE0}, v{vT} offset:4
    ds_read_b32 v{vPE}, v{vEA} offset:{4 + 32}
    ds_read_b32 v{vPY}, v{vYA} offset:4
    ds_read_b32 v{vKEY}, v{vKA} offset:{8 * D}
    ds_write_b32 v{vT + 1}, v{vT + 4} offset:{L_BIN}
    s_waitcnt lgkmcnt(5)
    """)
    for i in range(D + 2):
        a(f"v_readlane_b32 s{sRING + i}, v{vK0}, {i}")
    for i in range(D):
        a(f"s_and_b32 s{sOFF}, s{sRING + i}, 0xfffffc00")
        a(f"buffer_load_dwordx4 {vr(vXB + 4 * i, 4)}, v{vL16}, {sr(sX, 4)}, s{sOFF} offen")
    a(f"""
    s_waitcnt lgkmcnt(2)
    ds_read2_b64 {vr(vEF0, 4)}, v{vPE0} offset0:1 offset1:1
    ds_read_b64 {vr(vYN, 2)}, v{vPY}
    ds_read2_b64 {vr(vEF, 4)}, v{vPE} offset0:1 offset1:1
    s_and_b32 s{sOFF}, s{sRING + D}, 0xfffffc00
    s_and_b32 s{sOFF + 1}, s{sRING + D + 1}, 0xfffffc00
    s_add_u32 s{sTMP + 2}, s{sW}, 1
    s_and_b32 s{sTMP + 2}, s{sTMP + 2}, 3
    s_lshl_b32 s{sTMP + 3}, s{sTMP + 2}, 13
    v_add_u32 v{vT + 4}, s{sTMP + 3}, v{vL16}
    s_lshl_b32 s{sTMP}, s{sW}, 4
    s_and_b32 s{sTMP + 1}, s{sW}, 4
    s_lshl_b32 s{sTMP + 1}, s{sTMP + 1}, 2
    v_lshrrev_b32 v{vT + 1}, 4, v{vLANE}
    v_lshl_add_u32 v{vT + 2}, v{vT + 1}, 2, s{sTMP}
    v_lshl_add_u32 v{vT + 5}, v{vT + 1}, 2, s{sTMP + 1}
    s_waitcnt lgkmcnt(0)
    ds_read_b32 v{vINV}, v{vT + 2} offset:{L_INV}
    ds_read_b32 v{vINV + 1}, v{vT + 5} offset:{L_INV + 128}
    """)
    for i in range(8):
        a(f"ds_read_b128 {vr(vWM + 4 * i, 4)}, v{vT + 4} offset:{L_WM + 1024 * i}")

    def out_addr():
        a(f"""
        v_and_b32 v{vT + 3}, 15, v{vLANE}
        s_lshl_b32 s{sT}, s{sNODE}, 10
        v_lshl_add_u32 v{vT + 3}, v{vT + 3}, 4, s{sT}
        """)
        for k in range(4):
            a(f"""
            s_add_u32 s{sTMP + k}, s{sW}, {k + 1}
            s_and_b32 s{sTMP + k}, s{sTMP + k}, 3
            s_lshl_b32 s{sT}, s{sTMP + k}, 13
            s_lshl_b32 s{sTMP + k}, s{sTMP + k}, 8
            """)
            if k:
                a(f"v_add_u32 v{vT + 4 + k}, s{sT}, v{vL16}")
    if o.hoist:
        out_addr()
    a(f"""
    s_cmp_eq_u32 s{sN}, 0
    s_cbranch_scc1 Lm_done
    {f"s_sub_u32 s{sN}, s{sN}, 1" if not o.tail else ""}
    """)

    def mz(h, ef):
        a(f"v_mfma_f32_32x32x16_bf16 {vr(vU + 16 * h, 16)}, {vr(ef, 4)}, {vr(vWR + 4 * h, 4)}, 0")

    def dot(n):
        i, p = n & 3, n >> 2
        c = f"v{vAT + i}" if p else "0"
        a(f"v_dot2_f32_bf16 v{vAT + i}, v{vYN + p}, v{vCG + 2 * i + p}, {c}")

    mz(0, vEF0)
    mz(1, vEF0)
    for n in range(8):
        dot(n)
    a(f"v_add_u32 v{vEA}, v{vEINC}, v{vEA}")
    a(f"v_add_u32 v{vYA}, 128, v{vYA}")
    a(f"v_add_u32 v{vKA}, 128, v{vKA}")
    a(f"v_cvt_pk_bf16_f32 v{vA}, v{vAT}, v{vAT + 1}")
    a(f"v_cvt_pk_bf16_f32 v{vA + 1}, v{vAT + 2}, v{vAT + 3}")
    tmp = vTP + 8
    for r in range(8):
        a(f"v_exp_f32 v{tmp + r}, v{vU + 16 * (r >> 2) + (r & 3)}")
    a("s_nop 0")
    for r in range(0, 8, 2):
        a(f"v_pk_add_f32 {vr(tmp + r, 2)}, {vr(tmp + r, 2)}, 1.0 op_sel_hi:[1,0]")
    for r in range(8):
        a(f"v_rcp_f32 v{tmp + r}, v{tmp + r}")
    a("s_nop 0")
    for r in range(0, 8, 2):
        a(f"v_pk_mul_f32 {vr(vR + r, 2)}, {vr(vU + 16 * (r >> 2) + (r & 3), 2)}, {vr(tmp + r, 2)}")
    mz(0, vEF)
    a("s_nop 7")
    stamp(a, o, 10)
    if o.yprio:
        a(f"""
        {"s_setprio 1" if o.lowp else ""}
        s_cmp_lt_u32 s{sW}, 4
        s_cbranch_scc1 Lm_yp
        s_setprio {2 if o.lowp else 1}
        Lm_yp:
        """)
    if o.tail:
        a(f"""
        s_cmp_lt_u32 s{sN}, 8
        s_cbranch_scc1 Lm_tail
        """)
    a(".p2align 6")
    a("Lm_loop:")
    def pair(P, tail=False):
        g, hf = P >> 1, P & 1
        i0 = 2 * P
        sn = vU + 16 * hf + 4 * g
        dn = vR + 8 * ((g + 1) & 1) + 4 * hf
        cur = vR + 8 * (g & 1) + 2 * hf
        loads = not tail or i0 + D < 14
        keys = not tail or i0 + D + 2 < 14
        silu = not tail or P < 6
        if o.kdef:
            a(f"s_cbranch_vccnz Lm_r{P}")
        a(f"s_waitcnt vmcnt({D - 2 if not tail else min(D - 2, 12 - i0)})")
        if loads:
            for k in range(2):
                a(f"buffer_load_dwordx4 {vr(vXB + 4 * ((i0 + k + D) & 7), 4)}, v{vL16}, {sr(sX, 4)}, s{sOFF + k} offen")
        if o.kdef:
            a(f"Lm_r{P}:")
        for k in range(2):
            xb = vXB + 4 * ((i0 + k) & 7)
            for h in range(2):
                a(f"v_mfma_f32_4x4x4_16b_bf16 {vr(vTP + 8 * k + 4 * h, 4)}, {vr(vA, 2)}, {vr(xb + 2 * h, 2)}, 0 cbsz:4 abid:{i0 + k}")
                if silu:
                    a(f"v_exp_f32 v{vE + 2 * k + h}, v{sn + 2 * k + h}")
        if P == 0:
            a("s_waitcnt lgkmcnt(0)")
        if keys:
            for k in range(2):
                a(f"v_readlane_b32 s{sRING + ((i0 + k + D + 2) & 15)}, v{vKEY}, {i0 + k + 2}")
        else:
            a("s_nop 0" if silu else "s_nop 3")
        if silu:
            for k in range(2):
                a(f"v_pk_add_f32 {vr(vE + 2 * k, 2)}, {vr(vE + 2 * k, 2)}, 1.0 op_sel_hi:[1,0]")
        if P == 0:
            mz(1, vEF)
        if P == 7:
            mz(0, vEF)
        if silu:
            for r in range(4):
                a(f"v_rcp_f32 v{vE + r}, v{vE + r}")
        for r in range(o.pad):
            a(f"v_mov_b32 v{vT}, v{vT + 1}")
        if not tail:
            if P == 0:
                a(f"ds_read_b32 v{vPY}, v{vYA} offset:4")
                a(f"ds_read_b32 v{vPE}, v{vEA} offset:{4 + 32}")
            if P == 1:
                a("s_waitcnt lgkmcnt(0)")
                a(f"ds_read_b64 {vr(vYN, 2)}, v{vPY}")
                a(f"ds_read2_b64 {vr(vEF, 4)}, v{vPE} offset0:1 offset1:1")
            if P == 7:
                a(f"ds_read_b32 v{vKEY}, v{vKA} offset:{8 * D}")
        if keys:
            for k in range(2):
                a(f"s_and_b32 s{sOFF + k}, s{sRING + ((i0 + k + D + 2) & 15)}, 0xfffffc00")
        for k in range(2):
            a(f"s_set_gpr_idx_on s{sRING + i0}, 0xc" if k == 0 else f"s_set_gpr_idx_idx s{sRING + i0 + 1}")
            for q in range(4):
                a(f"v_pk_fma_f32 {vr(vACC + 2 * q, 2)}, {vr(cur + 4 * (q >> 1), 2)}, {vr(vTP + 8 * k + 2 * q, 2)}, "
                  f"{vr(vACC + 2 * q, 2)} op_sel:[{k},0,0] op_sel_hi:[{k},1,1]")
        a("s_set_gpr_idx_off")
        if silu:
            for k in range(2):
                a(f"v_pk_mul_f32 {vr(dn + 2 * k, 2)}, {vr(sn + 2 * k, 2)}, {vr(vE + 2 * k, 2)}")
        if not tail:
            if P == 1:
                a(f"v_add_u32 v{vEA}, v{vEINC}, v{vEA}")
                a(f"v_add_u32 v{vYA}, 128, v{vYA}")
            if P == 2:
                a("s_waitcnt lgkmcnt(0)")
            if 2 <= P < 6:
                dot(2 * (P - 2))
                dot(2 * (P - 2) + 1)
            if P == 7:
                a(f"""
                v_cvt_pk_bf16_f32 v{vA}, v{vAT}, v{vAT + 1}
                v_cvt_pk_bf16_f32 v{vA + 1}, v{vAT + 2}, v{vAT + 3}
                v_add_u32 v{vKA}, 128, v{vKA}
                """)

    if o.tail:
        assert D == 6 and not o.kdef
        for P in range(8):
            pair(P)
        a(f"""
        s_sub_u32 s{sN}, s{sN}, 8
        s_cmp_ge_u32 s{sN}, 8
        s_cbranch_scc1 Lm_loop
        Lm_tail:
        """)
        for P in range(7):
            a(f"s_cmp_eq_u32 s{sN}, {P}")
            a("s_cbranch_scc1 Lm_done")
            pair(P, True)
        if o.ipad:
            a("""
            s_branch Lm_done
            Lm_pad1:
            s_branch Lm_pad2
            """)
    else:
        for P in range(8):
            pair(P)
            if o.gran == 2 or P & 1:
                a(f"s_sub_u32 s{sN}, s{sN}, 1")
                a("s_cbranch_scc1 Lm_done" if P < 7 else "s_cbranch_scc0 Lm_loop")
    a(f"""
    Lm_done:
    {"s_cbranch_vccnz Lm_final" if o.kdef else ""}
    """)
    stamp(a, o, 11)
    a(f"""
    s_cmp_lt_u32 s{sRND}, s{sMAX}
    s_cbranch_scc1 Lm_next
    s_cmp_gt_u32 s{sBIG}, {ENT_OWN - 64}
    s_cbranch_scc1 Lm_big
    Lm_small:
    {"s_setprio 0" if o.lowp else ""}
    {"s_barrier" if o.sbar == 1 else ""}
    """)
    c = Asm()
    c(f"""
    Lm_next:
    s_setprio 0
    s_waitcnt vmcnt(0) lgkmcnt(0)
    s_barrier
    v_subrev_u32 v{vREM}, {2 * SLOTS}, v{vREM}
    v_add_u32 v{vREC16}, {32 * SLOTS}, v{vREC16}
    s_branch Lm_round
    Lm_big:
    s_waitcnt lgkmcnt(0)
    s_barrier
    s_branch Lm_small
    """)
    a.cold += c.lines

    def to_lds(s, vaddr, off):
        acc = vACC + 8 * s
        for r in range(0, 8, 2):
            a(f"v_pk_mul_f32 {vr(acc + r, 2)}, {vr(acc + r, 2)}, {sr(sLN2, 2)} op_sel_hi:[1,0]")
        for r in range(4):
            a(f"v_cvt_pk_bf16_f32 v{acc + r}, v{acc + r}, v{acc + 4 + r}")
        for r in range(4):
            a(f"ds_write_b32 v{vaddr}, v{acc + r} offset:{off + r * ROWB}")

    def fin_ops(d, vaddr, soff):
        ops = [f"v_cvt_pk_bf16_f32 v{d + r}, v{d + 2 * r}, v{d + 2 * r + 1}" for r in range(4)]
        ops.append(f"buffer_store_dwordx4 {vr(d, 4)}, v{vaddr}, {sr(sO, 4)}, s{soff} offen sc1")
        return ops

    def mix(d, b, ops, wait, fa=vTP):
        n = 0
        for s in range(4):
            if wait[s] is not None:
                a(f"s_waitcnt lgkmcnt({wait[s]})")
            for t in range(2):
                cc = vr(d + 4 * t, 4) if s else "0"
                a(f"v_mfma_f32_16x16x32_bf16 {vr(d + 4 * t, 4)}, {vr(fa + 4 * s, 4)}, {vr(b + 8 * s + 4 * t, 4)}, {cc}")
                n += 1
                if n >= 3:
                    for _ in range(2):
                        if ops:
                            a(ops.pop(0))

    vB = [vWM, vACC + 8]
    a("s_waitcnt lgkmcnt(0)")
    if o.early0:
        a(f"""
        s_mul_i32 s{sT}, s{sW}, {-12 * ROWB & 0xffffffff}
        v_add_u32 v{vT}, s{sT}, v{vAGW}
        """)
        to_lds(0, vT, 128 * ROWB)
        if o.split:
            a(f"""
            v_mov_b32 v{vE}, {L_CNT}
            s_mov_b64 exec, 1
            ds_add_u32 v{vE}, v{vONE}
            s_mov_b64 exec, -1
            s_lshr_b32 s{sT}, s{sW}, 2
            s_sub_u32 s{sT}, s{sT}, s{sW}
            s_mul_i32 s{sT}, s{sT}, {16 * ROWB}
            v_add_u32 v{vE + 1}, s{sT}, v{vAGR}
            """)
    for s in range(1, 5):
        to_lds(s, vAGW, (s - 1) * 4 * ROWB)
        if s == 2:
            a("s_waitcnt lgkmcnt(4)")
    if not o.hoist:
        out_addr()
    a(f"""
    v_lshl_add_u32 v{vINV}, v{vINV}, 18, v{vT + 3}
    v_lshl_add_u32 v{vINV + 1}, v{vINV + 1}, 18, v{vT + 3}
    """)
    a("s_waitcnt lgkmcnt(0)")
    for s in range(4):
        a(f"ds_read_b128 {vr(vTP + 4 * s, 4)}, v{vAGR} offset:{64 * s}")

    def rdb(k):
        for i in range(8):
            a(f"ds_read_b128 {vr(vB[k & 1] + 4 * i, 4)}, v{vT + 4 + k} offset:{L_WM + 1024 * i}")
    if o.ipad > 1:
        a("""
        s_branch Lm_nopad2
        Lm_pad2:
        s_branch Lm_pad3
        Lm_nopad2:
        """)
    rdb(1)
    if o.sbar == 2:
        a("s_barrier")
    mix(vD, vB[0], [], [11, 10, 9, 8])
    for k in range(1, 4):
        a("s_waitcnt lgkmcnt(6)")
        if k < 3:
            rdb(k + 1)
            w = [None, 12, 10, 8]
        elif o.split:
            a(f"ds_read_b32 v{vE + 2}, v{vE}")
            a("s_nop 4")
            w = [None, 5, 3, 1]
        else:
            a("s_nop 5")
            w = [None, 4, 2, 0]
        mix(vD + 8 * (k & 1), vB[k & 1], fin_ops(vD + 8 * ((k - 1) & 1), vINV, sTMP + k - 1), w)
    if o.split:
        def rda(b):
            for s in range(4):
                b(f"ds_read_b128 {vr(vU + 4 * s, 4)}, v{vE + 1} offset:{128 * ROWB + 64 * s}")
        a(f"""
        s_waitcnt lgkmcnt(0)
        v_readfirstlane_b32 s{sT}, v{vE + 2}
        s_cmp_lt_u32 s{sT}, 8
        s_cbranch_scc1 Lm_notyet
        """)
        rda(a)
        for op in fin_ops(vD + 8, vINV, sTMP + 3):
            a(op)
        a("Lm_last:")
        stamp(a, o, 12)
        mix(vD, vB[1], [], [3, 2, 1, 0], fa=vU)
        a("s_nop 7")
        for op in fin_ops(vD, vINV + 1, sTMP + 3):
            a(op)
        c = Asm()
        c("""
        Lm_notyet:
        s_nop 3
        """)
        for op in fin_ops(vD + 8, vINV, sTMP + 3):
            c(op)
        c(f"""
        s_mov_b32 s{sSPIN}, {1 << 17}
        Lm_cpoll:
        ds_read_b32 v{vE + 2}, v{vE}
        s_sub_u32 s{sSPIN}, s{sSPIN}, 1
        s_cbranch_scc1 Lm_end
        s_waitcnt lgkmcnt(0)
        v_readfirstlane_b32 s{sT}, v{vE + 2}
        s_cmp_lt_u32 s{sT}, 8
        s_cbranch_scc1 Lm_cpoll
        """)
        rda(c)
        c("s_branch Lm_last")
        a.cold = c.lines + a.cold
    else:
        a("s_nop 7")
        for op in fin_ops(vD + 8, vINV, sTMP + 3):
            a(op)
        if o.kdef:
            a(f"""
            s_cmp_eq_u32 s{sDEF}, 0
            s_cbranch_scc1 Lm_final
            s_sub_u32 s{sN}, s{sDEF}, 1
            s_mov_b64 vcc, -1
            s_waitcnt vmcnt(4)
            """)
            for P in range(7):
                a(f"s_cmp_eq_u32 s{sRES}, {P}")
                a(f"s_cbranch_scc1 Lm_r{P}")
            a("s_branch Lm_r7")
        if o.ipad:
            a(f"""
            s_branch Lm_final
            {"Lm_pad2:" if o.ipad == 1 else ""}
            Lm_pad3:
            s_branch Lm_padback
            """)
        a(f"""
        Lm_final:
        s_setprio 0
        s_mul_i32 s{sT}, s{sW}, {-12 * ROWB & 0xffffffff}
        v_add_u32 v{vAGW}, s{sT}, v{vAGW}
        """)
        if not o.early0:
            to_lds(0, vAGW, 128 * ROWB)
        a(f"""
        s_lshr_b32 s{sT}, s{sW}, 2
        s_sub_u32 s{sT}, s{sT}, s{sW}
        s_mul_i32 s{sT}, s{sT}, {16 * ROWB}
        v_add_u32 v{vAGR}, s{sT}, v{vAGR}
        s_waitcnt lgkmcnt(0)
        s_barrier
        """)
        stamp(a, o, 12)
        for s in range(4):
            a(f"ds_read_b128 {vr(vTP + 4 * s, 4)}, v{vAGR} offset:{128 * ROWB + 64 * s}")
        mix(vD, vB[1], [], [3, 2, 1, 0])
        a("s_nop 7")
        for op in fin_ops(vD, vINV + 1, sTMP + 3):
            a(op)
    a(f"""
    s_or_b32 s{sT}, s2, s{sW}
    s_cmp_lg_u32 s{sT}, 0
    s_cbranch_scc1 Lm_noep
    v_mov_b32 v{vT}, {WS_EPOCH}
    v_mov_b32 v{vT + 1}, s{sTAG}
    s_mov_b64 exec, 1
    global_store_dword v{vT}, v{vT + 1}, {sr(sWS, 2)} sc1
    Lm_noep:
    """)
    if o.stamps and o.stamps != 5:
        a("s_waitcnt vmcnt(0)")
    stamp(a, o, 13)
    stamp_flush(a, o, 14)
    a(f"""
    Lm_end:
    s_endpgm
    """)
    a.lines += a.cold
    a(f"""
    Lm_re0:
    {cnt(11)}
    s_sub_u32 s{sSPIN}, s{sSPIN}, 1
    s_cbranch_scc0 Lm_g0
    s_endpgm
    Lm_re1:
    {cnt(12)}
    s_sub_u32 s{sSPIN}, s{sSPIN}, 1
    s_cbranch_scc1 Lm_end
    """)
    for j in range(SLOTS):
        a(f"s_mov_b64 exec, {sr(sM + 2 * j, 2)}")
        a("s_cbranch_execz Lm_rl1")
        ldg1(a, j)
    a(f"""
    Lm_rl1:
    s_mov_b64 exec, -1
    s_mov_b64 {sr(sBAD, 2)}, 0
    s_waitcnt vmcnt(0) lgkmcnt(0)
    s_branch Lm_g1
    """)
    a(".p2align 2")
    a(".type tfn_deal_table,@object")
    a("tfn_deal_table:")
    nb = 7 if o.ndef else 8
    for asg in json.load(open(os.path.join(HERE, "part.json")))[str(o.bias)]:
        used = [0] * 8
        vals = []
        for w in asg:
            sl = used[w]
            used[w] += 1
            p = 32 + w if sl == 0 else 4 * w + sl - 1
            vals.append((9 if sl == 0 else 6) | w * 32 | (sl * 8) << 16 | (p * 4) << 24)
        vals += [0] * 24
        for l in range(64):
            if l < o.npre:
                b = int((l + 0.5) * o.sched / o.npre)
            else:
                b = int((l - o.npre + 0.5) * nb / (64 - o.npre))
            vals[l] |= b << 8 | (7 if l >= 64 - o.ndef else b) << 11
        for lo in range(0, 64, 8):
            a(".long " + ", ".join("%#x" % v for v in vals[lo:lo + 8]))
    a(".size tfn_deal_table, 512")


def generate(o):
    if not o.ndef:
        o.kdef = 0
    a = Asm()
    ref = open(f"cdna_kernels/{NAME}.s.ref").read().split("\n")
    for ln in ref:
        if ln.startswith("; Override"):
            break
        a.lines.append(ln)
    kerns = [(NAME + "_kernel", NV)]
    diag = o.stamps in (1, 5)
    if diag:
        a.lines.append(f"; @launch kernel={NAME}_kernel grid=(256,1,1) block=(512,1,1) lds={L_END}")
        a.lines.append("; @launch kernel=diag_end_kernel grid=(1,1,1) block=(64,1,1) lds=0")
    else:
        a.lines.append(f"; @launch grid=(256,1,1) block=(512,1,1) lds={L_END}")
    a('.amdgcn_target "amdgcn-amd-amdhsa--gfx950"')
    a(".text")
    gen_main(a, o)
    if diag:
        kerns.append(("diag_end_kernel", 8))
        a(f"""
        .p2align 15
        .globl diag_end_kernel
        .type diag_end_kernel,@function
        diag_end_kernel:
        s_memrealtime s[8:9]
        s_load_dwordx2 s[4:5], s[0:1], 80
        v_mov_b32 v1, {WS_STAMP + 2 * 0x80000}
        s_waitcnt lgkmcnt(0)
        v_mov_b32 v2, s8
        global_store_dword v1, v2, s[4:5]
        s_endpgm
        """)
    a('.section .rodata,"a"')
    for kn, v in kerns:
        a(f"""
        .p2align 6
        .amdhsa_kernel {kn}
        .amdhsa_next_free_vgpr {v}
        .amdhsa_next_free_sgpr 102
        .amdhsa_accum_offset {v}
        .amdhsa_group_segment_fixed_size 0
        .amdhsa_kernarg_size 88
        .amdhsa_user_sgpr_count 2
        .amdhsa_user_sgpr_kernarg_segment_ptr 1
        .amdhsa_system_sgpr_workgroup_id_x 1
        .amdhsa_float_denorm_mode_32 3
        .end_amdhsa_kernel
        """)
    return a.text()


if __name__ == "__main__":
    o = Opt()
    out = sys.argv[1]
    for kv in sys.argv[2:]:
        k, v = kv.split("=")
        assert hasattr(o, k), k
        setattr(o, k, int(v) if v.lstrip("-").isdigit() else v.replace("+", " "))
    open(out, "w").write(generate(o))
```
